```python
import torch

def _softmax(x, axis=-1):
    return torch.softmax(x, dim=axis)

def _gelu(x):
    return torch.nn.functional.gelu(x, approximate='tanh')

def _silu(x):
    return torch.nn.functional.silu(x)

def _sigmoid(x):
    return torch.sigmoid(x)

def _layernorm(x, axis=-1, eps=1e-05):
    m = x.mean(dim=axis, keepdim=True)
    v = x.var(dim=axis, keepdim=True, unbiased=False)
    return (x - m) / torch.sqrt(v + eps)

def _scatter_add(tgt, idx, src, axis=0):
    return tgt.clone().index_add_(axis, idx, src)

def _segment_sum(src, seg, n):
    out = torch.zeros((n,) + src.shape[1:], dtype=src.dtype)
    return out.index_add_(0, seg, src)

def _pad(x, pw):
    flat = tuple((v for pair in reversed(pw) for v in pair))
    return torch.nn.functional.pad(x, flat)
kernel_name = 'adaLN_cond__grouped_kv_mqa__glu_gated_reglu__prompt'

def setup_inputs():

    _w = lambda a: (lambda t: t.to(torch.bfloat16) if t.is_floating_point() else t)(torch.as_tensor(a))

    def _A_setup():
        B, S, D, H = (1, 2048, 448, 16)
        Dh = D // H
        return {'x': _w((lambda *s: torch.randn(*s, dtype=torch.bfloat16) * 0.05)(B, S, D)), 'wq': _w((lambda *s: torch.randn(*s, dtype=torch.bfloat16) * 0.05)(D, H * Dh)), 'wk': _w((lambda *s: torch.randn(*s, dtype=torch.bfloat16) * 0.05)(D, Dh)), 'wv': _w((lambda *s: torch.randn(*s, dtype=torch.bfloat16) * 0.05)(D, Dh)), 'wo': _w((lambda *s: torch.randn(*s, dtype=torch.bfloat16) * 0.05)(H * Dh, D))}
    _A_in = _A_setup()

    def _B_setup():
        B, S, D, F = (1, 2048, 448, 1792)
        return {'x': _w((lambda *s: torch.randn(*s, dtype=torch.bfloat16) * 0.05)(B, S, D)), 'W_gate': _w((lambda *s: torch.randn(*s, dtype=torch.bfloat16) * 0.8)(D, F) * (2.0 / D) ** 0.5), 'W_up': _w((lambda *s: torch.randn(*s, dtype=torch.bfloat16) * 0.8)(D, F) * (2.0 / D) ** 0.5), 'W_down': _w((lambda *s: torch.randn(*s, dtype=torch.bfloat16) * 0.8)(F, D) * (1.0 / F) ** 0.5)}
    _B_in = _B_setup()
    return {'A_x': _A_in['x'], 'A_wq': _A_in['wq'], 'A_wk': _A_in['wk'], 'A_wv': _A_in['wv'], 'A_wo': _A_in['wo'], 'B_x': _B_in['x'], 'B_W_gate': _B_in['W_gate'], 'B_W_up': _B_in['W_up'], 'B_W_down': _B_in['W_down'], 'c': _w((lambda *s: torch.randn(*s, dtype=torch.bfloat16) * 0.2)(1, 448) * 8.0), 'w_mod': _w((lambda *s: torch.randn(*s, dtype=torch.bfloat16) * 0.2)(448, 6 * 448) * 448 ** (-0.5) * 8.0)}

def reference(A_x, A_wq, A_wk, A_wv, A_wo, B_x, B_W_gate, B_W_up, B_W_down, c, w_mod):

    def _A_ref(x, wq, wk, wv, wo):
        B, S, D = x.shape
        H = 16
        Dh = D // H
        q = (lambda x, *d: x.permute(*d))((x @ wq).reshape(B, S, H, Dh), 0, 2, 1, 3)
        k = x @ wk
        v = x @ wv
        scores = torch.einsum('bhqd,bkd->bhqk', q, k) * Dh ** (-0.5)
        p = _softmax(scores, axis=-1)
        o = torch.einsum('bhqk,bkd->bhqd', p, v)
        return (lambda x, *d: x.permute(*d))(o, 0, 2, 1, 3).reshape(B, S, H * Dh) @ wo

    def _B_ref(x, W_gate, W_up, W_down):
        gate = torch.einsum('bsd,df->bsf', x, W_gate)
        up = torch.einsum('bsd,df->bsf', x, W_up)
        gate = gate * (lambda x, dt: x.to(dt))(gate > 0, gate.dtype)
        h = gate * up
        return torch.einsum('bsf,fd->bsd', h, W_down)
    x = A_x
    mod = (_silu(c) @ w_mod).reshape(c.shape[0], 6, 1, -1)
    sa, ca, ga, sb, cb, gb = (mod[:, 0].clone(), mod[:, 1].clone(), mod[:, 2].clone(), mod[:, 3].clone(), mod[:, 4].clone(), mod[:, 5].clone())
    h = _layernorm(x, axis=-1) * (1 + ca) + sa
    x = x + ga * _A_ref(h, A_wq, A_wk, A_wv, A_wo)
    h = _layernorm(x, axis=-1) * (1 + cb) + sb
    x = x + gb * _B_ref(h, B_W_gate, B_W_up, B_W_down)
    return x
```

```python
import re

def regs_of(tok):
    tok = tok.strip()
    if tok.startswith('-'): tok = tok[1:]
    if tok.startswith('abs(') or tok.startswith('neg('): tok = tok[4:-1]
    if tok.startswith('|'): tok = tok.strip('|')
    m = re.fullmatch(r'([vas])\[(\d+):(\d+)\]', tok)
    if m: return [f"{m.group(1)}{i}" for i in range(int(m.group(2)), int(m.group(3)) + 1)]
    m = re.fullmatch(r'([vas])(\d+)', tok)
    if m: return [tok]
    if tok in ('vcc', 'vcc_lo', 'vcc_hi'): return ['vcc']
    if tok in ('exec', 'exec_lo', 'exec_hi'): return ['exec']
    if tok == 'm0': return ['m0']
    return []

TRANS = ('v_exp_', 'v_log_', 'v_rcp_', 'v_rsq_', 'v_sqrt_', 'v_sin_', 'v_cos_')

class Ins:
    def __init__(self, text):
        self.text = text
        t = text.split(';')[0].strip()
        self.label = t.endswith(':')
        self.directive = t.startswith('.')
        self.rd, self.wr = [], []
        self.kind = 'other'
        self.srcC = []; self.srcAB = []
        self.passes = 0
        self.states = 1
        if self.label or self.directive or not t:
            self.op = ''; self.states = 0; return
        sp = t.split(None, 1)
        op = self.op = sp[0]
        rest = sp[1] if len(sp) > 1 else ''
        ops = []; depth = 0; cur = ''
        for ch in rest:
            if ch in '[(': depth += 1
            if ch in '])': depth -= 1
            if ch == ',' and depth == 0: ops.append(cur.strip()); cur = ''
            else: cur += ch
        mods = ''
        if cur.strip():
            last = cur.strip().split(None, 1)
            ops.append(last[0]); mods = last[1] if len(last) > 1 else ''
        self.ops, self.mods = ops, mods
        R = [regs_of(o) for o in ops]
        flat = lambda l: [x for y in l for x in y]
        if op.startswith('v_mfma'):
            self.kind = 'mfma'
            self.wr = R[0]; self.srcAB = R[1] + R[2]; self.srcC = R[3]; self.rd = self.srcAB + self.srcC
            self.passes = 8 if '32x32' in op else 4
        elif op.startswith('buffer_') or op.startswith('global_'):
            self.kind = 'vmem'
            lds = re.search(r'\blds\b', mods) is not None
            self.is_lds = lds
            self.is_store = ('store' in op) or ('atomic' in op)
            if op.startswith('buffer_wbl2') or op.startswith('buffer_inv'):
                pass
            elif lds: self.rd = flat(R) + ['m0']
            elif 'store' in op: self.rd = flat(R); self.data = R[0] if op.startswith('buffer_') else R[1]
            elif 'atomic' in op:
                self.rd = flat(R); self.data = R[0]
                if re.search(r'\bsc0\b', mods): self.wr = R[0]
            else: self.wr = R[0]; self.rd = flat(R[1:])
            if 'd16' in op and 'load' in op: self.rd += R[0]
            self.rd.append('exec')
        elif op.startswith('ds_'):
            self.kind = 'ds'
            if op.startswith('ds_read') or 'permute' in op or 'swizzle' in op or '_rtn' in op:
                self.wr = R[0]; self.rd = flat(R[1:])
            else: self.rd = flat(R)
            self.rd.append('exec')
        elif op.startswith('s_load') or op.startswith('s_memtime') or op.startswith('s_memrealtime'):
            self.kind = 'smem'
            self.wr = R[0]; self.rd = flat(R[1:])
        elif op.startswith('s_'):
            self.kind = 'salu'
            if op == 's_nop': self.states = int(ops[0], 0) + 1; self.kind = 'nop'
            elif op == 's_waitcnt': self.kind = 'wait'
            elif op in ('s_barrier', 's_endpgm', 's_sleep', 's_setprio', 's_branch'): self.kind = 'ctl'
            elif op.startswith('s_cbranch'):
                self.kind = 'ctl'
                if 'vcc' in op: self.rd = ['vcc']
                if 'exec' in op: self.rd = ['exec']
            elif op.startswith('s_cmp') or op.startswith('s_bitcmp'): self.rd = flat(R)
            else:
                self.wr = R[0]; self.rd = flat(R[1:])
                if 'saveexec' in op: self.wr = self.wr + ['exec']; self.rd.append('exec')
                if op.startswith('s_addk') or op.startswith('s_mulk') or op.startswith('s_cmov') or op.startswith('s_bitset'): self.rd += R[0]
        elif op.startswith('v_'):
            self.kind = 'valu'
            self.trans = op.startswith(TRANS)
            self.dpp = '_dpp' in op or 'row_' in mods or 'quad_perm' in mods
            self.sdwa = 'sdwa' in op
            if op.startswith('v_permlane'):
                self.wr = R[0] + R[1]; self.rd = R[0] + R[1]
            elif op.startswith('v_cmpx'):
                self.wr = R[0] + ['exec']; self.rd = flat(R[1:])
            elif '_co_' in op:
                self.wr = R[0] + R[1]; self.rd = flat(R[2:])
            elif op == 'v_nop': pass
            else:
                self.wr = R[0]; self.rd = flat(R[1:])
                if op.startswith(('v_fmac', 'v_dot2c', 'v_writelane', 'v_pk_fmac')) or self.dpp or 'UNUSED_PRESERVE' in mods:
                    self.rd += R[0]
            self.rd.append('exec')
        else:
            raise ValueError("unknown instruction: " + text)

class Asm:
    def __init__(self):
        self.out = []
        self.vm = []
        self.lg = []
        self.nid = 0
        self.nops = []
        self.uid = 0
        self.section = ''
        self.opt = None
        self.known = set()
    def state(self): return (list(self.vm), list(self.lg))
    def set_state(self, st): self.vm, self.lg = list(st[0]), list(st[1])
    def merge_state(self, a, b):
        def mg(x, y):
            n = max(len(x), len(y))
            x = [None] * (n - len(x)) + x; y = [None] * (n - len(y)) + y
            r = []
            for p, q in zip(x, y):
                if p is None: r.append(q)
                elif q is None: r.append(p)
                else: r.append(dict(ids=p['ids'] | q['ids'], wr=set(p['wr']) | set(q['wr']), smem=p.get('smem') or q.get('smem'), opt=p.get('opt') or q.get('opt')))
            return r
        self.vm, self.lg = mg(a[0], b[0]), mg(a[1], b[1])
    def guard(self, name, skip_branch):
        asm = self
        class G:
            def __enter__(g):
                g.l = asm.label('skip_' + name)
                asm(f"{skip_branch} {g.l}")
                g.pre = asm.state(); g.id0 = asm.nid; g.opt = asm.opt
                asm.opt = name
            def __exit__(g, *e):
                def join(pre, cur):
                    live = set()
                    for o in cur: live |= o['ids']
                    keep = [o for o in pre if not (o.get('opt') == name and not (o['ids'] & live))]
                    return keep + [o for o in cur if min(o['ids']) > g.id0]
                asm.vm = join(g.pre[0], asm.vm); asm.lg = join(g.pre[1], asm.lg)
                asm.opt = g.opt
                asm(f"{g.l}:")
        return G()
    def label(self, base):
        self.uid += 1
        return f"L_{base}_{self.uid}"
    def raw(self, text):
        self.out.append(Ins(text))
    def _cnt(self, q, k):
        return sum(1 for o in q[k+1:] if o.get('opt') is None or o['opt'] in self.known or o['opt'] == self.opt)
    def _wait(self, vm=None, lg=None):
        parts = []
        if vm is not None and len(self.vm):
            n = self._cnt(self.vm, vm)
            while n > 63:
                vm += 1; n = self._cnt(self.vm, vm)
            self.vm = self.vm[vm+1:] if n else []
            parts.append(f"vmcnt({n})")
        if lg is not None and len(self.lg):
            if any(o['smem'] for o in self.lg): lg = len(self.lg) - 1
            n = self._cnt(self.lg, lg)
            while n > 15:
                lg += 1; n = self._cnt(self.lg, lg)
            self.lg = self.lg[lg+1:] if n else []
            parts.append(f"lgkmcnt({n})")
        if parts: self.out.append(Ins("s_waitcnt " + " ".join(parts)))
    def wait_vm(self, oid=None):
        if oid is None: self._wait(vm=len(self.vm) - 1); return
        for k, o in enumerate(self.vm):
            if oid in o['ids']: self._wait(vm=k); return
    def wait_lg(self, oid=None):
        if oid is None: self._wait(lg=len(self.lg) - 1); return
        for k, o in enumerate(self.lg):
            if oid in o['ids']: self._wait(lg=k); return
    def wait_all(self):
        self._wait(vm=len(self.vm) - 1, lg=len(self.lg) - 1)
    def force_wait(self, text):
        self.out.append(Ins(text))
        m = re.search(r'vmcnt\((\d+)\)', text)
        if m:
            n = int(m.group(1)); self.vm = self.vm[len(self.vm) - n:] if n and n < len(self.vm) else ([] if n == 0 else self.vm)
        m = re.search(r'lgkmcnt\((\d+)\)', text)
        if m:
            n = int(m.group(1)); self.lg = self.lg[len(self.lg) - n:] if n and n < len(self.lg) else ([] if n == 0 else self.lg)
    def need(self, regs):
        s = set(regs); vm = lg = None
        for k, o in enumerate(self.vm):
            if s & set(o['wr']): vm = k
        for k, o in enumerate(self.lg):
            if s & set(o['wr']): lg = k
        self._wait(vm, lg)
    def hazard(self, c):
        need = 0; why = ''
        dist = 0
        rd, wr = set(c.rd), set(c.wr)
        vrd = {r for r in rd if r[0] in 'va' and r != 'vcc'}
        srd = {r for r in rd if r[0] == 's' or r == 'vcc'}
        for p in reversed(self.out[-48:]):
            if dist >= 20: break
            req = 0
            pw = set(p.wr)
            if p.kind == 'valu':
                hitv = pw & vrd
                if c.kind == 'mfma' and hitv: req = 2
                if c.kind == 'valu':
                    if hitv and p.trans and not c.trans: req = max(req, 1)
                    if hitv and c.op.startswith(('v_readlane', 'v_readfirstlane')): req = max(req, 1)
                    if hitv and c.op.startswith('v_permlane'): req = max(req, 2)
                    if hitv and c.dpp: req = max(req, 2)
                    if (hitv or (pw & wr)) and (p.sdwa and 'dst_sel:DWORD' not in p.mods): req = max(req, 1)
                    if pw & srd: req = max(req, 4 if c.op.startswith(('v_readlane', 'v_writelane')) else 2)
                    if 'exec' in pw: req = max(req, 5)
                if c.kind == 'vmem' and (pw & srd): req = max(req, 5)
                if c.kind in ('salu', 'smem') and (pw & srd): req = max(req, 1)
                if c.kind == 'mfma' and 'exec' in pw: req = max(req, 4)
            elif p.kind == 'mfma':
                big = p.passes == 8
                if c.kind == 'mfma':
                    if pw & set(c.srcC):
                        if not (list(c.srcC) == list(p.wr) and c.passes == p.passes): req = max(req, 10 if big else 6)
                    if pw & set(c.srcAB): req = max(req, 12 if big else 8)
                    if (pw & wr) and not (pw & set(c.srcC)): req = max(req, 10 if big else 6)
                elif c.kind in ('valu', 'vmem', 'ds'):
                    if pw & (rd | wr): req = max(req, 12 if big else 8)
                    if c.kind == 'valu' and (set(p.srcC) & wr): req = max(req, 7 if big else 3)
            elif p.kind == 'vmem':
                if getattr(p, 'data', None) and len(p.data) >= 3 and (set(p.data) & wr): req = max(req, 2)
            elif p.kind == 'salu':
                if 'm0' in pw and 'm0' in rd: req = max(req, 1)
            if req - dist > need: need = req - dist; why = p.text
            dist += p.states
        return need, why
    def __call__(self, text):
        oid = None
        for line in text.split('\n'):
            line = line.strip()
            if not line or line.startswith(';'): continue
            c = Ins(line)
            if c.label or c.directive: self.out.append(c); continue
            if c.kind == 'wait': self.force_wait(line); continue
            self.need(list(c.rd) + list(c.wr))
            n, why = self.hazard(c)
            if n > 0:
                self.nops.append((self.section, n, why, line))
                while n > 0:
                    k = min(n, 16); self.out.append(Ins(f"s_nop {k-1}")); n -= k
            self.out.append(c)
            if c.kind == 'vmem':
                self.nid += 1; oid = self.nid
                self.vm.append(dict(ids={oid}, wr=c.wr, smem=False, opt=self.opt))
                assert len(self.vm) <= 200
            elif c.kind in ('ds', 'smem'):
                self.nid += 1; oid = self.nid
                self.lg.append(dict(ids={oid}, wr=c.wr, smem=c.kind == 'smem', opt=self.opt))
        return oid
    def text(self):
        return "\n".join((i.text if (i.label or i.directive) else "    " + i.text) for i in self.out) + "\n"
```

```python
import re
from k import *

WS = f"s[{R_WS}:{R_WS+3}]"

def isize(i):
    if not i.op: return 0
    lit = 0
    for o in i.ops:
        if re.fullmatch(r'-?(0x[0-9a-fA-F]+|\d+)', o):
            v = int(o, 0)
            if not (-16 <= v <= 64): lit = 4
    if i.kind in ('mfma', 'vmem', 'ds', 'smem'): return 8
    if i.kind in ('nop', 'wait', 'ctl'): return 4
    if i.kind == 'salu': return 4 + lit
    if i.op.endswith('_e64') or i.op.startswith(('v_cvt_pk_', 'v_pk_', 'v_fma_', 'v_max3', 'v_or3', 'v_lshl_add', 'v_bfe', 'v_and_or', 'v_readlane', 'v_writelane', 'v_accvgpr')) or i.dpp or i.sdwa: return 8
    return 4 + lit

class Slots:
    def __init__(self, n):
        self.n = n; self.s = [[] for _ in range(n)]
    def put(self, pos, item, cap=1):
        while pos < self.n and len(self.s[pos]) >= cap: pos += 1
        assert pos < self.n, "out of slots"
        self.s[pos].append(item); return pos
    def seq(self, pos, items, step=1, cap=1):
        for it in items:
            pos = self.put(pos, it, cap) + step
        return pos
    def run(self, a, pos):
        for it in self.s[pos]:
            if callable(it): it()
            else: a(it)

SB, PB, QB, KB, OB = 16, 48, 64, 96, 144
KVS = list(range(4, 16)) + list(range(20, 24))
def wo_reg(jj, ks):
    n = ks * 7 + jj
    if n < 64: return ar(4 * n, 4)
    if n < 76: return vr(208 + 4 * (n - 64), 4)
    n -= 76
    late = [KB + 16 * 1 + 0, KB + 16 * 1 + 4, KB + 16 * 1 + 8, KB + 16 * 1 + 12,
            KB + 32, KB + 36, KB + 40, KB + 44,
            QB, QB + 4, QB + 8, QB + 12, QB + 16, QB + 20, QB + 24, QB + 28,
            KB, KB + 4, PB, PB + 4, KB + 8, KB + 12]
    return vr(late[n], 4)

def attention(k):
    a = k.a
    a.section = 'att_pre'
    a(f"""v_lshlrev_b32 v2, 4, v1
    s_lshl_b32 s70, s{sW}, 2
    s_add_u32 s70, s70, 3
    v_add_u32 v2, s70, v2
    s_and_b32 s71, s{sI}, 0xfc
    v_and_b32 v3, 3, v1
    v_add_u32 v3, s71, v3
    v_cmp_gt_u32 vcc, 16, v1
    s_mul_i32 s72, s{sW}, 7
    s_lshr_b32 s72, s72, 1
    v_cndmask_b32 v2, v3, v2, vcc
    v_lshlrev_b32 v2, 7, v2
    s_mul_i32 s72, s72, 14
    s_lshr_b32 s72, s72, 2
    s_add_u32 s72, s72, 196
    v_add_u32 v3, s72, v1
    v_min_u32 v3, 244, v3
    s_mul_i32 s73, s{sR}, 9363
    s_lshr_b32 s73, s73, 16
    s_mul_i32 s74, s73, 7
    s_sub_u32 s74, s{sR}, s74
    v_subrev_u32 v4, 16, v1
    v_min_u32 v4, 27, v4
    v_mul_u32_u24 v4, 7, v4
    v_add_u32 v4, s74, v4
    v_cndmask_b32 v3, v4, v3, vcc
    v_lshlrev_b32 v3, 7, v3
    v_and_b32 v4, 7, v1
    v_mul_u32_u24 v4, 896, v4
    v_bfe_u32 v5, v1, 3, 2
    v_mul_u32_u24 v5, 56, v5
    v_add_u32 v4, v4, v5
    v_lshrrev_b32 v5, 5, v1
    v_lshl_add_u32 v4, v5, 4, v4
    s_lshl_b32 s70, s{sW}, 12
    s_add_u32 s70, s70, {W_KV}
    v_add_u32 v5, s70, v13
    s_mov_b32 s64, {W_F2}""")
    for q in range(3):
        a(f"""v_add_u32 v10, {64*q}, v1
        v_mul_u32_u24 v11, 10923, v10
        v_lshrrev_b32 v11, 16, v11
        v_mul_u32_u24 v12, 6, v11
        v_sub_u32 v10, v10, v12
        v_mul_u32_u24 v11, 3584, v11
        v_lshl_add_u32 v{6+q}, v10, 4, v11""")
        if q: a(f"v_subrev_u32 v{6+q}, {1024*q}, v{6+q}")
    a(f"""s_bitcmp1_b32 s{sW}, 0
    s_cselect_b32 s{R_A}, s{S_WU}, s{S_WG}
    s_cselect_b32 s{R_A+1}, s{S_WU+1}, s{S_WG+1}
    s_mov_b32 s{R_A+2}, {448*3584}
    s_mov_b32 s{R_A+3}, 0x20000""")
    a(f"s_lshl_b32 s{KVS[0]}, s{sXC}, 15")
    for j in range(1, 16): a(f"s_add_u32 s{KVS[j]}, s{KVS[j-1]}, 0x4000\ns_and_b32 s{KVS[j]}, s{KVS[j]}, 0x3ffff")
    def pl(): a(f"buffer_load_dword v9, v2, {WS}, s64 offen sc1")
    def chk1(): a(f"v_cmp_ne_u32 vcc, s{sT}, v9\ns_and_b32 vcc_lo, vcc_lo, 0xffff0000\ns_and_b64 vcc, vcc, vcc")
    def chk2(): a(f"v_cmp_ne_u32 vcc, s{sT}, v9")
    k.stamp('d2poll')
    k.poll('d2a', pl, chk1)
    a("L_att_q:")
    a(f"""s_mul_i32 s65, s{sI}, {8*896}
    s_add_u32 s65, s65, {W_Q}
    s_lshr_b32 s66, s{sI}, 2
    s_lshl_b32 s66, s66, 12
    s_add_u32 s66, s66, {W_KV}""")
    for s in range(4):
        a(f"""s_add_u32 s70, s{sW}, {1+s}
        s_and_b32 s70, s70, 3
        s_mul_i32 s70, s70, 224
        s_add_u32 s70, s70, s65
        buffer_load_dwordx4 {vr(QB+8*s,4)}, v4, {WS}, s70 offen sc1
        buffer_load_dwordx4 {vr(QB+8*s+4,4)}, v4, {WS}, s70 offen offset:32 sc1""")
    a(f"""buffer_load_dwordx4 {vr(KB+32,4)}, v13, {WS}, s66 offen sc1
    buffer_load_dwordx4 {vr(KB+36,4)}, v13, {WS}, s66 offen offset:1024 sc1""")
    k.poll('d2b', pl, chk2)
    k.stamp('d2done')
    def kvload(j, part, sreg=None):
        r = KB + 16 * (j % 3) + 4 * part
        return f"buffer_load_dwordx4 {vr(r,4)}, v5, {WS}, s{KVS[j] if sreg is None else sreg} offen offset:{1024*part} sc1"
    a("s_mov_b32 exec_lo, 0")
    for s in range(4): a(f"v_mov_b32 v{QB+8*s+6}, 0\nv_mov_b32 v{QB+8*s+7}, 0")
    a("s_mov_b32 exec_lo, -1")
    a(f"s_cmp_lg_u32 s{sFB}, 0\ns_cbranch_scc1 L_truemax")
    for j in range(2):
        for part in range(4): a(kvload(j, part))
    a(f"buffer_load_dword v9, v3, {WS}, s64 offen sc1")
    for s in range(4):
        d = OB + 16 * s
        a(f"""v_mfma_f32_32x32x16_bf16 {vr(d,16)}, {vr(KB+32,4)}, {vr(QB+8*s,4)}, 0
        v_mfma_f32_32x32x16_bf16 {vr(d,16)}, {vr(KB+36,4)}, {vr(QB+8*s+4,4)}, {vr(d,16)}""")
    for part in range(4): a(kvload(2, part))
    a("s_mov_b32 exec_lo, 0")
    for s in range(4):
        d = OB + 16 * s
        a(f"v_max3_f32 v{d}, v{d}, v{d+1}, v{d+2}")
        for r in range(3, 15, 2): a(f"v_max3_f32 v{d}, v{d}, v{d+r}, v{d+r+1}")
        a(f"""v_max_f32 v{d}, v{d}, v{d+15}
        v_sub_f32 v{d}, {f32(-32.0):#x}, v{d}
        v_cvt_pk_bf16_f32 v{QB+8*s+6}, v{d}, 0""")
    a("s_mov_b32 exec_lo, -1")
    a("L_att_main:")
    st_main = a.state()
    a(f"""s_and_b32 s70, s{sW}, 1
    s_mul_i32 s71, s{sW}, 7
    s_add_u32 s72, s71, s70
    s_mul_i32 s72, s72, 14336
    s_add_u32 s72, s72, {W_WO}
    s_mul_i32 s73, s70, 6
    s_sub_u32 s73, s71, s73
    s_add_u32 s73, s73, 6
    s_mul_i32 s73, s73, 14336
    s_add_u32 s73, s73, {W_WO}
    s_lshr_b32 s71, s{sW}, 1
    s_mul_i32 s75, s71, {224*3584}
    s_and_b32 s74, s{sI}, 15
    s_mul_i32 s74, s74, 96
    s_add_u32 s75, s75, s74
    s_mul_i32 s70, s70, {GU0}
    s_mul_i32 s71, s71, {224*96}
    s_add_u32 s70, s70, s71
    s_add_u32 m0, s70, {L_X0}""")
    for s in range(3):
        a(f"""s_add_u32 s70, s{sW}, {1+s}
        s_and_b32 s70, s70, 3
        s_mul_i32 s70, s70, 12288
        s_add_u32 s70, s70, {L_OS+4096*s}
        v_add_u32 v{10+s}, s70, v13""")
    sl = Slots(256)
    P = lambda u, g: 4 * u + g
    for j in range(13):
        sl.seq(P(4*j+3, 0), [kvload(j+3, 0), kvload(j+3, 1)])
        sl.seq(P(4*j+5, 2), [kvload(j+3, 2), kvload(j+3, 3)])
    for j in range(1, 16):
        r = KB + 16 * (j % 3)
        sl.put(P(4*j-2, 3), lambda r=r: a.need([f"v{x}" for x in range(r, r+8)]), cap=2)
    for j in range(0, 16):
        r = KB + 16 * (j % 3) + 8
        sl.put(P(4*j+1, 1), lambda r=r: a.need([f"v{x}" for x in range(r, r+8)]), cap=2)
    def xchk():
        a(f"v_cmp_ne_u32 vcc, s{sT}, v9\ns_cbranch_vccnz L_xwait\nL_xok:")
    sl.put(P(1, 2), xchk)
    def wo_items(pairs):
        items = []; cur = None
        for jj, ks in pairs:
            key = (jj, ks // 4)
            if key != cur:
                cur = key
                items.append(f"s_add_u32 s69, s{72 if jj < 6 else 73}, {(jj if jj < 6 else 0)*14336 + (ks//4)*4096}")
            items.append(f"buffer_load_dwordx4 {wo_reg(jj,ks)}, v13, {WS}, s69 offen offset:{(ks%4)*1024} sc1")
        return items
    early = [(jj, ks) for jj in range(7) for ks in range(11) if ks * 7 + jj < 76]
    dma = []
    for g in range(7):
        for q in range(3): dma.append(f"buffer_load_dwordx4 v{6+q}, s[{R_A}:{R_A+3}], s75 offen offset:{1024*q} lds")
        if g < 6: dma.append(f"s_add_u32 m0, m0, 3072\ns_add_u32 s75, s75, {32*3584}")
    pos = sl.seq(P(2, 0), dma)
    pos = sl.seq(pos, wo_items(early))
    assert pos <= P(56, 0), pos
    latef = lambda n: ((n + 76) % 7, (n + 76) // 7)
    def late_items(ns):
        it = []
        for n in ns:
            jj, ks = latef(n)
            it.append(f"s_add_u32 s69, s{72 if jj < 6 else 73}, {(jj if jj < 6 else 0)*14336 + ks*1024}\nbuffer_load_dwordx4 {wo_reg(jj,ks)}, v13, {WS}, s69 offen sc1")
        return it
    sl.seq(P(57, 0), late_items([0, 1, 2, 3]))
    sl.seq(P(59, 0), late_items([4, 5]))
    sl.seq(P(60, 0), late_items([8, 9]))
    sl.seq(P(61, 0), late_items([6, 7, 10, 11]))
    def owr(s, q): return f"ds_write_b128 v{10+s}, {vr(OB+16*s+4*q,4)} offset:{1024*q}"
    sl.seq(P(62, 1), [owr(0, q) for q in range(4)], step=0, cap=2)
    a.section = 'att'
    def QK(u, h):
        j, s = divmod(u, 4); d = vr(SB + 16 * (u & 1), 16)
        a(f"v_mfma_f32_32x32x16_bf16 {d}, {vr(KB+16*(j%3)+4*h,4)}, {vr(QB+8*s+4*h,4)}, {d if h else '0'}")
    def PV(u, h):
        j, s = divmod(u, 4); d = vr(OB + 16 * s, 16)
        a(f"v_mfma_f32_32x32x16_bf16 {d}, {vr(KB+16*(j%3)+8+4*h,4)}, {vr(PB+8*(u&1)+4*h,4)}, {'0' if (j == 0 and h == 0) else d}")
    QK(0, 0); QK(0, 1)
    a("s_nop 10\n.p2align 3")
    k.stamp('att')
    for u in range(64):
        S, Pc = SB + 16 * (u & 1), PB + 8 * (u & 1)
        for g in range(4):
            n0 = len(a.out)
            if g < 2 and u < 63: QK(u + 1, g)
            if g >= 2 and u > 0: PV(u - 1, g - 2)
            sl.run(a, P(u, g))
            odd = sum(isize(i) for i in a.out[n0:]) % 8
            for e in range(4):
                r = S + 4 * g + e
                a(f"v_exp_f32{'_e64' if (odd and e == 1) else ''} v{r}, v{r}")
            a(f"v_cvt_pk_bf16_f32 v{Pc+2*g}, v{S+4*g}, v{S+4*g+1}\nv_cvt_pk_bf16_f32 v{Pc+2*g+1}, v{S+4*g+2}, v{S+4*g+3}")
    a.section = 'att_post'
    PV(63, 0)
    for q in range(4): a(owr(1, q))
    PV(63, 1)
    for q in range(4): a(owr(2, q))
    for it in late_items([12, 13, 14, 15, 16, 17, 18, 19, 20, 21]): a(it)
    k.stamp('attend')
    k.ool.append(lambda: xwait(k))
    k.ool.append(lambda: truemax(k, kvload))

def xwait(k):
    a = k.a
    a.set_state(([], []))
    a("L_xwait:")
    k.poll('xw', lambda: a(f"buffer_load_dword v9, v3, {WS}, s64 offen sc1"), lambda: a(f"v_cmp_ne_u32 vcc, s{sT}, v9"))
    a("s_branch L_xok")

def truemax(k, kvload):
    a = k.a
    a.set_state(([], []))
    a.section = 'truemax'
    M = PB
    a("L_truemax:")
    for s in range(4): a(f"v_mov_b32 v{M+s}, 0xff800000")
    a(f"s_mov_b32 s70, 0\nL_tm_loop:")
    a(kvload(0, 0, 70)); a(kvload(0, 1, 70))
    for s in range(4):
        d = OB + 16 * s
        a(f"""v_mfma_f32_32x32x16_bf16 {vr(d,16)}, {vr(KB,4)}, {vr(QB+8*s,4)}, 0
        v_mfma_f32_32x32x16_bf16 {vr(d,16)}, {vr(KB+4,4)}, {vr(QB+8*s+4,4)}, {vr(d,16)}""")
    for s in range(4):
        d = OB + 16 * s
        for r in range(0, 16, 2): a(f"v_max3_f32 v{M+s}, v{M+s}, v{d+r}, v{d+r+1}")
    a("s_add_u32 s70, s70, 0x4000\ns_cmp_lt_u32 s70, 0x40000\ns_cbranch_scc1 L_tm_loop")
    a(f"""v_and_b32 v10, 31, v1
    v_lshlrev_b32 v10, 4, v10
    s_lshl_b32 s71, s{sW}, 2""")
    for s in range(4):
        a(f"""v_mov_b32 v{M+4}, v{M+s}
        v_permlane32_swap_b32 v{M+4}, v{M+s}
        v_max_f32 v{M+s}, v{M+s}, v{M+4}
        s_add_u32 s70, s{sW}, {1+s}
        s_and_b32 s70, s70, 3
        s_lshl_b32 s70, s70, 9
        s_add_u32 s70, s70, {L_TST}
        v_add_u32 v{M+8+s}, s70, v10
        v_add_u32 v11, s71, v{M+8+s}
        ds_write_b32 v11, v{M+s}""")
    k.barrier()
    for s in range(4): a(f"ds_read_b128 {vr(OB+4*s,4)}, v{M+8+s}")
    a("s_mov_b32 exec_lo, 0")
    for s in range(4):
        d = OB + 4 * s
        a(f"""v_max3_f32 v{d}, v{d}, v{d+1}, v{d+2}
        v_max_f32 v{d}, v{d}, v{d+3}
        v_and_b32 v{d+1}, s{sMASK}, v{d}
        v_sub_f32 v{d}, v{d}, v{d+1}
        v_and_b32 v{d+2}, s{sMASK}, v{d}
        v_sub_f32 v{d}, v{d}, v{d+2}
        v_cvt_pk_bf16_f32 v{QB+8*s+6}, -v{d+1}, -v{d+2}
        v_cvt_pk_bf16_f32 v{QB+8*s+7}, -v{d}, 0""")
    a("s_mov_b32 exec_lo, -1")
    for j in range(3):
        for part in range(4): a(kvload(j, part))
    a(f"v_mov_b32 v9, s{sT}")
    a.wait_all()
    a("s_branch L_att_main")

def outproj(k):
    a = k.a
    a.section = 'ored'
    O = OB + 48
    a(f"""s_mul_i32 s70, s{sW}, 12288
    s_add_u32 s70, s70, {L_OS}
    v_add_u32 v10, s70, v13
    v_and_b32 v14, 7, v1
    v_mul_u32_u24 v12, 912, v14
    v_bfe_u32 v11, v1, 3, 2
    v_mul_u32_u24 v11, 56, v11
    v_add_u32 v11, v11, v12
    v_lshrrev_b32 v15, 5, v1
    v_lshl_add_u32 v11, v15, 4, v11
    s_mul_i32 s70, s{sW}, 224
    s_add_u32 s70, s70, {L_OT}
    v_add_u32 v11, s70, v11
    v_lshrrev_b32 v15, 4, v1
    v_lshl_add_u32 v12, v15, 4, v12
    v_add_u32 v12, {L_OT}, v12
    v_mul_u32_u24 v14, 896, v14
    v_lshl_add_u32 v14, v15, 4, v14
    s_and_b32 s70, s{sW}, 1
    s_mul_i32 s71, s{sW}, 7
    s_add_u32 s72, s71, s70
    s_lshr_b32 s72, s72, 1
    s_lshr_b32 s73, s{sW}, 1
    s_mul_i32 s73, s73, 7
    s_add_u32 s73, s73, 3
    s_lshl_b32 s74, s72, 6
    s_lshl_b32 s75, s73, 6
    s_lshl_b32 s70, s70, 3
    s_add_u32 s75, s75, s70
    s_mul_i32 s76, s{sI}, {8*896}
    s_add_u32 s77, s76, s75
    s_add_u32 s76, s76, s74""")
    XV = 32
    k.barrier()
    for s in range(3):
        for q in range(4): a(f"ds_read_b128 {vr(OB+16*s+4*q,4)}, v10 offset:{4096*s+1024*q}")
    for s in range(3):
        for q in range(8): a(f"v_pk_add_f32 {vr(O+2*q,2)}, {vr(O+2*q,2)}, {vr(OB+16*s+2*q,2)}")
    a(f"""v_mov_b32 v16, v{O+12}
    v_mov_b32 v17, v{O+12}
    v_mov_b32 v18, 0
    v_mov_b32 v19, 0
    v_permlane32_swap_b32 v16, v17
    s_mov_b32 s78, {f32(2.0**-60):#x}
    s_mov_b32 s79, {f32(2.0**60):#x}
    v_rcp_f32 v16, v17
    v_cmp_nle_f32 s[80:81], s78, v17
    v_cmp_nge_f32 vcc, s79, v17""")
    for q in range(8): a(f"v_pk_mul_f32 {vr(O+2*q,2)}, {vr(O+2*q,2)}, v[16:17] op_sel_hi:[1,0]")
    a("s_or_b64 s[80:81], s[80:81], vcc")
    for q in range(8): a(f"v_cvt_pk_bf16_f32 v{20+q}, v{O+2*q}, v{O+2*q+1}")
    a(f"""ds_write_b64 v11, v[20:21]
    ds_write_b64 v11, v[22:23] offset:8
    ds_write_b64 v11, v[24:25] offset:32
    s_mov_b32 exec_hi, 0
    ds_write_b64 v11, v[26:27] offset:40
    s_mov_b32 exec_hi, -1""")
    for q in range(8): a(f"v_pk_fma_f32 v[18:19], {vr(O+2*q,2)}, 0, v[18:19] op_sel_hi:[1,0,1]")
    a(f"""v_cmp_u_f32 vcc, v18, v19
    s_lshl_b32 s78, s{sW}, 2
    s_add_u32 s78, s78, {L_MISC}
    v_mov_b32 v18, s78
    s_or_b64 s[80:81], s[80:81], vcc
    s_cselect_b32 s79, 1, 0
    v_mov_b32 v19, s79
    ds_write_b32 v18, v19
    v_mov_b32 v18, {L_MISC}""")
    k.barrier()
    a.section = 'oproj'
    BF = OB
    ACC = 16
    a("ds_read_b128 v[44:47], v18")
    for ks in range(14): a(f"ds_read_b128 {vr(BF+4*ks,4)}, v12 offset:{64*ks}")
    XR = 56
    xr = [56, 60, 200]
    for p in range(3): a(f"buffer_load_dwordx4 {vr(xr[p],4)}, v14, s[{R_X}:{R_X+3}], s76 offen offset:{64*p}")
    a(f"buffer_load_dwordx2 v[204:205], v14, s[{R_X}:{R_X+3}], s77 offen")
    a(f"""v_lshlrev_b32 v10, 5, v15
    s_lshl_b32 s78, s74, 1
    s_lshl_b32 s79, s75, 1
    s_add_u32 s78, s78, {L_MODN}
    s_add_u32 s79, s79, {L_MODN}
    v_add_u32 v11, s79, v10
    v_add_u32 v10, s78, v10""")
    GA = BF
    def modread(dst, off):
        return [f"ds_read_b128 {vr(dst+4*q,4)}, v10 offset:{off+128*(q>>1)+16*(q&1)}" for q in range(6)] + [f"ds_read_b128 {vr(dst+24,4)}, v11 offset:{off}"]
    ga = modread(GA, 0)
    for ks in range(14):
        for jj in range(7):
            d = vr(ACC + 4 * jj, 4)
            a(f"v_mfma_f32_16x16x32_bf16 {d}, {wo_reg(jj,ks)}, {vr(BF+4*ks,4)}, {'0' if ks == 0 else d}")
            if ks == 8: a(ga[jj])
    a(f"""v_or3_b32 v44, v44, v45, v46
    v_or_b32 v44, v44, v47
    s_nop 0
    v_readfirstlane_b32 s78, v44
    s_andn2_b32 s78, s78, s{sFB}
    s_cbranch_scc1 L_fallback""")
    def fb():
        a.set_state(([], []))
        a(f"L_fallback:\ns_mov_b32 s{sFB}, 1\ns_waitcnt vmcnt(0) lgkmcnt(0)\ns_nop 7\ns_branch L_att_q")
    k.ool.append(fb)
    a.section = 'ln2'
    XF, CB, SBv = 208, 64, 96
    src = [56, 57, 58, 59, 60, 61, 62, 63, 200, 201, 202, 203, 204, 205]
    for q, r in enumerate(src): a(f"v_lshlrev_b32 v{XF+2*q}, 16, v{r}\nv_and_b32 v{XF+2*q+1}, s{sMASK}, v{r}")
    for it in modread(CB, 3584) + modread(SBv, 1792): a(it)
    for q in range(14): a(f"v_pk_fma_f32 {vr(ACC+2*q,2)}, {vr(ACC+2*q,2)}, {vr(GA+2*q,2)}, {vr(XF+2*q,2)}")
    def xg(r):
        a(f"""v_mov_b32 v{r+1}, v{r}
        s_nop 0
        v_permlane32_swap_b32 v{r}, v{r+1}
        v_add_f32 v{r}, v{r}, v{r+1}
        v_mov_b32 v{r+1}, v{r}
        s_nop 0
        v_permlane16_swap_b32 v{r}, v{r+1}
        v_add_f32 v{r}, v{r}, v{r+1}""")
    a(f"v_pk_add_f32 v[44:45], {vr(ACC,2)}, {vr(ACC+2,2)}\nv_pk_add_f32 v[46:47], {vr(ACC+4,2)}, {vr(ACC+6,2)}")
    for q in range(4, 14): a(f"v_pk_add_f32 {vr(44+2*(q&1),2)}, {vr(44+2*(q&1),2)}, {vr(ACC+2*q,2)}")
    a("v_pk_add_f32 v[44:45], v[44:45], v[46:47]\nv_add_f32 v44, v44, v45")
    X1 = 128
    xg(44)
    a(f"v_mul_f32 v48, {f32(1/112):#x}, v44")
    for q in range(14): a(f"v_pk_add_f32 {vr(XF+2*q,2)}, {vr(ACC+2*q,2)}, v[48:49] op_sel_hi:[1,0] neg_lo:[0,1] neg_hi:[0,1]")
    a(f"v_pk_mul_f32 v[44:45], {vr(XF,2)}, {vr(XF,2)}\nv_pk_mul_f32 v[46:47], {vr(XF+2,2)}, {vr(XF+2,2)}")
    for q in range(2, 14): a(f"v_pk_fma_f32 {vr(44+2*(q&1),2)}, {vr(XF+2*q,2)}, {vr(XF+2*q,2)}, {vr(44+2*(q&1),2)}")
    a("v_pk_add_f32 v[44:45], v[44:45], v[46:47]\nv_add_f32 v49, v44, v45")
    xg(49)
    a(f"""v_and_b32 v12, 7, v1
    v_lshlrev_b32 v11, 5, v12
    v_add_u32 v11, {L_MISC+64}, v11
    s_lshl_b32 s78, s{sW}, 3
    v_add_u32 v10, s78, v11
    ds_write_b64 v10, v[48:49]""")
    for q in range(14): a(f"v_cvt_pk_bf16_f32 v{X1+q}, v{ACC+2*q}, v{ACC+2*q+1}")
    k.barrier()
    a(f"""ds_read_b128 v[52:55], v11
    ds_read_b128 v[56:59], v11 offset:16
    v_lshlrev_b32 v12, 4, v12
    v_lshl_add_u32 v12, v15, 9, v12
    v_mov_b32 v10, {OOB}
    v_and_b32 v11, 8, v1
    v_cmp_eq_u32 vcc, 0, v11
    s_add_u32 s76, s76, {W_X1}
    s_add_u32 s77, s77, {W_X1}
    v_cndmask_b32 v12, v10, v12, vcc
    v_cndmask_b32 v14, v10, v14, vcc
    s_lshr_b32 s78, s{sI}, 2
    s_mul_i32 s78, s78, 28672
    s_and_b32 s79, s{sI}, 3
    s_lshl_b32 s79, s79, 7
    s_add_u32 s78, s78, s79
    s_add_u32 s78, s78, {W_H2}
    s_lshl_b32 s72, s72, 11
    s_lshl_b32 s73, s73, 11
    s_add_u32 s72, s72, s78
    s_add_u32 s73, s73, s78
    s_add_u32 s73, s73, s70
    s_add_u32 s71, s72, 4096""")
    for p in range(3): a(f"buffer_store_dwordx4 {vr(X1+4*p,4)}, v14, {WS}, s76 offen offset:{64*p} sc1")
    a(f"buffer_store_dwordx2 {vr(X1+12,2)}, v14, {WS}, s77 offen sc1")
    a(f"""v_pk_add_f32 v[44:45], v[52:53], v[54:55]
    v_pk_add_f32 v[46:47], v[56:57], v[58:59]
    v_pk_add_f32 v[44:45], v[44:45], v[46:47]
    v_mul_f32 v44, 0.25, v44
    v_sub_f32 v52, v52, v44
    v_sub_f32 v54, v54, v44
    v_sub_f32 v56, v56, v44
    v_sub_f32 v58, v58, v44
    v_mul_f32 v46, v52, v52
    v_fmac_f32 v46, v54, v54
    v_fmac_f32 v46, v56, v56
    v_fmac_f32 v46, v58, v58
    v_fmac_f32 v45, {f32(112.0):#x}, v46
    v_mov_b32 v46, {f32(1e-5):#x}
    v_fmac_f32 v46, {f32(1/448):#x}, v45
    v_rsq_f32 v46, v46
    v_sub_f32 v48, v48, v44
    v_mul_f32 v47, v48, v46""")
    for q in range(14): a(f"v_pk_fma_f32 {vr(XF+2*q,2)}, {vr(XF+2*q,2)}, v[46:47], v[46:47] op_sel:[0,0,1] op_sel_hi:[1,0,1]")
    H2 = 16
    for p in range(4):
        for q in range(4 * p, min(4 * p + 4, 14)): a(f"v_pk_fma_f32 {vr(XF+2*q,2)}, {vr(XF+2*q,2)}, {vr(CB+2*q,2)}, {vr(SBv+2*q,2)}")
        for q in range(4 * p, min(4 * p + 4, 14)): a(f"v_cvt_pk_bf16_f32 v{H2+q}, v{XF+2*q}, v{XF+2*q+1}")
        if p < 2: a(f"buffer_store_dwordx4 {vr(H2+4*p,4)}, v12, {WS}, s72 offen offset:{2048*p} sc1")
        elif p == 2: a(f"buffer_store_dwordx4 {vr(H2+8,4)}, v12, {WS}, s71 offen sc1")
        else: last = a(f"buffer_store_dwordx2 {vr(H2+12,2)}, v12, {WS}, s73 offen sc1")
    k.stamp('h2st')
    return last

def rest(k):
    import k3
    k.ool = []
    attention(k)
    last = outproj(k)
    if k.stop == 'att':
        k.a.wait_all()
    else:
        k3.ffn(k, last)
```

```python
from k import *
from k2 import WS, Slots, isize

GU2 = GU0 + 32
HB = 144
AR, NAR = 96, 8
HT = 128
RA = f"s[{R_A}:{R_A+3}]"

def f16_of(kk):
    if kk < 12: return 0, kk
    if kk < 20: return 1, kk - 12
    return 2, kk - 20

def ffn(k, last):
    a = k.a
    a.section = 'd3'
    a(f"""s_lshr_b32 s64, s{sI}, 4
    s_lshl_b32 s64, s64, 2
    s_add_u32 s64, s64, s{sW}
    s_lshl_b32 s70, s64, 2
    v_and_b32 v2, 3, v1
    v_lshrrev_b32 v3, 2, v1
    v_mul_u32_u24 v3, 3584, v3
    v_lshl_add_u32 v3, v2, 4, v3
    v_add_u32 v2, s70, v2
    v_lshlrev_b32 v2, 7, v2
    s_and_b32 s65, s{sI}, 15
    s_and_b32 s70, s{sW}, 1
    s_lshr_b32 s71, s{sW}, 1
    s_mul_i32 s66, s71, {224*3584}
    s_lshl_b32 s72, s65, 6
    s_add_u32 s66, s66, s72
    s_add_u32 s67, s66, {2*1280}
    s_add_u32 s66, s66, {2*768}
    s_mul_i32 s71, s71, {224*64}
    s_mul_i32 s72, s70, {GU1}
    s_mul_i32 s68, s70, {GU2}
    s_add_u32 s72, s72, s71
    s_add_u32 s68, s68, s71
    s_add_u32 s68, s68, {L_X0}
    s_add_u32 m0, s72, {L_Y}
    s_lshl_b32 s71, s{sI}, 7
    s_add_u32 s71, s71, {W_F3}""")
    k.tr_lane(4, 96, 8, GU0, 10)
    k.tr_lane(5, 64, 8, GU1, 10)
    k.tr_lane(6, 64, 8, GU2, 10)
    a(f"""v_add_u32 v5, {L_Y}, v5
    s_mul_i32 s73, s{sR}, 9363
    s_lshr_b32 s73, s73, 16
    s_mul_i32 s74, s73, 7
    s_sub_u32 s74, s{sR}, s74
    s_lshl_b32 s72, s{sXC}, 2
    s_add_u32 s73, s73, s72
    s_lshl_b32 s72, s70, 10
    s_xor_b32 s75, s72, 1024
    s_cmp_lt_u32 s{sR}, 28
    s_cselect_b32 s72, s72, {OOB}
    s_cselect_b32 s75, s75, {OOB}
    v_add_u32 v7, s72, v13
    v_add_u32 v8, s75, v13
    s_mul_i32 s75, s74, {112*2048}
    s_add_u32 s75, s75, {W_WD}
    s_mul_i32 s76, s{sW}, {12*2048}
    s_add_u32 s76, s76, s75
    s_lshl_b32 s77, s{sW}, 14
    s_add_u32 s77, s77, s75
    s_add_u32 s78, s77, {80*2048}
    s_add_u32 s77, s77, {48*2048}""")
    a.wait_vm(last)
    a("s_barrier")
    k.flag('s71')
    k.stamp('f3')
    dma1 = []
    for p in range(14):
        dma1.append(a(f"buffer_load_dwordx4 v3, {RA}, s66 offen lds"))
        if p < 13: a(f"s_add_u32 m0, m0, 1024\ns_add_u32 s66, s66, {16*3584}")
    a(f"""s_mov_b32 s70, {W_F3}
    s_mul_i32 s69, s64, 28672
    s_add_u32 s69, s69, {W_H2}""")
    k.poll('d3', lambda: a(f"buffer_load_dword v9, v2, {WS}, s70 offen sc1"), lambda: a(f"v_cmp_ne_u32 vcc, s{sT}, v9"))
    k.stamp('d3done')
    for ks in range(28):
        a(f"buffer_load_dwordx4 {vr(HB+4*ks,4)}, v13, {WS}, s69 offen offset:{1024*(ks&3)} sc1")
        if ks & 3 == 3 and ks < 27: a("s_add_u32 s69, s69, 4096")
    a(f"""s_mul_i32 s79, s64, {112*1024}
    s_add_u32 s79, s79, {W_H}
    s_lshl_b32 s70, s65, 11
    s_add_u32 s80, s79, s70
    s_add_u32 s81, s80, {80*1024}
    s_add_u32 s80, s80, {48*1024}
    s_mul_i32 s70, s65, 3072
    s_add_u32 s79, s79, s70
    s_lshl_b32 s4, s{sI}, 2
    s_add_u32 s4, s4, s{sW}
    s_lshl_b32 s4, s4, 7
    s_add_u32 s4, s4, {W_F4}
    s_add_u32 s5, s4, {1024*128}
    s_add_u32 s6, s4, {2048*128}
    s_mov_b32 m0, s68
    v_mov_b32 v10, s{sT}
    v_mov_b32 v11, {OOB}
    v_cmp_eq_u32 vcc, 0, v1
    s_nop 1
    v_cndmask_b32 v11, v11, 0, vcc""")
    a.section = 'g1'
    steps = [(0, ks, t) for ks in range(28) for t in range(3)] + [(p, ks, t) for p in (1, 2) for ks in range(28) for t in range(2)]
    ACC = {0: 16, 1: 64, 2: 16}
    N = len(steps)
    def aread(n):
        p, ks, t = steps[n]
        r = AR + 4 * (n % NAR)
        pitch = 96 if p == 0 else 64
        for u in range(2):
            a(f"ds_read_b64_tr_b16 {vr(r+2*u,2)}, v{4+p} offset:{(16*ks+4*u)*pitch+32*t}")
    sl = Slots(N)
    wd = []
    for kk in range(28):
        st, c = f16_of(kk)
        if c % 2 == 0: wd.append(f"s_add_u32 s69, s{76+st}, {c*2048}")
        for sub in range(2): wd.append(f"buffer_load_dwordx4 {ar(8*kk+4*sub,4)}, v{7+sub}, {WS}, s69 offen offset:{2048*(c%2)} sc1")
    BA, BC, BD = 57, 134, 150
    ids = {}
    def bar_a(): a.wait_vm(dma1[-1]); a("s_barrier")
    sl.put(BA, bar_a)
    d2 = []
    for p in range(14):
        def f(p=p):
            ids['d2'] = a(f"buffer_load_dwordx4 v3, {RA}, s67 offen lds")
            if p < 13: a(f"s_add_u32 m0, m0, 1024\ns_add_u32 s67, s67, {16*3584}")
        d2.append(f)
    sl.seq(BA + 1, d2)
    def bar_c(): a.wait_vm(ids['d2']); a("s_barrier")
    sl.put(BC, bar_c)
    sl.put(BD, "s_barrier")
    def epi(p, t):
        d = ACC[p] + 16 * t; h = HT + 4 * t
        it = []
        for q in range(4):
            it.append(f"""v_max_f32 v{d+2*q}, 0, v{d+2*q}
            v_max_f32 v{d+2*q+1}, 0, v{d+2*q+1}
            v_mul_f32 v{d+2*q}, v{d+2*q}, v{d+8+2*q}
            v_mul_f32 v{d+2*q+1}, v{d+2*q+1}, v{d+9+2*q}
            v_cvt_pk_bf16_f32 v{h+q}, v{d+2*q}, v{d+2*q+1}""")
        def st(): ids[('h', p)] = a(f"buffer_store_dwordx4 {vr(h,4)}, v13, {WS}, s{79+p} offen offset:{1024*t} sc1")
        it.append(st)
        return it
    def hflag(p):
        a.wait_vm(ids[('h', p)])
        a(f"buffer_store_dword v10, v11, {WS}, s{4+p} offen sc1")
    pos = sl.seq(84 + 2, epi(0, 0) + epi(0, 1) + epi(0, 2))
    sl.put(pos + 30, lambda: hflag(0))
    pos = sl.seq(140 + 2, epi(1, 0) + epi(1, 1))
    sl.put(pos + 30, lambda: hflag(1))
    pos = sl.seq(20, wd)
    assert pos < 140, pos
    PF = 5
    for n in range(PF): aread(n)
    k.stamp('g1')
    for n, (p, ks, t) in enumerate(steps):
        d = vr(ACC[p] + 16 * t, 16)
        a(f"v_mfma_f32_32x32x16_bf16 {d}, {vr(AR+4*(n%NAR),4)}, {vr(HB+4*ks,4)}, {'0' if ks == 0 else d}")
        sl.run(a, n)
        if n + PF < N: aread(n + PF)
    for it in epi(2, 0) + epi(2, 1):
        if callable(it): it()
        else: a(it)
    k.stamp('g1end')
    a.section = 'g2'
    a(f"s_cmp_lt_u32 s{sR}, 28\ns_cbranch_scc1 L_g2")
    st = a.state()
    hflag(2)
    a("s_branch L_g2_done\nL_g2:")
    a.set_state(st)
    a(f"""s_lshr_b32 s70, s73, 1
    s_lshl_b32 s70, s70, 2
    s_add_u32 s70, s70, s{sW}
    s_lshl_b32 s70, s70, 4
    s_and_b32 s71, s73, 1
    s_lshl_b32 s71, s71, 1
    s_add_u32 s70, s70, s71
    v_bfe_u32 v2, v1, 1, 2
    v_and_b32 v3, 1, v1
    v_lshl_add_u32 v2, v2, 2, v3
    v_add_u32 v2, s70, v2
    v_bfe_u32 v3, v1, 3, 1
    v_lshl_add_u32 v3, v3, 10, v2
    v_lshlrev_b32 v2, 7, v2
    v_lshlrev_b32 v3, 7, v3
    s_mov_b32 s7, {W_F4}
    s_mov_b32 s8, {W_F4+2048*128}
    s_lshr_b32 s70, s{sW}, 1
    s_lshl_b32 s71, s73, 1
    s_add_u32 s64, s71, s70
    s_xor_b32 s65, s64, 1
    s_mul_i32 s66, s64, {32*896}
    s_mul_i32 s64, s64, {112*1024}
    s_mul_i32 s65, s65, {112*1024}
    v_add_u32 v4, s64, v13
    v_add_u32 v5, s65, v13
    s_mul_i32 s76, s{sW}, {12*1024}
    s_add_u32 s76, s76, {W_H}
    s_lshl_b32 s77, s{sW}, 13
    s_add_u32 s78, s77, {W_H+80*1024}
    s_add_u32 s77, s77, {W_H+48*1024}""")
    k.poll('d4a', lambda: a(f"buffer_load_dword v9, v3, {WS}, s7 offen sc1"), lambda: a(f"v_cmp_ne_u32 vcc, s{sT}, v9"), between=lambda: hflag(2))
    k.stamp('d4a')
    G2 = 16
    HR = 80
    def hreg(kk, mi): return vr(HR + 8 * (kk % 20) + 4 * mi, 4)
    def hload(kk):
        stg, c = f16_of(kk)
        if c % 4 == 0: a(f"s_add_u32 s69, s{76+stg}, {c*1024}")
        for mi in range(2): a(f"buffer_load_dwordx4 {hreg(kk,mi)}, v{4+mi}, {WS}, s69 offen offset:{1024*(c%4)} sc1")
    for kk in range(20): hload(kk)
    a(f"""v_and_b32 v6, 31, v1
    v_mul_u32_u24 v6, 896, v6
    v_lshrrev_b32 v7, 5, v1
    v_lshl_add_u32 v6, v7, 4, v6
    s_lshl_b32 s70, s74, 7
    s_and_b32 s71, s{sW}, 1
    s_lshl_b32 s71, s71, 6
    s_add_u32 s70, s70, s71
    s_add_u32 s66, s66, s70
    s_add_u32 s67, s66, {W_X1}
    s_lshl_b32 s70, s70, 1
    s_add_u32 s70, s70, {L_MODN+5376}
    v_lshlrev_b32 v7, 5, v7
    v_add_u32 v7, s70, v7
    buffer_load_dwordx4 v[240:243], v6, {WS}, s67 offen sc1
    buffer_load_dwordx4 v[244:247], v6, {WS}, s67 offen offset:32 sc1""")
    k.srd(R_B, S_OUT, 2048 * 896)
    for s in range(1, 4):
        a(f"""s_xor_b32 s70, s{sW}, {s}
        s_mul_i32 s70, s70, 12288
        s_add_u32 s70, s70, {L_Y+4096*(s-1)}
        v_add_u32 v{247+s}, s70, v13""")
    a(f"""s_mul_i32 s70, s{sW}, 12288
    s_add_u32 s70, s70, {L_Y}
    v_add_u32 v8, s70, v13""")
    def mm(kk, order=(0, 1, 2, 3)):
        for s in order:
            mi, sub = s >> 1, s & 1
            d = vr(G2 + 16 * s, 16)
            a(f"v_mfma_f32_32x32x16_bf16 {d}, {ar(8*kk+4*sub,4)}, {hreg(kk,mi)}, {'0' if kk == 0 else d}")
    for kk in range(12): mm(kk)
    k.poll('d4b', lambda: a(f"buffer_load_dword v9, v2, {WS}, s8 offen sc1"), lambda: a(f"v_cmp_ne_u32 vcc, s{sT}, v9"))
    k.stamp('d4b')
    for kk in range(20, 28): hload(kk)
    for kk in range(12, 27): mm(kk)
    mm(27, (1, 2, 3, 0))
    GB = 144
    for q in range(4): a(f"ds_read_b128 {vr(GB+4*q,4)}, v7 offset:{64*(q>>1)+16*(q&1)}")
    XF = 160
    for q in range(8): a(f"v_lshlrev_b32 v{XF+2*q}, 16, v{240+q}\nv_and_b32 v{XF+2*q+1}, s{sMASK}, v{240+q}")
    for s in range(1, 4):
        for q in range(4): a(f"ds_write_b128 v{247+s}, {vr(G2+16*s+4*q,4)} offset:{1024*q}")
    k.barrier()
    for s in range(1, 4):
        for q in range(4): a(f"ds_read_b128 {vr(G2+16*s+4*q,4)}, v8 offset:{4096*(s-1)+1024*q}")
    for s in range(1, 4):
        for q in range(8): a(f"v_pk_add_f32 {vr(G2+2*q,2)}, {vr(G2+2*q,2)}, {vr(G2+16*s+2*q,2)}")
    for h in range(2):
        for q in range(4 * h, 4 * h + 4): a(f"v_pk_fma_f32 {vr(XF+2*q,2)}, {vr(G2+2*q,2)}, {vr(GB+2*q,2)}, {vr(XF+2*q,2)}")
        for q in range(4 * h, 4 * h + 4): a(f"v_cvt_pk_bf16_f32 v{240+q}, v{XF+2*q}, v{XF+2*q+1}")
        a(f"buffer_store_dwordx4 {vr(240+4*h,4)}, v6, s[{R_B}:{R_B+3}], s66 offen offset:{32*h}")
    a("L_g2_done:")
```

```python
import sys, struct, math
sys.path.insert(0, "gen")
from fw import Asm

NAME = "adaLN_cond__grouped_kv_mqa__glu_gated_reglu__prompt"
def f32(x): return struct.unpack('<I', struct.pack('<f', x))[0]
def vr(b, n=1, k='v'): return f"{k}{b}" if n == 1 else f"{k}[{b}:{b+n-1}]"
def ar(b, n=1): return vr(b, n, 'a')
def sr(b, n=1): return vr(b, n, 's')

W_EPOCH = 0
W_F2 = 0x1000
W_F3 = 0x9000
W_F4 = 0x11000
W_MODC = 0x80000
W_MODN = 0x88000
W_KV = 0x90000
W_Q = 0x100000
W_X1 = 0x300000
W_H2 = 0x500000
W_WO = 0x700000
W_WD = 0x800000
W_H = 0xA00000
W_STAMP = 0x1200000
W_SIZE = 0x2000000
OOB = 0x7000_0000
L_WST = 0
L_HT = 114688
L_P0 = L_HT
L_SILU = L_HT + 12288
L_MODL = 143872
L_MODN = 147456
L_TST = 154624
L_MISC = 162816
L_X0 = 0
GU0 = 43008 + 128
L_Y = 86272
GU1 = 28672 + 32
L_OS = L_Y
L_OT = L_Y + 49152
LDS_SIZE = 163840
S_X, S_WQ, S_WK, S_WV, S_WO, S_WG, S_WU, S_WD, S_C, S_WM, S_OUT, S_DBG, S_WS = 4, 6, 8, 10, 12, 16, 18, 20, 22, 24, 26, 28, 30
R_WS, R_X, R_A, R_B, R_C = 32, 36, 40, 44, 48
sI, sW, sT, sXC, sR = 52, 53, 54, 55, 56
sT0 = 57
sMASK = 61
sCNT = 62
sFB = 63
s0 = 64
S_STAMP = 82
POLL_LIMIT = 20000

class K:
    def __init__(self, stamps=False, stop=None):
        self.a = Asm()
        self.stamps = stamps
        self.nstamp = 0
        self.stop = stop
        self.stamp_names = []

    def stamp(self, name):
        if not self.stamps or name not in self.stamps: return
        assert self.nstamp < 10
        r = S_STAMP + 2 * self.nstamp
        self.a(f"s_memrealtime {sr(r,2)}")
        self.nstamp += 1
        self.stamp_names.append(name)

    def srd(self, r, ptr, size):
        self.a(f"""s_mov_b32 s{r}, s{ptr}
        s_mov_b32 s{r+1}, s{ptr+1}
        s_mov_b32 s{r+2}, {size}
        s_mov_b32 s{r+3}, 0x20000""")

    def barrier(self):
        self.a.wait_lg()
        self.a("s_barrier")

    def prologue(self):
        a = self.a
        a.section = 'prologue'
        a(f"""s_cmp_ge_u32 s2, 256
        s_cbranch_scc1 L_end
        s_load_dwordx4 s[28:31], s[0:1], 96
        s_load_dwordx8 s[20:27], s[0:1], 64
        s_load_dwordx16 s[4:19], s[0:1], 0""")
        self.stamp('start')
        a(f"""v_lshrrev_b32 v2, 6, v0
        v_and_b32 v1, 63, v0
        s_and_b32 s{sXC}, s2, 7
        v_readfirstlane_b32 s{sW}, v2
        s_lshr_b32 s{sR}, s2, 3
        s_lshl_b32 s{sI}, s{sXC}, 5
        s_add_u32 s{sI}, s{sI}, s{sR}
        s_mov_b32 s{sMASK}, 0xffff0000
        s_mov_b32 s{sFB}, 0""")

    def p0_setup(self):
        a = self.a
        a(f"""v_lshrrev_b32 v3, 1, v1
        v_and_b32 v4, 1, v1
        v_mul_u32_u24 v3, 5376, v3
        v_lshl_add_u32 v3, v4, 4, v3
        v_min_u32 v4, 55, v1
        s_and_b32 s68, s{sI}, 3
        s_lshr_b32 s69, s{sI}, 2
        s_mul_i32 s70, s68, 224
        v_lshl_add_u32 v4, v4, 2, s70
        s_mul_i32 s64, s68, {112*5376}
        s_lshl_b32 s70, s69, 5
        s_lshl_b32 s71, s69, 6
        s_lshl_b32 s72, s{sW}, 5
        s_add_u32 s71, s71, s72
        s_add_u32 s71, s71, {1792-32}
        s_lshl_b32 s66, s{sI}, 7
        s_lshl_b32 s73, s{sW}, 6
        s_add_u32 s73, s73, {W_MODN-64}
        s_cmp_eq_u32 s{sW}, 0
        s_cselect_b32 s70, s70, s71
        s_cselect_b32 s73, {W_MODC}, s73
        s_cselect_b32 s67, 1, 2
        s_add_u32 s64, s64, s70
        s_add_u32 s66, s66, s73
        s_lshl_b32 s65, s{sW}, 12
        s_add_u32 s65, s65, {L_P0}
        s_cmp_eq_u32 s{sW}, 3
        s_cselect_b32 s67, 0, s67
        s_cmp_ge_u32 s{sI}, 224
        s_cselect_b32 s67, 0, s67""")

    def p0_loads(self, cv):
        a = self.a
        a(f"global_load_dword v{cv}, v4, s[{S_C}:{S_C+1}]")
        a(f"s_mov_b32 m0, s65\ns_mov_b32 s70, s64")
        for p in range(4):
            if p == 3: a("s_mov_b32 exec_hi, 0")
            self.p0_last = a(f"buffer_load_dwordx4 v3, s[{R_A}:{R_A+3}], s70 offen lds")
            if p < 3: a(f"s_add_u32 m0, m0, 1024\ns_add_u32 s70, s70, {32*5376}")
        a("s_mov_b32 exec_hi, -1")
        return self.p0_last

    def p0_compute(self, last, cv):
        a = self.a
        A0, B0, D = 128, 142, 156
        a(f"""v_lshlrev_b32 v6, 16, v{cv}
        v_and_b32 v7, s{sMASK}, v{cv}
        v_mul_f32 v8, {f32(-math.log2(math.e)):#x}, v6
        v_mul_f32 v9, {f32(-math.log2(math.e)):#x}, v7
        v_exp_f32 v8, v8
        v_exp_f32 v9, v9
        s_lshl_b32 s70, s{sW}, 8
        s_add_u32 s70, s70, {L_SILU}
        v_add_f32 v8, 1.0, v8
        v_add_f32 v9, 1.0, v9
        v_rcp_f32 v8, v8
        v_rcp_f32 v9, v9
        v_lshl_add_u32 v5, v1, 2, s70
        v_lshrrev_b32 v160, 4, v1
        v_mul_f32 v6, v6, v8
        v_mul_f32 v7, v7, v9
        v_lshl_add_u32 v160, v160, 3, s70
        v_cvt_pk_bf16_f32 v6, v6, v7
        v_lshl_add_u32 v161, v1, 3, s65
        ds_write_b32 v5, v6""")
        for s in range(7): a(f"ds_read_b64 {vr(A0+2*s,2)}, v160 offset:{32*s}")
        a(f"""v_and_b32 v6, 3, v1
        v_lshlrev_b32 v6, 3, v6
        v_lshrrev_b32 v6, v6, s{sT}
        v_and_b32 v6, 0xff, v6
        v_lshlrev_b32 v7, 2, v1
        s_mov_b32 s71, 0xffffff00""")
        a.wait_vm(last)
        for s in range(7): a(f"ds_read_b64_tr_b16 {vr(B0+2*s,2)}, v161 offset:{512*s}")
        for s in range(7):
            a(f"v_mfma_f32_16x16x16_bf16 {vr(D,4)}, {vr(A0+2*s,2)}, {vr(B0+2*s,2)}, {'0' if s==0 else vr(D,4)}")
        a(f"""s_mov_b64 exec, 0xffff
        v_add_u32 v8, 0x80, v{D}
        v_and_or_b32 v8, v8, s71, v6
        buffer_store_dword v8, v7, s[{R_WS}:{R_WS+3}], s66 offen sc1
        s_mov_b64 exec, -1""")

    XR, XH, ACC1 = 16, 48, 112
    def p1_setup(self):
        a = self.a
        a(f"""s_and_b32 s76, s{sI}, 3
        s_lshl_b32 s76, s76, 2
        s_add_u32 s76, s76, s{sW}
        s_cmp_eq_u32 s76, 15
        s_cselect_b32 s{R_B}, s{S_WV}, s{S_WK}
        s_cselect_b32 s{R_B+1}, s{S_WV+1}, s{S_WK+1}
        s_lshl_b32 s74, s76, 6
        s_cmp_lt_u32 s76, 14
        s_cselect_b32 s{R_B}, s{S_WQ}, s{R_B}
        s_cselect_b32 s{R_B+1}, s{S_WQ+1}, s{R_B+1}
        s_mov_b32 s70, 401408
        s_cselect_b32 s{R_B+2}, s70, 25088
        s_mov_b32 s{R_B+3}, 0x20000
        s_cselect_b32 s74, s74, 0
        s_cselect_b32 s70, 896, 56
        s_lshl_b32 s75, s70, 4
        v_lshrrev_b32 v10, 2, v1
        v_and_b32 v11, 3, v1
        v_mul_u32_u24 v12, 896, v10
        v_mul_u32_u24 v10, s70, v10
        v_lshl_add_u32 v10, v11, 4, v10
        v_lshl_add_u32 v12, v11, 4, v12
        v_lshlrev_b32 v13, 4, v1
        v_mov_b32 v14, {OOB}
        v_cmp_gt_u32 vcc, 56, v1
        s_lshr_b32 s77, s{sI}, 2
        s_lshl_b32 s77, s77, 2
        s_add_u32 s77, s77, s{sW}
        s_mul_i32 s77, s77, {8*896}
        v_cndmask_b32 v14, v14, v13, vcc
        s_add_u32 s78, s77, 3584""")
        a(f"""s_mul_i32 s70, s{sI}, 9363
        s_lshr_b32 s70, s70, 16
        s_mul_i32 s71, s70, 7
        s_sub_u32 s71, s{sI}, s71
        s_lshl_b32 s70, s70, 2
        s_add_u32 s70, s70, s{sW}
        s_mul_i32 s79, s70, {16*896}
        s_lshl_b32 s72, s71, 7
        s_add_u32 s79, s79, s72
        s_mul_i32 s81, s71, 112
        s_add_u32 s81, s81, s70
        s_lshl_b32 s81, s81, 11
        s_add_u32 s81, s81, {W_WD}
        s_mov_b32 s80, {8*896}
        s_mov_b32 s3, 1024
        s_mov_b32 s{R_C}, s{S_WD}
        s_mov_b32 s{R_C+1}, s{S_WD+1}
        s_mov_b32 s{R_C+2}, {1792*896}
        s_mov_b32 s{R_C+3}, 0x20000
        s_cmp_lt_u32 s{sI}, 196""")
        L = a.label('tjob')
        a(f"""s_cbranch_scc0 {L}_o
        v_lshrrev_b32 v12, 3, v1
        v_and_b32 v11, 7, v1
        v_mul_u32_u24 v12, 896, v12
        v_lshl_add_u32 v12, v11, 4, v12
        s_branch {L}_j
        {L}_o:
        s_sub_u32 s72, s{sI}, 196
        s_lshl_b32 s72, s72, 2
        s_add_u32 s72, s72, s{sW}
        s_mul_i32 s70, s72, 9363
        s_lshr_b32 s70, s70, 17
        s_mul_i32 s71, s70, 14
        s_sub_u32 s71, s72, s71
        s_mul_i32 s79, s71, {32*896}
        s_lshl_b32 s73, s70, 6
        s_add_u32 s79, s79, s73
        s_mul_i32 s81, s70, 28
        s_add_u32 s81, s81, s71
        s_lshl_b32 s81, s81, 10
        s_add_u32 s81, s81, {W_WO}
        s_mov_b32 s80, {16*896}
        s_mov_b32 s3, {14*1024}
        s_mov_b32 s{R_C}, s{S_WO}
        s_mov_b32 s{R_C+1}, s{S_WO+1}
        s_mov_b32 s{R_C+2}, 401408
        s_cmp_lt_u32 s72, 196
        s_cselect_b32 s81, s81, {OOB}
        s_cselect_b32 s79, s79, {OOB}
        {L}_j:""")

    def p1_loads(self):
        a = self.a
        for t in range(8):
            a(f"buffer_load_dwordx4 {vr(self.XR+4*t,4)}, v14, s[{R_X}:{R_X+3}], s{77 if t<4 else 78} offen offset:{(t&3)*896}")
        a(f"s_mul_i32 s70, s{sW}, 28672\ns_mov_b32 m0, s70")
        self.wids = []
        for p in range(28):
            self.wids.append(a(f"buffer_load_dwordx4 v10, s[{R_B}:{R_B+3}], s74 offen lds"))
            if p < 27: a(f"s_add_u32 m0, m0, 1024\ns_add_u32 s74, s74, s75")
        a(f"""s_lshl_b32 s70, s{sW}, 11
        s_add_u32 s70, s70, {L_TST}
        s_mov_b32 m0, s70
        s_add_u32 s80, s80, s79
        buffer_load_dwordx4 v12, s[{R_C}:{R_C+3}], s79 offen lds
        s_add_u32 m0, m0, 1024""")
        self.tid = a(f"buffer_load_dwordx4 v12, s[{R_C}:{R_C+3}], s80 offen lds")

    def reduce8(self, r):
        a = self.a
        for k in range(0, 8, 2): a(f"v_permlane32_swap_b32 v{r+k}, v{r+k+1}")
        for k in range(0, 8, 2): a(f"v_add_f32 v{r+k}, v{r+k}, v{r+k+1}")
        for k in (0, 4): a(f"v_permlane16_swap_b32 v{r+k}, v{r+k+2}")
        for k in (0, 4): a(f"v_add_f32 v{r+k}, v{r+k}, v{r+k+2}")
        for sh in (8, 4, 2, 1):
            for k in (0, 4): a(f"v_add_f32_dpp v{r+k}, v{r+k}, v{r+k} row_ror:{sh} row_mask:0xf bank_mask:0xf")
    def bcast8(self, r, s):
        a = self.a
        for k, base in ((0, 0), (4, 4)):
            for row, t in enumerate((0, 2, 1, 3)):
                a(f"v_readlane_b32 s{s+base+t}, v{r+k}, {16*row}")
    def spair(self, s):
        return sr(s & ~1, 2), s & 1

    def ln1_stats(self):
        a = self.a
        a.section = 'ln1'
        XR, XH = self.XR, self.XH
        T = 112
        SS = 68
        for t in range(8):
            for j in range(4):
                a(f"v_lshlrev_b32 v{XH+8*t+2*j}, 16, v{XR+4*t+j}\nv_and_b32 v{XH+8*t+2*j+1}, s{sMASK}, v{XR+4*t+j}")
            x = XH + 8 * t
            a(f"""v_pk_add_f32 v[120:121], {vr(x,2)}, {vr(x+2,2)}
            v_pk_add_f32 v[122:123], {vr(x+4,2)}, {vr(x+6,2)}
            v_pk_add_f32 v[120:121], v[120:121], v[122:123]
            v_add_f32 v{T+t}, v120, v121""")
        self.reduce8(T)
        a(f"v_mul_f32 v{T}, {f32(-1/448):#x}, v{T}\nv_mul_f32 v{T+4}, {f32(-1/448):#x}, v{T+4}")
        self.bcast8(T, SS)
        a("s_mov_b32 exec_hi, 0xffffff")
        for t in range(8):
            p, o = self.spair(SS + t)
            for j in range(4):
                x = XH + 8 * t + 2 * j
                a(f"v_pk_add_f32 {vr(x,2)}, {vr(x,2)}, {p} op_sel:[0,{o}] op_sel_hi:[1,{o}]")
        a("s_mov_b32 exec_hi, -1")
        for t in range(8):
            x = XH + 8 * t
            a(f"""v_pk_mul_f32 v[120:121], {vr(x,2)}, {vr(x,2)}
            v_pk_fma_f32 v[120:121], {vr(x+2,2)}, {vr(x+2,2)}, v[120:121]
            v_pk_fma_f32 v[120:121], {vr(x+4,2)}, {vr(x+4,2)}, v[120:121]
            v_pk_fma_f32 v[120:121], {vr(x+6,2)}, {vr(x+6,2)}, v[120:121]
            v_add_f32 v{T+t}, v120, v121""")
        self.reduce8(T)
        a(f"""v_mov_b32 v120, {f32(1e-5):#x}
        v_fmac_f32 v120, {f32(1/448):#x}, v{T}
        v_mov_b32 v121, {f32(1e-5):#x}
        v_fmac_f32 v121, {f32(1/448):#x}, v{T+4}
        v_rsq_f32 v{T}, v120
        v_rsq_f32 v{T+4}, v121""")
        self.bcast8(T, SS)
        for t in range(8):
            p, o = self.spair(SS + t)
            for j in range(4):
                x = XH + 8 * t + 2 * j
                a(f"v_pk_mul_f32 {vr(x,2)}, {vr(x,2)}, {p} op_sel:[0,{o}] op_sel_hi:[1,{o}]")

    def tr_lane(self, dst, rowpitch, halfrows, g1, tmp):
        a = self.a
        a(f"""v_lshrrev_b32 v{dst}, 5, v1
        v_mul_u32_u24 v{dst}, {halfrows}, v{dst}
        v_bfe_u32 v{tmp}, v1, 2, 2
        v_add_u32 v{dst}, v{dst}, v{tmp}
        v_mul_u32_u24 v{dst}, {rowpitch}, v{dst}
        v_bfe_u32 v{tmp}, v1, 4, 1
        v_mul_u32_u24 v{tmp}, {g1}, v{tmp}
        v_add_u32 v{dst}, v{dst}, v{tmp}
        v_and_b32 v{tmp}, 1, v1
        v_lshl_add_u32 v{dst}, v{tmp}, 4, v{dst}
        v_bfe_u32 v{tmp}, v1, 1, 1
        v_lshl_add_u32 v{dst}, v{tmp}, 3, v{dst}""")

    TF = 16
    def p1_wread(self):
        a = self.a
        a.section = 'wread'
        self.tr_lane(10, 64, 8, 32, 11)
        a(f"s_mul_i32 s70, s{sW}, 28672\nv_add_u32 v10, s70, v10")
        for ks in range(28):
            if ks % 4 == 0: a.wait_vm(self.wids[ks + 3])
            for u in range(2):
                a(f"ds_read_b64_tr_b16 {ar(4*ks+2*u,2)}, v10 offset:{1024*ks+256*u}")
        a(f"""s_lshl_b32 s70, s{sW}, 11
        s_add_u32 s70, s70, {L_TST}""")
        a.wait_vm(self.tid)
        L = a.label('tr')
        a(f"s_cmp_lt_u32 s{sI}, 196\ns_cbranch_scc0 {L}_o")
        st = a.state()
        self.tr_lane(11, 128, 8, 32, 12)
        a("v_add_u32 v11, s70, v11")
        for sub in range(2):
            for u in range(2): a(f"ds_read_b64_tr_b16 {vr(self.TF+4*sub+2*u,2)}, v11 offset:{512*u+64*sub}")
        a(f"s_branch {L}_j\n{L}_o:")
        st1 = a.state(); a.set_state(st)
        a(f"""v_lshrrev_b32 v11, 4, v1
        v_bfe_u32 v12, v1, 2, 2
        v_lshl_add_u32 v11, v11, 3, v12
        v_and_b32 v12, 3, v1
        v_lshlrev_b32 v11, 6, v11
        v_lshl_add_u32 v11, v12, 4, v11
        v_add_u32 v11, s70, v11""")
        for e in range(2):
            for u in range(2): a(f"ds_read_b64_tr_b16 {vr(self.TF+4*e+2*u,2)}, v11 offset:{256*u+8*e}")
        a(f"{L}_j:")
        a.merge_state(st1, a.state())

    def gran_check(self, regs, tmp):
        a = self.a
        for k, r in enumerate(regs): a(f"v_xor_b32 v{r}, s{sT0+(k&3)}, v{r}")
        a(f"v_or_b32 v{tmp}, v{regs[0]}, v{regs[1]}")
        for k in range(2, len(regs), 2): a(f"v_or3_b32 v{tmp}, v{tmp}, v{regs[k]}, v{regs[k+1]}")
        a(f"v_and_b32 v{tmp}, 0xff, v{tmp}\nv_cmp_ne_u32 vcc, 0, v{tmp}")

    def gran_reduce(self, g, addc, addr):
        a = self.a
        a(f"""v_pk_add_f32 {vr(g,2)}, {vr(g,2)}, {vr(g+4,2)}
        v_pk_add_f32 {vr(g+2,2)}, {vr(g+2,2)}, {vr(g+6,2)}
        v_pk_add_f32 {vr(g+8,2)}, {vr(g+8,2)}, {vr(g+12,2)}
        v_pk_add_f32 {vr(g+10,2)}, {vr(g+10,2)}, {vr(g+14,2)}
        v_pk_add_f32 {vr(g,2)}, {vr(g,2)}, {vr(g+8,2)}
        v_pk_add_f32 {vr(g+2,2)}, {vr(g+2,2)}, {vr(g+10,2)}
        v_cvt_pk_bf16_f32 v{g+4}, v{g}, v{g+1}
        v_cvt_pk_bf16_f32 v{g+5}, v{g+2}, v{g+3}
        v_lshlrev_b32 v{g}, 16, v{g+4}
        v_and_b32 v{g+1}, s{sMASK}, v{g+4}
        v_lshlrev_b32 v{g+2}, 16, v{g+5}
        v_and_b32 v{g+3}, s{sMASK}, v{g+5}
        v_add_f32 v{g}, v{g}, v{addc}
        v_add_f32 v{g+1}, v{g+1}, v{addc}
        v_add_f32 v{g+2}, v{g+2}, v{addc}
        v_add_f32 v{g+3}, v{g+3}, v{addc}
        v_cvt_pk_bf16_f32 v{g+4}, v{g}, v{g+1}
        v_cvt_pk_bf16_f32 v{g+5}, v{g+2}, v{g+3}
        v_lshlrev_b32 v{g}, 16, v{g+4}
        v_and_b32 v{g+1}, s{sMASK}, v{g+4}
        v_lshlrev_b32 v{g+2}, 16, v{g+5}
        v_and_b32 v{g+3}, s{sMASK}, v{g+5}
        ds_write_b128 v{addr}, {vr(g,4)}""")

    def poll(self, name, loads, check, first_issued=False, between=None):
        a = self.a
        L = a.label(name)
        a(f"s_mov_b32 s{sCNT}, {POLL_LIMIT}")
        if not first_issued: loads()
        st = None
        if between:
            a.wait_vm()
            between()
            check()
            a(f"s_cbranch_vccz {L}_ok")
            st = a.state()
            loads()
        a(f"{L}:")
        a.wait_vm()
        check()
        a(f"""s_cbranch_vccz {L}_ok
        s_sub_u32 s{sCNT}, s{sCNT}, 1
        s_cbranch_scc1 {L}_ok""")
        if st is None: st = a.state()
        loads()
        a(f"s_branch {L}\n{L}_ok:")
        a.set_state(st)

    def d1(self):
        a = self.a
        a.section = 'd1'
        G = 24
        a(f"""v_min_u32 v10, 223, v0
        v_lshrrev_b32 v11, 2, v10
        v_and_b32 v12, 3, v10
        v_lshlrev_b32 v11, 9, v11
        v_lshl_add_u32 v11, v12, 4, v11
        v_lshlrev_b32 v12, 4, v10
        v_add_u32 v12, {L_MODL}, v12
        v_cmp_le_u32 vcc, 112, v10
        s_mov_b32 s70, {W_MODC}
        v_lshlrev_b32 v15, 5, v1
        v_cndmask_b32 v10, 0, 1.0, vcc
        v_add_u32 v15, {L_MODL}, v15
        s_mul_i32 s71, s{sW}, {8*912}
        s_add_u32 s71, s71, {L_HT}
        v_add_u32 v14, s71, v13""")
        def loads():
            for rg in range(4): a(f"buffer_load_dwordx4 {vr(G+4*rg,4)}, v11, s[{R_WS}:{R_WS+3}], s70 offen offset:{128*rg} sc1")
        self.stamp('d1poll')
        self.poll('d1', loads, lambda: self.gran_check(list(range(G, G + 16)), 9))
        self.gran_reduce(G, 10, 12)
        a(f"""s_add_u32 s3, s3, s81
        buffer_store_dwordx4 {vr(self.TF,4)}, v13, s[{R_WS}:{R_WS+3}], s81 offen sc1
        buffer_store_dwordx4 {vr(self.TF+4,4)}, v13, s[{R_WS}:{R_WS+3}], s3 offen sc1""")
        self.barrier()
        self.stamp('d1done')

    def p1_main(self):
        a = self.a
        a.section = 'p1'
        XH = self.XH
        SH, SC = 24, 32
        a(f"""ds_read_b128 {vr(SC,4)}, v15 offset:1792
        ds_read_b128 {vr(SH,4)}, v15
        ds_read_b128 {vr(SC+4,4)}, v15 offset:1808
        ds_read_b128 {vr(SH+4,4)}, v15 offset:16
        v_and_b32 v10, 31, v1
        v_lshrrev_b32 v11, 5, v1
        v_mul_u32_u24 v12, 912, v10
        v_mul_u32_u24 v9, 896, v10
        v_lshl_add_u32 v12, v11, 4, v12
        v_lshl_add_u32 v9, v11, 4, v9
        v_add_u32 v12, {L_HT}, v12
        s_mov_b32 exec_hi, 0xffffff""")
        for t in range(8):
            x = XH + 8 * t
            for j in range(4): a(f"v_pk_fma_f32 {vr(x+2*j,2)}, {vr(x+2*j,2)}, {vr(SC+2*j,2)}, {vr(SH+2*j,2)}")
            for j in range(4): a(f"v_cvt_pk_bf16_f32 v{x+j}, v{x+2*j}, v{x+2*j+1}")
            a(f"ds_write_b128 v14, {vr(x,4)} offset:{912*t}")
        a("s_mov_b32 exec_hi, -1")
        a(f"""s_lshr_b32 s72, s{sI}, 2
        s_mul_i32 s70, s72, {32*896}
        s_lshl_b32 s73, s76, 6
        s_add_u32 s70, s70, s73
        s_add_u32 s70, s70, {W_Q}
        s_lshl_b32 s71, s72, 12
        s_add_u32 s71, s71, {W_KV}""")
        self.barrier()
        HF, D = 128, self.ACC1
        L = a.label('p1')
        def mm(swap):
            for ks in range(8): a(f"ds_read_b128 {vr(HF+4*ks,4)}, v12 offset:{32*ks}")
            for ks in range(28):
                A, B = ar(4 * ks, 4), vr(HF + 4 * ks, 4)
                if swap: A, B = B, A
                a(f"v_mfma_f32_32x32x16_bf16 {vr(D,16)}, {A}, {B}, {'0' if ks==0 else vr(D,16)}")
                if ks + 8 < 28: a(f"ds_read_b128 {vr(HF+4*ks+32,4)}, v12 offset:{32*(ks+8)}")
        def cvt():
            for j in range(8): a(f"v_cvt_pk_bf16_f32 v{24+j}, v{D+2*j}, v{D+2*j+1}")
        a(f"s_cmp_eq_u32 s76, 15\ns_cbranch_scc1 {L}_v")
        st = a.state()
        mm(False)
        a(f"s_cmp_eq_u32 s76, 14\ns_cbranch_scc1 {L}_k")
        st2 = a.state()
        cvt()
        a(f"""buffer_store_dwordx4 v[24:27], v9, s[{R_WS}:{R_WS+3}], s70 offen sc1
        buffer_store_dwordx4 v[28:31], v9, s[{R_WS}:{R_WS+3}], s70 offen offset:32 sc1
        s_branch {L}_j""")
        stq = a.state()
        a(f"{L}_k:"); a.set_state(st2)
        a(f"s_mov_b32 s72, {f32(28**-0.5*math.log2(math.e)):#x}\ns_nop 7\ns_nop 1")
        for j in range(8): a(f"v_pk_mul_f32 {vr(D+2*j,2)}, {vr(D+2*j,2)}, s[72:73] op_sel_hi:[1,0]")
        cvt()
        a(f"""s_mov_b32 exec_lo, 0
        v_mov_b32 v30, 0x3f803f80
        v_mov_b32 v31, 0x3f80
        s_mov_b32 exec_lo, -1
        buffer_store_dwordx4 v[24:27], v13, s[{R_WS}:{R_WS+3}], s71 offen sc1
        buffer_store_dwordx4 v[28:31], v13, s[{R_WS}:{R_WS+3}], s71 offen offset:1024 sc1
        s_branch {L}_j
        {L}_v:""")
        a.set_state(st)
        a(f"""v_cmp_eq_u32 vcc, 28, v10
        v_mov_b32 v11, 0x3f803f80
        s_nop 0
        v_cndmask_b32 v11, 0, v11, vcc""")
        mm(True)
        cvt()
        a("s_mov_b32 exec_lo, 0xf0000000\ns_mov_b32 exec_hi, 0xf0000000")
        for j in range(8): a(f"v_mov_b32 v{24+j}, v11")
        a(f"""s_mov_b64 exec, -1
        buffer_store_dwordx4 v[24:27], v13, s[{R_WS}:{R_WS+3}], s71 offen offset:2048 sc1""")
        last = a(f"buffer_store_dwordx4 v[28:31], v13, s[{R_WS}:{R_WS+3}], s71 offen offset:3072 sc1")
        a(f"{L}_j:")
        a.merge_state(stq, a.state())
        self.stamp('p1st')
        G = 32
        a(f"""v_add_u32 v10, 256, v0
        v_min_u32 v10, 447, v10
        v_lshrrev_b32 v2, 3, v0
        v_and_b32 v3, 7, v0
        v_lshlrev_b32 v2, 9, v2
        v_lshl_add_u32 v2, v3, 4, v2
        v_lshrrev_b32 v4, 3, v10
        v_and_b32 v3, 7, v10
        v_lshlrev_b32 v4, 9, v4
        v_lshl_add_u32 v4, v3, 4, v4
        s_mov_b32 s70, {W_MODN}""")
        def loads():
            for r, av in ((0, 2), (1, 4)):
                for rg in range(4): a(f"buffer_load_dwordx4 {vr(G+16*r+4*rg,4)}, v{av}, s[{R_WS}:{R_WS+3}], s70 offen offset:{128*rg} sc1")
        loads()
        a(f"""v_cmp_le_u32 vcc, 224, v0
        v_lshlrev_b32 v5, 4, v0
        v_lshlrev_b32 v6, 4, v10
        v_cndmask_b32 v7, 0, 1.0, vcc
        v_cmp_gt_u32 vcc, 336, v10
        v_add_u32 v5, {L_MODN}, v5
        v_add_u32 v6, {L_MODN}, v6
        v_cndmask_b32 v8, 0, 1.0, vcc
        s_lshl_b32 s71, s{sI}, 7
        s_add_u32 s71, s71, {W_F2}""")
        a.wait_vm(last)
        a("s_barrier")
        self.flag('s71')
        self.stamp('f2')
        self.poll('nc', loads, lambda: self.gran_check(list(range(G, G + 32)), 9), first_issued=True)
        self.gran_reduce(G, 7, 5)
        self.gran_reduce(G + 16, 8, 6)

    def flag(self, soff, wave=0):
        a = self.a
        def body():
            a(f"""v_mov_b32 v9, s{sT}
            s_mov_b64 exec, 1
            buffer_store_dword v9, off, s[{R_WS}:{R_WS+3}], {soff} sc1
            s_mov_b64 exec, -1""")
        if wave is None: body(); return
        a(f"s_cmp_eq_u32 s{sW}, {wave}")
        with a.guard(a.label('flag'), 's_cbranch_scc0'): body()

    def start_phase(self):
        a = self.a
        self.prologue()
        self.p0_setup()
        a.need(['s30'])
        a(f"s_load_dword s{sT}, s[{S_WS}:{S_WS+1}], {W_EPOCH}")
        self.srd(R_A, S_WM, 448 * 5376)
        a("s_cmp_eq_u32 s67, 1")
        with a.guard('p0c', 's_cbranch_scc0'): lc = self.p0_loads(5)
        self.srd(R_X, S_X, 2048 * 896)
        self.srd(R_WS, S_WS, W_SIZE)
        self.p1_setup()
        a("s_barrier")
        self.p1_loads()
        a("s_cmp_eq_u32 s67, 2")
        with a.guard('p0n', 's_cbranch_scc0'): ln = self.p0_loads(2)
        a(f"""s_and_b32 s70, s{sT}, 0x7f7f7f7f
        s_and_b32 s71, s{sT}, 0x80808080
        s_add_u32 s70, s70, 0x01010101
        s_xor_b32 s{sT}, s70, s71
        s_and_b32 s{sT0}, s{sT}, 0xff
        s_bfe_u32 s{sT0+1}, s{sT}, 0x80008
        s_bfe_u32 s{sT0+2}, s{sT}, 0x80010
        s_lshr_b32 s{sT0+3}, s{sT}, 24
        s_cmp_eq_u32 s67, 1""")
        a.section = 'p0c'
        with a.guard('p0c', 's_cbranch_scc0'): self.p0_compute(lc, 5)
        self.stamp('p0')
        self.ln1_stats()
        self.p1_wread()
        a("s_cmp_eq_u32 s67, 2")
        a.section = 'p0n'
        with a.guard('p0n', 's_cbranch_scc0'): self.p0_compute(ln, 2)
        self.d1()
        self.p1_main()

    def epoch_update(self):
        a = self.a
        a(f"s_cmp_eq_u32 s{sI}, 255\ns_cbranch_scc0 L_fin\ns_cmp_eq_u32 s{sW}, 0\ns_cbranch_scc0 L_fin")
        a.wait_all()
        a(f"v_lshlrev_b32 v2, 9, v1\ns_mov_b32 s70, {W_F2}")
        def loads():
            for k in range(4): a(f"buffer_load_dword v{4+k}, v2, s[{R_WS}:{R_WS+3}], s70 offen offset:{128*k} sc1")
        def check():
            for k in range(4): a(f"v_xor_b32 v{4+k}, s{sT}, v{4+k}")
            a("v_or_b32 v4, v4, v5\nv_or3_b32 v4, v4, v6, v7\nv_cmp_ne_u32 vcc, 0, v4")
        self.poll('ep', loads, check)
        a(f"s_mov_b32 s70, {W_EPOCH}")
        self.flag('s70', None)
        a("L_fin:")

    def finish(self):
        a = self.a
        if self.stamps:
            self.stamp('end')
            a.force_wait("s_waitcnt lgkmcnt(0)")
            for k in range(self.nstamp): a(f"v_writelane_b32 v2, s{S_STAMP+2*k}, {k}")
            a(f"""s_lshl_b32 s70, s{sI}, 2
            s_add_u32 s70, s70, s{sW}
            s_lshl_b32 s70, s70, 6
            s_add_u32 s70, s70, {W_STAMP}
            v_lshlrev_b32 v3, 2, v1
            s_mov_b64 exec, 0xffff
            buffer_store_dword v2, v3, s[{R_WS}:{R_WS+3}], s70 offen
            s_mov_b64 exec, -1""")
        a("L_end:\ns_endpgm")
        for f in getattr(self, 'ool', []): f()

    def build(self):
        import k2
        self.start_phase()
        if self.stop != 'p1':
            k2.rest(self)
        self.epoch_update()
        self.finish()
        return self.module()

    def module(self):
        hdr = open(f"cdna_kernels/{NAME}.s.ref").read().split("; @launch")[0]
        kn = NAME + "_kernel"
        return hdr + f"""; @launch grid=(256,1,1) block=(256,1,1) lds={LDS_SIZE}
.amdgcn_target "amdgcn-amd-amdhsa--gfx950"
.text
.globl {kn}
.p2align 8
.type {kn},@function
{kn}:
{self.a.text()}.section .rodata,"a"
.p2align 6
.amdhsa_kernel {kn}
  .amdhsa_next_free_vgpr 512
  .amdhsa_next_free_sgpr 102
  .amdhsa_accum_offset 256
  .amdhsa_group_segment_fixed_size 0
  .amdhsa_kernarg_size 112
  .amdhsa_user_sgpr_count 2
  .amdhsa_user_sgpr_kernarg_segment_ptr 1
  .amdhsa_system_sgpr_workgroup_id_x 1
.end_amdhsa_kernel
"""

if __name__ == "__main__":
    import argparse
    ap = argparse.ArgumentParser()
    ap.add_argument("-o", default="out.s")
    ap.add_argument("--stamps", default=None)
    ap.add_argument("--stop", default=None)
    ap.add_argument("--nops", action="store_true")
    g = ap.parse_args()
    k = K(stamps=(['start', 'end'] + g.stamps.split(',')) if g.stamps else None, stop=g.stop)
    txt = k.build()
    if g.stamps: txt += "; STAMPS " + " ".join(k.stamp_names) + "\n"
    open(g.o, "w").write(txt)
    if g.nops:
        for n in k.a.nops: print(n)
    print("instructions:", sum(1 for i in k.a.out if i.op), "nop states:", sum(n[1] for n in k.a.nops))
```

```python
import sys, struct, math
sys.path.insert(0, "gen")
from fw import Asm

NAME = "adaLN_cond__grouped_kv_mqa__glu_gated_reglu__prompt"
def f32(x): return struct.unpack('<I', struct.pack('<f', x))[0]
def vr(b, n=1, k='v'): return f"{k}{b}" if n == 1 else f"{k}[{b}:{b+n-1}]"
def ar(b, n=1): return vr(b, n, 'a')
def sr(b, n=1): return vr(b, n, 's')

W_EPOCH = 0
W_F2 = 0x1000
W_F3 = 0x9000
W_F4 = 0x11000
W_MODC = 0x80000
W_MODN = 0x88000
W_KV = 0x90000
W_Q = 0x100000
W_X1 = 0x300000
W_H2 = 0x500000
W_WO = 0x700000
W_WD = 0x800000
W_H = 0xA00000
W_STAMP = 0x1200000
W_SIZE = 0x2000000
OOB = 0x7000_0000
L_WST = 0
L_HT = 114688
L_P0 = L_HT
L_SILU = L_HT + 12288
L_MODL = 143872
L_MODN = 147456
L_TST = 154624
L_MISC = 162816
L_X0 = 0
GU0 = 43008 + 128
L_Y = 86272
GU1 = 28672 + 32
L_OS = L_Y
L_OT = L_Y + 49152
LDS_SIZE = 163840
S_X, S_WQ, S_WK, S_WV, S_WO, S_WG, S_WU, S_WD, S_C, S_WM, S_OUT, S_DBG, S_WS = 4, 6, 8, 10, 12, 16, 18, 20, 22, 24, 26, 28, 30
R_WS, R_X, R_A, R_B, R_C = 32, 36, 40, 44, 48
sI, sW, sT, sXC, sR = 52, 53, 54, 55, 56
sT0 = 57
sMASK = 61
sCNT = 62
sFB = 63
s0 = 64
S_STAMP = 82
POLL_LIMIT = 20000

class K:
    def __init__(self, stamps=False, stop=None, x=(), probe=None):
        self.x = set(x); self.probe = probe
        self.a = Asm()
        self.stamps = stamps
        self.nstamp = 0
        self.stop = stop
        self.stamp_names = []

    def stamp(self, name):
        if not self.stamps or name not in self.stamps: return
        assert self.nstamp < 10
        r = S_STAMP + 2 * self.nstamp
        self.a(f"{'s_memtime' if 'cyc' in self.x else 's_memrealtime'} {sr(r,2)}")
        self.nstamp += 1
        self.stamp_names.append(name)

    def srd(self, r, ptr, size):
        self.a(f"""s_mov_b32 s{r}, s{ptr}
        s_mov_b32 s{r+1}, s{ptr+1}
        s_mov_b32 s{r+2}, {size}
        s_mov_b32 s{r+3}, 0x20000""")

    def barrier(self):
        self.a.wait_lg()
        self.a("s_barrier")

    def prologue(self):
        a = self.a
        a.section = 'prologue'
        a(f"""s_cmp_ge_u32 s2, 256
        s_cbranch_scc1 L_end
        s_load_dwordx4 s[28:31], s[0:1], 96
        s_load_dwordx8 s[20:27], s[0:1], 64
        s_load_dwordx16 s[4:19], s[0:1], 0""")
        self.stamp('start')
        a(f"""v_lshrrev_b32 v2, 6, v0
        v_and_b32 v1, 63, v0
        s_and_b32 s{sXC}, s2, 7
        v_readfirstlane_b32 s{sW}, v2
        s_lshr_b32 s{sR}, s2, 3
        s_lshl_b32 s{sI}, s{sXC}, 5
        s_add_u32 s{sI}, s{sI}, s{sR}
        s_mov_b32 s{sMASK}, 0xffff0000
        s_mov_b32 s{sFB}, 0""")

    def p0_setup(self):
        a = self.a
        a(f"""v_lshrrev_b32 v3, 1, v1
        v_and_b32 v4, 1, v1
        v_mul_u32_u24 v3, 5376, v3
        v_lshl_add_u32 v3, v4, 4, v3
        v_min_u32 v4, 55, v1
        s_and_b32 s68, s{sI}, 3
        s_lshr_b32 s69, s{sI}, 2
        s_mul_i32 s70, s68, 224
        v_lshl_add_u32 v4, v4, 2, s70
        s_mul_i32 s64, s68, {112*5376}
        s_lshl_b32 s70, s69, 5
        s_lshl_b32 s71, s69, 6
        s_lshl_b32 s72, s{sW}, 5
        s_add_u32 s71, s71, s72
        s_add_u32 s71, s71, {1792-32}
        s_lshl_b32 s66, s{sI}, 7
        s_lshl_b32 s73, s{sW}, 6
        s_add_u32 s73, s73, {W_MODN-64}
        s_cmp_eq_u32 s{sW}, 0
        s_cselect_b32 s70, s70, s71
        s_cselect_b32 s73, {W_MODC}, s73
        s_cselect_b32 s67, 1, 2
        s_add_u32 s64, s64, s70
        s_add_u32 s66, s66, s73
        s_lshl_b32 s65, s{sW}, 12
        s_add_u32 s65, s65, {L_P0}
        s_cmp_eq_u32 s{sW}, 3
        s_cselect_b32 s67, 0, s67
        s_cmp_ge_u32 s{sI}, 224
        s_cselect_b32 s67, 0, s67""")

    def p0_loads(self, cv):
        a = self.a
        a(f"global_load_dword v{cv}, v4, s[{S_C}:{S_C+1}]")
        a(f"s_mov_b32 m0, s65\ns_mov_b32 s70, s64")
        for p in range(4):
            if p == 3: a("s_mov_b32 exec_hi, 0")
            self.p0_last = a(f"buffer_load_dwordx4 v3, s[{R_A}:{R_A+3}], s70 offen lds")
            if p < 3: a(f"s_add_u32 m0, m0, 1024\ns_add_u32 s70, s70, {32*5376}")
        a("s_mov_b32 exec_hi, -1")
        return self.p0_last

    def p0_compute(self, last, cv):
        a = self.a
        A0, B0, D = 128, 142, 156
        a(f"""v_lshlrev_b32 v6, 16, v{cv}
        v_and_b32 v7, s{sMASK}, v{cv}
        v_mul_f32 v8, {f32(-math.log2(math.e)):#x}, v6
        v_mul_f32 v9, {f32(-math.log2(math.e)):#x}, v7
        v_exp_f32 v8, v8
        v_exp_f32 v9, v9
        s_lshl_b32 s70, s{sW}, 8
        s_add_u32 s70, s70, {L_SILU}
        v_add_f32 v8, 1.0, v8
        v_add_f32 v9, 1.0, v9
        v_rcp_f32 v8, v8
        v_rcp_f32 v9, v9
        v_lshl_add_u32 v5, v1, 2, s70
        v_lshrrev_b32 v160, 4, v1
        v_mul_f32 v6, v6, v8
        v_mul_f32 v7, v7, v9
        v_lshl_add_u32 v160, v160, 3, s70
        v_cvt_pk_bf16_f32 v6, v6, v7
        v_lshl_add_u32 v161, v1, 3, s65
        ds_write_b32 v5, v6""")
        for s in range(7): a(f"ds_read_b64 {vr(A0+2*s,2)}, v160 offset:{32*s}")
        a(f"""v_and_b32 v6, 3, v1
        v_lshlrev_b32 v6, 3, v6
        v_lshrrev_b32 v6, v6, s{sT}
        v_and_b32 v6, 0xff, v6
        v_lshlrev_b32 v7, 2, v1
        s_mov_b32 s71, 0xffffff00""")
        a.wait_vm(last)
        for s in range(7): a(f"ds_read_b64_tr_b16 {vr(B0+2*s,2)}, v161 offset:{512*s}")
        for s in range(7):
            a(f"v_mfma_f32_16x16x16_bf16 {vr(D,4)}, {vr(A0+2*s,2)}, {vr(B0+2*s,2)}, {'0' if s==0 else vr(D,4)}")
        a(f"""s_mov_b64 exec, 0xffff
        v_add_u32 v8, 0x80, v{D}
        v_and_or_b32 v8, v8, s71, v6
        buffer_store_dword v8, v7, s[{R_WS}:{R_WS+3}], s66 offen sc1
        s_mov_b64 exec, -1""")

    XR, XH, ACC1 = 16, 48, 112
    def p1_setup(self):
        a = self.a
        a(f"""s_and_b32 s76, s{sI}, 3
        s_lshl_b32 s76, s76, 2
        s_add_u32 s76, s76, s{sW}
        s_cmp_eq_u32 s76, 15
        s_cselect_b32 s{R_B}, s{S_WV}, s{S_WK}
        s_cselect_b32 s{R_B+1}, s{S_WV+1}, s{S_WK+1}
        s_lshl_b32 s74, s76, 6
        s_cmp_lt_u32 s76, 14
        s_cselect_b32 s{R_B}, s{S_WQ}, s{R_B}
        s_cselect_b32 s{R_B+1}, s{S_WQ+1}, s{R_B+1}
        s_mov_b32 s70, 401408
        s_cselect_b32 s{R_B+2}, s70, 25088
        s_mov_b32 s{R_B+3}, 0x20000
        s_cselect_b32 s74, s74, 0
        s_cselect_b32 s70, 896, 56
        s_lshl_b32 s75, s70, 4
        v_lshrrev_b32 v10, 2, v1
        v_and_b32 v11, 3, v1
        v_mul_u32_u24 v12, 896, v10
        v_mul_u32_u24 v10, s70, v10
        v_lshl_add_u32 v10, v11, 4, v10
        v_lshl_add_u32 v12, v11, 4, v12
        v_lshlrev_b32 v13, 4, v1
        v_mov_b32 v14, {OOB}
        v_cmp_gt_u32 vcc, 56, v1
        s_lshr_b32 s77, s{sI}, 2
        s_lshl_b32 s77, s77, 2
        s_add_u32 s77, s77, s{sW}
        s_mul_i32 s77, s77, {8*896}
        v_cndmask_b32 v14, v14, v13, vcc
        s_add_u32 s78, s77, 3584""")
        a(f"""s_mul_i32 s70, s{sI}, 9363
        s_lshr_b32 s70, s70, 16
        s_mul_i32 s71, s70, 7
        s_sub_u32 s71, s{sI}, s71
        s_lshl_b32 s70, s70, 2
        s_add_u32 s70, s70, s{sW}
        s_mul_i32 s79, s70, {16*896}
        s_lshl_b32 s72, s71, 7
        s_add_u32 s79, s79, s72
        s_mul_i32 s81, s71, 112
        s_add_u32 s81, s81, s70
        s_lshl_b32 s81, s81, 11
        s_add_u32 s81, s81, {W_WD}
        s_mov_b32 s80, {8*896}
        s_mov_b32 s3, 1024
        s_mov_b32 s{R_C}, s{S_WD}
        s_mov_b32 s{R_C+1}, s{S_WD+1}
        s_mov_b32 s{R_C+2}, {1792*896}
        s_mov_b32 s{R_C+3}, 0x20000
        s_cmp_lt_u32 s{sI}, 196""")
        L = a.label('tjob')
        a(f"""s_cbranch_scc0 {L}_o
        v_lshrrev_b32 v12, 3, v1
        v_and_b32 v11, 7, v1
        v_mul_u32_u24 v12, 896, v12
        v_lshl_add_u32 v12, v11, 4, v12
        s_branch {L}_j
        {L}_o:
        s_sub_u32 s72, s{sI}, 196
        s_lshl_b32 s72, s72, 2
        s_add_u32 s72, s72, s{sW}
        s_mul_i32 s70, s72, 9363
        s_lshr_b32 s70, s70, 17
        s_mul_i32 s71, s70, 14
        s_sub_u32 s71, s72, s71
        s_mul_i32 s79, s71, {32*896}
        s_lshl_b32 s73, s70, 6
        s_add_u32 s79, s79, s73
        s_mul_i32 s81, s70, 28
        s_add_u32 s81, s81, s71
        s_lshl_b32 s81, s81, 10
        s_add_u32 s81, s81, {W_WO}
        s_mov_b32 s80, {16*896}
        s_mov_b32 s3, {14*1024}
        s_mov_b32 s{R_C}, s{S_WO}
        s_mov_b32 s{R_C+1}, s{S_WO+1}
        s_mov_b32 s{R_C+2}, 401408
        s_cmp_lt_u32 s72, 196
        s_cselect_b32 s81, s81, {OOB}
        s_cselect_b32 s79, s79, {OOB}
        {L}_j:""")

    def p1_loads(self):
        a = self.a
        for t in range(8):
            a(f"buffer_load_dwordx4 {vr(self.XR+4*t,4)}, v14, s[{R_X}:{R_X+3}], s{77 if t<4 else 78} offen offset:{(t&3)*896}")
        a(f"s_mul_i32 s70, s{sW}, 28672\ns_mov_b32 m0, s70")
        self.wids = []
        for p in range(28):
            self.wids.append(a(f"buffer_load_dwordx4 v10, s[{R_B}:{R_B+3}], s74 offen lds"))
            if p < 27: a(f"s_add_u32 m0, m0, 1024\ns_add_u32 s74, s74, s75")
        a(f"""s_lshl_b32 s70, s{sW}, 11
        s_add_u32 s70, s70, {L_TST}
        s_mov_b32 m0, s70
        s_add_u32 s80, s80, s79
        buffer_load_dwordx4 v12, s[{R_C}:{R_C+3}], s79 offen lds
        s_add_u32 m0, m0, 1024""")
        self.tid = a(f"buffer_load_dwordx4 v12, s[{R_C}:{R_C+3}], s80 offen lds")

    def reduce8(self, r):
        a = self.a
        for k in range(0, 8, 2): a(f"v_permlane32_swap_b32 v{r+k}, v{r+k+1}")
        for k in range(0, 8, 2): a(f"v_add_f32 v{r+k}, v{r+k}, v{r+k+1}")
        for k in (0, 4): a(f"v_permlane16_swap_b32 v{r+k}, v{r+k+2}")
        for k in (0, 4): a(f"v_add_f32 v{r+k}, v{r+k}, v{r+k+2}")
        for sh in (8, 4, 2, 1):
            for k in (0, 4): a(f"v_add_f32_dpp v{r+k}, v{r+k}, v{r+k} row_ror:{sh} row_mask:0xf bank_mask:0xf")
    def bcast8(self, r, s):
        a = self.a
        for k, base in ((0, 0), (4, 4)):
            for row, t in enumerate((0, 2, 1, 3)):
                a(f"v_readlane_b32 s{s+base+t}, v{r+k}, {16*row}")
    def spair(self, s):
        return sr(s & ~1, 2), s & 1

    def ln1_stats(self):
        a = self.a
        a.section = 'ln1'
        XR, XH = self.XR, self.XH
        T = 112
        SS = 68
        for t in range(8):
            for j in range(4):
                a(f"v_lshlrev_b32 v{XH+8*t+2*j}, 16, v{XR+4*t+j}\nv_and_b32 v{XH+8*t+2*j+1}, s{sMASK}, v{XR+4*t+j}")
            x = XH + 8 * t
            a(f"""v_pk_add_f32 v[120:121], {vr(x,2)}, {vr(x+2,2)}
            v_pk_add_f32 v[122:123], {vr(x+4,2)}, {vr(x+6,2)}
            v_pk_add_f32 v[120:121], v[120:121], v[122:123]
            v_add_f32 v{T+t}, v120, v121""")
        self.reduce8(T)
        a(f"v_mul_f32 v{T}, {f32(-1/448):#x}, v{T}\nv_mul_f32 v{T+4}, {f32(-1/448):#x}, v{T+4}")
        self.bcast8(T, SS)
        a("s_mov_b32 exec_hi, 0xffffff")
        for t in range(8):
            p, o = self.spair(SS + t)
            for j in range(4):
                x = XH + 8 * t + 2 * j
                a(f"v_pk_add_f32 {vr(x,2)}, {vr(x,2)}, {p} op_sel:[0,{o}] op_sel_hi:[1,{o}]")
        a("s_mov_b32 exec_hi, -1")
        for t in range(8):
            x = XH + 8 * t
            a(f"""v_pk_mul_f32 v[120:121], {vr(x,2)}, {vr(x,2)}
            v_pk_fma_f32 v[120:121], {vr(x+2,2)}, {vr(x+2,2)}, v[120:121]
            v_pk_fma_f32 v[120:121], {vr(x+4,2)}, {vr(x+4,2)}, v[120:121]
            v_pk_fma_f32 v[120:121], {vr(x+6,2)}, {vr(x+6,2)}, v[120:121]
            v_add_f32 v{T+t}, v120, v121""")
        self.reduce8(T)
        a(f"""v_mov_b32 v120, {f32(1e-5):#x}
        v_fmac_f32 v120, {f32(1/448):#x}, v{T}
        v_mov_b32 v121, {f32(1e-5):#x}
        v_fmac_f32 v121, {f32(1/448):#x}, v{T+4}
        v_rsq_f32 v{T}, v120
        v_rsq_f32 v{T+4}, v121""")
        self.bcast8(T, SS)
        for t in range(8):
            p, o = self.spair(SS + t)
            for j in range(4):
                x = XH + 8 * t + 2 * j
                a(f"v_pk_mul_f32 {vr(x,2)}, {vr(x,2)}, {p} op_sel:[0,{o}] op_sel_hi:[1,{o}]")

    def tr_lane(self, dst, rowpitch, halfrows, g1, tmp):
        a = self.a
        a(f"""v_lshrrev_b32 v{dst}, 5, v1
        v_mul_u32_u24 v{dst}, {halfrows}, v{dst}
        v_bfe_u32 v{tmp}, v1, 2, 2
        v_add_u32 v{dst}, v{dst}, v{tmp}
        v_mul_u32_u24 v{dst}, {rowpitch}, v{dst}
        v_bfe_u32 v{tmp}, v1, 4, 1
        v_mul_u32_u24 v{tmp}, {g1}, v{tmp}
        v_add_u32 v{dst}, v{dst}, v{tmp}
        v_and_b32 v{tmp}, 1, v1
        v_lshl_add_u32 v{dst}, v{tmp}, 4, v{dst}
        v_bfe_u32 v{tmp}, v1, 1, 1
        v_lshl_add_u32 v{dst}, v{tmp}, 3, v{dst}""")

    TF = 16
    def p1_wread(self):
        a = self.a
        a.section = 'wread'
        self.tr_lane(10, 64, 8, 32, 11)
        a(f"s_mul_i32 s70, s{sW}, 28672\nv_add_u32 v10, s70, v10")
        for ks in range(28):
            if ks % 4 == 0: a.wait_vm(self.wids[ks + 3])
            for u in range(2):
                a(f"ds_read_b64_tr_b16 {ar(4*ks+2*u,2)}, v10 offset:{1024*ks+256*u}")
        a(f"""s_lshl_b32 s70, s{sW}, 11
        s_add_u32 s70, s70, {L_TST}""")
        a.wait_vm(self.tid)
        L = a.label('tr')
        a(f"s_cmp_lt_u32 s{sI}, 196\ns_cbranch_scc0 {L}_o")
        st = a.state()
        self.tr_lane(11, 128, 8, 32, 12)
        a("v_add_u32 v11, s70, v11")
        for sub in range(2):
            for u in range(2): a(f"ds_read_b64_tr_b16 {vr(self.TF+4*sub+2*u,2)}, v11 offset:{512*u+64*sub}")
        a(f"s_branch {L}_j\n{L}_o:")
        st1 = a.state(); a.set_state(st)
        a(f"""v_lshrrev_b32 v11, 4, v1
        v_bfe_u32 v12, v1, 2, 2
        v_lshl_add_u32 v11, v11, 3, v12
        v_and_b32 v12, 3, v1
        v_lshlrev_b32 v11, 6, v11
        v_lshl_add_u32 v11, v12, 4, v11
        v_add_u32 v11, s70, v11""")
        for e in range(2):
            for u in range(2): a(f"ds_read_b64_tr_b16 {vr(self.TF+4*e+2*u,2)}, v11 offset:{256*u+8*e}")
        a(f"{L}_j:")
        a.merge_state(st1, a.state())

    def gran_check(self, regs, tmp):
        a = self.a
        for k, r in enumerate(regs): a(f"v_xor_b32 v{r}, s{sT0+(k&3)}, v{r}")
        a(f"v_or_b32 v{tmp}, v{regs[0]}, v{regs[1]}")
        for k in range(2, len(regs), 2): a(f"v_or3_b32 v{tmp}, v{tmp}, v{regs[k]}, v{regs[k+1]}")
        a(f"v_and_b32 v{tmp}, 0xff, v{tmp}\nv_cmp_ne_u32 vcc, 0, v{tmp}")

    def gran_reduce(self, g, addc, addr):
        a = self.a
        a(f"""v_pk_add_f32 {vr(g,2)}, {vr(g,2)}, {vr(g+4,2)}
        v_pk_add_f32 {vr(g+2,2)}, {vr(g+2,2)}, {vr(g+6,2)}
        v_pk_add_f32 {vr(g+8,2)}, {vr(g+8,2)}, {vr(g+12,2)}
        v_pk_add_f32 {vr(g+10,2)}, {vr(g+10,2)}, {vr(g+14,2)}
        v_pk_add_f32 {vr(g,2)}, {vr(g,2)}, {vr(g+8,2)}
        v_pk_add_f32 {vr(g+2,2)}, {vr(g+2,2)}, {vr(g+10,2)}
        v_cvt_pk_bf16_f32 v{g+4}, v{g}, v{g+1}
        v_cvt_pk_bf16_f32 v{g+5}, v{g+2}, v{g+3}
        v_lshlrev_b32 v{g}, 16, v{g+4}
        v_and_b32 v{g+1}, s{sMASK}, v{g+4}
        v_lshlrev_b32 v{g+2}, 16, v{g+5}
        v_and_b32 v{g+3}, s{sMASK}, v{g+5}
        v_add_f32 v{g}, v{g}, v{addc}
        v_add_f32 v{g+1}, v{g+1}, v{addc}
        v_add_f32 v{g+2}, v{g+2}, v{addc}
        v_add_f32 v{g+3}, v{g+3}, v{addc}
        v_cvt_pk_bf16_f32 v{g+4}, v{g}, v{g+1}
        v_cvt_pk_bf16_f32 v{g+5}, v{g+2}, v{g+3}
        v_lshlrev_b32 v{g}, 16, v{g+4}
        v_and_b32 v{g+1}, s{sMASK}, v{g+4}
        v_lshlrev_b32 v{g+2}, 16, v{g+5}
        v_and_b32 v{g+3}, s{sMASK}, v{g+5}
        ds_write_b128 v{addr}, {vr(g,4)}""")

    def poll(self, name, loads, check, first_issued=False, between=None):
        a = self.a
        L = a.label(name)
        a(f"s_mov_b32 s{sCNT}, {POLL_LIMIT}")
        if not first_issued: loads()
        st = None
        if between:
            a.wait_vm()
            between()
            check()
            a(f"s_cbranch_vccz {L}_ok")
            st = a.state()
            loads()
        a(f"{L}:")
        a.wait_vm()
        check()
        a(f"""s_cbranch_vccz {L}_ok
        s_sub_u32 s{sCNT}, s{sCNT}, 1
        s_cbranch_scc1 {L}_ok""")
        if st is None: st = a.state()
        loads()
        a(f"s_branch {L}\n{L}_ok:")
        a.set_state(st)

    def d1(self):
        a = self.a
        a.section = 'd1'
        G = 24
        a(f"""v_min_u32 v10, 223, v0
        v_lshrrev_b32 v11, 2, v10
        v_and_b32 v12, 3, v10
        v_lshlrev_b32 v11, 9, v11
        v_lshl_add_u32 v11, v12, 4, v11
        v_lshlrev_b32 v12, 4, v10
        v_add_u32 v12, {L_MODL}, v12
        v_cmp_le_u32 vcc, 112, v10
        s_mov_b32 s70, {W_MODC}
        v_lshlrev_b32 v15, 5, v1
        v_cndmask_b32 v10, 0, 1.0, vcc
        v_add_u32 v15, {L_MODL}, v15
        s_mul_i32 s71, s{sW}, {8*912}
        s_add_u32 s71, s71, {L_HT}
        v_add_u32 v14, s71, v13""")
        def loads():
            for rg in range(4): a(f"buffer_load_dwordx4 {vr(G+4*rg,4)}, v11, s[{R_WS}:{R_WS+3}], s70 offen offset:{128*rg} sc1")
        self.stamp('d1poll')
        self.poll('d1', loads, lambda: self.gran_check(list(range(G, G + 16)), 9))
        self.gran_reduce(G, 10, 12)
        a(f"""s_add_u32 s3, s3, s81
        buffer_store_dwordx4 {vr(self.TF,4)}, v13, s[{R_WS}:{R_WS+3}], s81 offen sc1
        buffer_store_dwordx4 {vr(self.TF+4,4)}, v13, s[{R_WS}:{R_WS+3}], s3 offen sc1""")
        self.barrier()
        self.stamp('d1done')

    def p1_main(self):
        a = self.a
        a.section = 'p1'
        XH = self.XH
        SH, SC = 24, 32
        a(f"""ds_read_b128 {vr(SC,4)}, v15 offset:1792
        ds_read_b128 {vr(SH,4)}, v15
        ds_read_b128 {vr(SC+4,4)}, v15 offset:1808
        ds_read_b128 {vr(SH+4,4)}, v15 offset:16
        v_and_b32 v10, 31, v1
        v_lshrrev_b32 v11, 5, v1
        v_mul_u32_u24 v12, 912, v10
        v_mul_u32_u24 v9, 896, v10
        v_lshl_add_u32 v12, v11, 4, v12
        v_lshl_add_u32 v9, v11, 4, v9
        v_add_u32 v12, {L_HT}, v12
        s_mov_b32 exec_hi, 0xffffff""")
        for t in range(8):
            x = XH + 8 * t
            for j in range(4): a(f"v_pk_fma_f32 {vr(x+2*j,2)}, {vr(x+2*j,2)}, {vr(SC+2*j,2)}, {vr(SH+2*j,2)}")
            for j in range(4): a(f"v_cvt_pk_bf16_f32 v{x+j}, v{x+2*j}, v{x+2*j+1}")
            a(f"ds_write_b128 v14, {vr(x,4)} offset:{912*t}")
        a("s_mov_b32 exec_hi, -1")
        a(f"""s_lshr_b32 s72, s{sI}, 2
        s_mul_i32 s70, s72, {32*896}
        s_lshl_b32 s73, s76, 6
        s_add_u32 s70, s70, s73
        s_add_u32 s70, s70, {W_Q}
        s_lshl_b32 s71, s72, 12
        s_add_u32 s71, s71, {W_KV}""")
        self.barrier()
        HF, D = 128, self.ACC1
        L = a.label('p1')
        def mm(swap):
            for ks in range(8): a(f"ds_read_b128 {vr(HF+4*ks,4)}, v12 offset:{32*ks}")
            for ks in range(28):
                A, B = ar(4 * ks, 4), vr(HF + 4 * ks, 4)
                if swap: A, B = B, A
                a(f"v_mfma_f32_32x32x16_bf16 {vr(D,16)}, {A}, {B}, {'0' if ks==0 else vr(D,16)}")
                if ks + 8 < 28: a(f"ds_read_b128 {vr(HF+4*ks+32,4)}, v12 offset:{32*(ks+8)}")
        def cvt():
            for j in range(8): a(f"v_cvt_pk_bf16_f32 v{24+j}, v{D+2*j}, v{D+2*j+1}")
        a(f"s_cmp_eq_u32 s76, 15\ns_cbranch_scc1 {L}_v")
        st = a.state()
        mm(False)
        a(f"s_cmp_eq_u32 s76, 14\ns_cbranch_scc1 {L}_k")
        st2 = a.state()
        cvt()
        a(f"""buffer_store_dwordx4 v[24:27], v9, s[{R_WS}:{R_WS+3}], s70 offen sc1
        buffer_store_dwordx4 v[28:31], v9, s[{R_WS}:{R_WS+3}], s70 offen offset:32 sc1
        s_branch {L}_j""")
        stq = a.state()
        a(f"{L}_k:"); a.set_state(st2)
        a(f"s_mov_b32 s72, {f32(28**-0.5*math.log2(math.e)):#x}\ns_nop 7\ns_nop 1")
        for j in range(8): a(f"v_pk_mul_f32 {vr(D+2*j,2)}, {vr(D+2*j,2)}, s[72:73] op_sel_hi:[1,0]")
        cvt()
        a(f"""s_mov_b32 exec_lo, 0
        v_mov_b32 v30, 0x3f803f80
        v_mov_b32 v31, 0x3f80
        s_mov_b32 exec_lo, -1
        buffer_store_dwordx4 v[24:27], v13, s[{R_WS}:{R_WS+3}], s71 offen sc1
        buffer_store_dwordx4 v[28:31], v13, s[{R_WS}:{R_WS+3}], s71 offen offset:1024 sc1
        s_branch {L}_j
        {L}_v:""")
        a.set_state(st)
        a(f"""v_cmp_eq_u32 vcc, 28, v10
        v_mov_b32 v11, 0x3f803f80
        s_nop 0
        v_cndmask_b32 v11, 0, v11, vcc""")
        mm(True)
        cvt()
        a("s_mov_b32 exec_lo, 0xf0000000\ns_mov_b32 exec_hi, 0xf0000000")
        for j in range(8): a(f"v_mov_b32 v{24+j}, v11")
        a(f"""s_mov_b64 exec, -1
        buffer_store_dwordx4 v[24:27], v13, s[{R_WS}:{R_WS+3}], s71 offen offset:2048 sc1""")
        last = a(f"buffer_store_dwordx4 v[28:31], v13, s[{R_WS}:{R_WS+3}], s71 offen offset:3072 sc1")
        a(f"{L}_j:")
        a.merge_state(stq, a.state())
        self.stamp('p1st')
        G = 32
        a(f"""v_add_u32 v10, 256, v0
        v_min_u32 v10, 447, v10
        v_lshrrev_b32 v2, 3, v0
        v_and_b32 v3, 7, v0
        v_lshlrev_b32 v2, 9, v2
        v_lshl_add_u32 v2, v3, 4, v2
        v_lshrrev_b32 v4, 3, v10
        v_and_b32 v3, 7, v10
        v_lshlrev_b32 v4, 9, v4
        v_lshl_add_u32 v4, v3, 4, v4
        s_mov_b32 s70, {W_MODN}""")
        def loads():
            for r, av in ((0, 2), (1, 4)):
                for rg in range(4): a(f"buffer_load_dwordx4 {vr(G+16*r+4*rg,4)}, v{av}, s[{R_WS}:{R_WS+3}], s70 offen offset:{128*rg} sc1")
        loads()
        a(f"""v_cmp_le_u32 vcc, 224, v0
        v_lshlrev_b32 v5, 4, v0
        v_lshlrev_b32 v6, 4, v10
        v_cndmask_b32 v7, 0, 1.0, vcc
        v_cmp_gt_u32 vcc, 336, v10
        v_add_u32 v5, {L_MODN}, v5
        v_add_u32 v6, {L_MODN}, v6
        v_cndmask_b32 v8, 0, 1.0, vcc
        s_lshl_b32 s71, s{sI}, 7
        s_add_u32 s71, s71, {W_F2}""")
        a.wait_vm(last)
        a("s_barrier")
        self.flag('s71')
        self.stamp('f2')
        self.poll('nc', loads, lambda: self.gran_check(list(range(G, G + 32)), 9), first_issued=True)
        self.gran_reduce(G, 7, 5)
        self.gran_reduce(G + 16, 8, 6)

    def flag(self, soff, wave=0):
        a = self.a
        def body():
            a(f"""v_mov_b32 v9, s{sT}
            s_mov_b64 exec, 1
            buffer_store_dword v9, off, s[{R_WS}:{R_WS+3}], {soff} sc1
            s_mov_b64 exec, -1""")
        if wave is None: body(); return
        a(f"s_cmp_eq_u32 s{sW}, {wave}")
        with a.guard(a.label('flag'), 's_cbranch_scc0'): body()

    def start_phase(self):
        a = self.a
        self.prologue()
        self.p0_setup()
        a.need(['s30'])
        a(f"s_load_dword s{sT}, s[{S_WS}:{S_WS+1}], {W_EPOCH}")
        self.srd(R_A, S_WM, 448 * 5376)
        a("s_cmp_eq_u32 s67, 1")
        with a.guard('p0c', 's_cbranch_scc0'): lc = self.p0_loads(5)
        self.srd(R_X, S_X, 2048 * 896)
        self.srd(R_WS, S_WS, W_SIZE)
        self.p1_setup()
        a("s_barrier")
        self.p1_loads()
        a("s_cmp_eq_u32 s67, 2")
        with a.guard('p0n', 's_cbranch_scc0'): ln = self.p0_loads(2)
        a(f"""s_and_b32 s70, s{sT}, 0x7f7f7f7f
        s_and_b32 s71, s{sT}, 0x80808080
        s_add_u32 s70, s70, 0x01010101
        s_xor_b32 s{sT}, s70, s71
        s_and_b32 s{sT0}, s{sT}, 0xff
        s_bfe_u32 s{sT0+1}, s{sT}, 0x80008
        s_bfe_u32 s{sT0+2}, s{sT}, 0x80010
        s_lshr_b32 s{sT0+3}, s{sT}, 24
        s_cmp_eq_u32 s67, 1""")
        a.section = 'p0c'
        with a.guard('p0c', 's_cbranch_scc0'): self.p0_compute(lc, 5)
        self.stamp('p0')
        self.ln1_stats()
        self.p1_wread()
        a("s_cmp_eq_u32 s67, 2")
        a.section = 'p0n'
        with a.guard('p0n', 's_cbranch_scc0'): self.p0_compute(ln, 2)
        self.d1()
        self.p1_main()

    def epoch_update(self):
        a = self.a
        a(f"s_cmp_eq_u32 s{sI}, 255\ns_cbranch_scc0 L_fin\ns_cmp_eq_u32 s{sW}, 0\ns_cbranch_scc0 L_fin")
        a.wait_all()
        a(f"v_lshlrev_b32 v2, 9, v1\ns_mov_b32 s70, {W_F2}")
        def loads():
            for k in range(4): a(f"buffer_load_dword v{4+k}, v2, s[{R_WS}:{R_WS+3}], s70 offen offset:{128*k} sc1")
        def check():
            for k in range(4): a(f"v_xor_b32 v{4+k}, s{sT}, v{4+k}")
            a("v_or_b32 v4, v4, v5\nv_or3_b32 v4, v4, v6, v7\nv_cmp_ne_u32 vcc, 0, v4")
        self.poll('ep', loads, check)
        a(f"s_mov_b32 s70, {W_EPOCH}")
        self.flag('s70', None)
        a("L_fin:")

    def finish(self):
        a = self.a
        if self.probe:
            self.stamp('end')
            j = self.stamp_names.index(self.probe)
            a.force_wait("s_waitcnt lgkmcnt(0)")
            a(f"""s_cmp_eq_u32 s{sI}, 100
            s_cbranch_scc0 L_end
            s_add_u32 s70, s{S_STAMP+2*j}, 6000
            L_probe:
            s_memrealtime s[72:73]
            s_waitcnt lgkmcnt(0)
            s_sub_u32 s71, s72, s70
            s_cmp_lt_i32 s71, 0
            s_cbranch_scc1 L_probe""")
        elif self.stamps:
            self.stamp('end')
            a.force_wait("s_waitcnt lgkmcnt(0)")
            for k in range(self.nstamp): a(f"v_writelane_b32 v2, s{S_STAMP+2*k}, {k}")
            a(f"""s_lshl_b32 s70, s{sI}, 2
            s_add_u32 s70, s70, s{sW}
            s_lshl_b32 s70, s70, 6
            s_add_u32 s70, s70, {W_STAMP}
            v_lshlrev_b32 v3, 2, v1
            s_mov_b64 exec, 0xffff
            buffer_store_dword v2, v3, s[{R_WS}:{R_WS+3}], s70 offen
            s_mov_b64 exec, -1""")
        a("L_end:\ns_endpgm")
        for f in getattr(self, 'ool', []): f()

    def build(self):
        import k2
        self.start_phase()
        if self.stop != 'p1':
            k2.rest(self)
        self.epoch_update()
        self.finish()
        return self.module()

    def module(self):
        hdr = open(f"cdna_kernels/{NAME}.s.ref").read().split("; @launch")[0]
        kn = NAME + "_kernel"
        return hdr + f"""; @launch grid=(256,1,1) block=(256,1,1) lds={LDS_SIZE}
.amdgcn_target "amdgcn-amd-amdhsa--gfx950"
.text
.globl {kn}
.p2align 8
.type {kn},@function
{kn}:
{self.a.text()}.section .rodata,"a"
.p2align 6
.amdhsa_kernel {kn}
  .amdhsa_next_free_vgpr 512
  .amdhsa_next_free_sgpr 102
  .amdhsa_accum_offset 256
  .amdhsa_group_segment_fixed_size 0
  .amdhsa_kernarg_size 112
  .amdhsa_user_sgpr_count 2
  .amdhsa_user_sgpr_kernarg_segment_ptr 1
  .amdhsa_system_sgpr_workgroup_id_x 1
.end_amdhsa_kernel
"""

if __name__ == "__main__":
    import argparse
    ap = argparse.ArgumentParser()
    ap.add_argument("-o", default="out.s")
    ap.add_argument("--stamps", default=None)
    ap.add_argument("--stop", default=None)
    ap.add_argument("-x", default="")
    ap.add_argument("--probe", default=None)
    ap.add_argument("--nops", action="store_true")
    g = ap.parse_args()
    if g.probe: g.stamps = g.probe
    k = K(stamps=(['start', 'end'] + g.stamps.split(',')) if g.stamps else None, stop=g.stop, x=g.x.split(','), probe=g.probe)
    txt = k.build()
    if g.stamps: txt += "; STAMPS " + " ".join(k.stamp_names) + "\n"
    open(g.o, "w").write(txt)
    if g.nops:
        for n in k.a.nops: print(n)
    print("instructions:", sum(1 for i in k.a.out if i.op), "nop states:", sum(n[1] for n in k.a.nops))
```

```python
import re
from k import *

WS = f"s[{R_WS}:{R_WS+3}]"

def isize(i):
    if not i.op: return 0
    lit = 0
    for o in i.ops:
        if re.fullmatch(r'-?(0x[0-9a-fA-F]+|\d+)', o):
            v = int(o, 0)
            if not (-16 <= v <= 64): lit = 4
    if i.kind in ('mfma', 'vmem', 'ds', 'smem'): return 8
    if i.kind in ('nop', 'wait', 'ctl'): return 4
    if i.kind == 'salu': return 4 + lit
    if i.op.endswith('_e64') or i.op.startswith(('v_cvt_pk_', 'v_pk_', 'v_fma_', 'v_max3', 'v_or3', 'v_lshl_add', 'v_bfe', 'v_and_or', 'v_readlane', 'v_writelane', 'v_accvgpr')) or i.dpp or i.sdwa: return 8
    return 4 + lit

class Slots:
    def __init__(self, n):
        self.n = n; self.s = [[] for _ in range(n)]
    def put(self, pos, item, cap=1):
        while pos < self.n and len(self.s[pos]) >= cap: pos += 1
        assert pos < self.n, "out of slots"
        self.s[pos].append(item); return pos
    def seq(self, pos, items, step=1, cap=1):
        for it in items:
            pos = self.put(pos, it, cap) + step
        return pos
    def spread(self, p0, p1, items):
        free = [p for p in range(p0, p1) if not self.s[p]]
        assert len(free) >= len(items), (len(free), len(items))
        pos = p0
        for n, it in enumerate(items):
            pos = free[n * len(free) // len(items)]
            self.s[pos].append(it)
        return pos + 1
    def run(self, a, pos):
        for it in self.s[pos]:
            if callable(it): it()
            else: a(it)

SB, PB, QB, KB, OB = 16, 48, 64, 96, 144
KVS = list(range(4, 16)) + list(range(20, 24))
def wo_reg(jj, ks):
    n = ks * 7 + jj
    if n < 64: return ar(4 * n, 4)
    if n < 76: return vr(208 + 4 * (n - 64), 4)
    n -= 76
    late = [KB + 16 * 1 + 0, KB + 16 * 1 + 4, KB + 16 * 1 + 8, KB + 16 * 1 + 12,
            KB + 32, KB + 36, KB + 40, KB + 44,
            QB, QB + 4, QB + 8, QB + 12, QB + 16, QB + 20, QB + 24, QB + 28,
            KB, KB + 4, PB, PB + 4, KB + 8, KB + 12]
    return vr(late[n], 4)

WOS = list(range(72, 79))
RC = f"s[{R_C}:{R_C+3}]"
L_WDST = L_OT

def att_srd(k):
    return f"""s_mov_b32 s{R_C}, s{S_WD}
    s_mov_b32 s{R_C+1}, s{S_WD+1}
    s_mov_b32 s{R_C+2}, {1792*896}
    s_mov_b32 s{R_C+3}, 0x20000
    s_bitcmp1_b32 s{sW}, 0
    s_cselect_b32 s{R_A}, s{S_WU}, s{S_WG}
    s_cselect_b32 s{R_A+1}, s{S_WU+1}, s{S_WG+1}
    s_mov_b32 s{R_A+2}, {448*3584}
    s_mov_b32 s{R_A+3}, 0x20000""".split('\n')

def att_pre(k):
    t = f"""v_mov_b32 v248, s{sT}
    s_lshr_b32 s64, s{sI}, 2
    s_lshl_b32 s65, s64, 7
    s_add_u32 s65, s65, {W_FQ}
    v_and_b32 v250, 15, v1
    v_lshl_add_u32 v240, v250, 2, s65
    s_lshl_b32 s65, s{sXC}, 3
    s_add_u32 s65, s65, s{sW}
    s_lshl_b32 s65, s65, 7
    s_add_u32 s65, s65, {W_FQ+56}
    v_and_b32 v251, 1, v1
    v_lshl_add_u32 v241, v251, 2, s65
    v_bfe_u32 v242, v1, 1, 1
    v_lshl_add_u32 v241, v242, 9, v241
    v_lshrrev_b32 v242, 2, v1
    v_cmp_eq_u32 vcc, 4, v242
    s_lshl_b32 s65, s{sW}, 8
    s_add_u32 s65, s65, {W_FK}
    v_cndmask_b32 v240, v240, v241, vcc
    v_bfe_u32 v241, v1, 1, 4
    v_lshlrev_b32 v241, 10, v241
    v_lshl_add_u32 v241, v251, 7, v241
    v_add_u32 v241, s65, v241
    s_mul_i32 s65, s{sW}, 7
    s_lshr_b32 s65, s65, 1
    s_mul_i32 s65, s65, 56
    s_add_u32 s65, s65, {W_FT+FT_WO}
    v_min_u32 v242, 13, v1
    v_lshl_add_u32 v242, v242, 4, s65
    s_mul_i32 s65, s{sW}, 14
    v_add_u32 v243, s65, v250
    v_min_u32 v243, 55, v243
    v_lshlrev_b32 v243, 4, v243
    v_add_u32 v243, {W_FT+FT_NC}, v243
    s_mul_i32 s65, s{sR}, 9363
    s_lshr_b32 s65, s65, 16
    s_mul_i32 s65, s65, 7
    s_sub_u32 s65, s{sR}, s65
    s_mul_i32 s65, s65, 448
    s_add_u32 s65, s65, {W_FT}
    v_subrev_u32 v244, 16, v1
    v_min_u32 v244, 27, v244
    v_cmp_gt_u32 vcc, 16, v1
    v_lshl_add_u32 v244, v244, 4, s65
    v_and_b32 v250, 7, v1
    v_cndmask_b32 v243, v244, v243, vcc
    v_mul_u32_u24 v244, 896, v250
    v_bfe_u32 v245, v1, 3, 2
    v_mul_u32_u24 v245, 56, v245
    v_add_u32 v244, v244, v245
    v_lshrrev_b32 v245, 5, v1
    v_lshl_add_u32 v244, v245, 4, v244
    v_lshlrev_b32 v246, 10, v245
    v_lshrrev_b32 v245, 3, v1
    v_mul_u32_u24 v245, 896, v245
    v_lshl_add_u32 v245, v250, 4, v245
    v_bfe_u32 v250, v1, 2, 2
    v_lshl_add_u32 v246, v250, 7, v246
    v_bfe_u32 v250, v1, 4, 1
    v_lshl_add_u32 v246, v250, 5, v246
    v_lshl_add_u32 v246, v251, 4, v246
    v_bfe_u32 v250, v1, 1, 1
    v_lshl_add_u32 v246, v250, 3, v246
    s_lshl_b32 s80, s{sW}, 11
    s_add_u32 s80, s80, {L_WDST}
    v_add_u32 v246, s80, v246
    s_mul_i32 s65, s{sI}, 9363
    s_lshr_b32 s65, s65, 16
    s_mul_i32 s66, s65, 7
    s_sub_u32 s66, s{sI}, s66
    s_lshl_b32 s65, s65, 2
    s_add_u32 s65, s65, s{sW}
    s_mul_i32 s68, s65, {16*896}
    s_lshl_b32 s69, s66, 7
    s_add_u32 s68, s68, s69
    s_mul_i32 s66, s66, 112
    s_add_u32 s66, s66, s65
    s_lshl_b32 s69, s66, 11
    s_add_u32 s69, s69, {W_WD}
    s_lshl_b32 s65, s{sI}, 2
    s_add_u32 s79, s65, {W_FT+FT_NC}
    s_add_u32 s65, s65, s{sW}
    s_cmp_lt_u32 s{sI}, 196
    s_cselect_b32 s66, s66, s65
    s_cselect_b32 s68, s68, {OOB}
    s_cselect_b32 s69, s69, {OOB}
    s_cmp_eq_u32 s67, 3
    s_cselect_b32 s79, s79, {OOB}
    s_lshl_b32 s66, s66, 2
    s_add_u32 s66, s66, {W_FT}
    v_mov_b32 v247, {OOB}
    v_writelane_b32 v247, s66, 0
    v_writelane_b32 v247, s79, 1
    v_add_u32 v2, 4096, v13
    v_add_u32 v3, 8192, v13
    v_add_u32 v4, 12288, v13
    s_mul_i32 s65, s{sI}, {8*896}
    s_add_u32 s65, s65, {W_Q}
    s_lshl_b32 s66, s64, 12
    s_add_u32 s66, s66, {W_KVL}
    s_lshl_b32 s79, s{sW}, 12
    s_add_u32 s79, s79, {W_KV}
    s_lshl_b32 s64, s{sXC}, 15""".split('\n')
    t0, t = t, []
    for j in range(16):
        t.append(f"s_add_u32 s{KVS[j]}, s64, s79")
        if j < 2: t.append(f"s_add_u32 s{KVS[j]}, s{KVS[j]}, {W_KVL-W_KV}")
        if j < 15: t.append("s_add_u32 s64, s64, 0x4000")
        if j < 15 and j & 1: t.append("s_and_b32 s64, s64, 0x3ffff")
    for q in range(3):
        t += f"""v_add_u32 v250, {64*q}, v1
        v_mul_u32_u24 v251, 10923, v250
        v_lshrrev_b32 v251, 16, v251
        v_mul_u32_u24 v249, 6, v251
        v_sub_u32 v250, v250, v249
        v_mul_u32_u24 v251, 3584, v251
        v_lshl_add_u32 v{6+q}, v250, 4, v251""".split('\n')
        if q: t.append(f"v_subrev_u32 v{6+q}, {1024*q}, v{6+q}")
    return t0, t

def chk4(a, r):
    a(f"""v_xor_b32 v{r}, s{sT}, v{r}
    v_xor_b32 v{r+1}, s{sT}, v{r+1}
    v_xor_b32 v{r+2}, s{sT}, v{r+2}
    v_or3_b32 v{r}, v{r}, v{r+1}, v{r+2}
    v_xor_b32 v{r+3}, s{sT}, v{r+3}
    v_or_b32 v{r}, v{r}, v{r+3}
    v_cmp_ne_u32 vcc, 0, v{r}""")

def late_check(k, name, load, check):
    a = k.a
    def item():
        check()
        a(f"s_cbranch_vccnz L_{name}_w\nL_{name}_ok:")
    def far():
        a.set_state(([], []))
        a(f"L_{name}_w:")
        k.poll(name, lambda: a(load), check)
        a(f"s_branch L_{name}_ok")
    k.ool.append(far)
    return item

def attention(k):
    a = k.a
    a.section = 'att_pre'
    chk1 = lambda: a(f"v_cmp_ne_u32 vcc, s{sT}, v9")
    k.stamp('d2poll')
    k.poll('d2a', lambda: a(f"buffer_load_dword v9, v240, {WS}, 0 offen sc1"), chk1)
    k.stamp('d2done')
    a("L_att_q:")
    a(f"""buffer_load_dwordx4 {vr(KB+32,4)}, v13, {WS}, s66 offen sc1
    buffer_load_dwordx4 {vr(KB+36,4)}, v13, {WS}, s66 offen offset:1024 sc1""")
    for s in range(4):
        a(f"""s_add_u32 s70, s{sW}, {1+s}
        s_and_b32 s70, s70, 3
        s_mul_i32 s70, s70, 224
        s_add_u32 s70, s70, s65
        buffer_load_dwordx4 {vr(QB+8*s,4)}, v244, {WS}, s70 offen sc1
        buffer_load_dwordx4 {vr(QB+8*s+4,4)}, v244, {WS}, s70 offen offset:32 sc1""")
    def kvload(j, part, sreg=None):
        r = KB + 16 * (j % 3) + 4 * part
        return f"buffer_load_dwordx4 {vr(r,4)}, v13, {WS}, s{KVS[j] if sreg is None else sreg} offen offset:{1024*part} sc1"
    a(f"s_cmp_lg_u32 s{sFB}, 0\ns_cbranch_scc1 L_truemax")
    for j in range(2):
        for part in range(4): a(kvload(j, part))
    wofl = f"buffer_load_dwordx4 v[252:255], v242, {WS}, 0 offen sc1"
    a(wofl)
    a("s_cmp_ge_u32 s76, 14")
    with a.guard('fk', 's_cbranch_scc0'):
        a(f"""s_lshr_b32 s70, s{sI}, 2
        s_lshl_b32 s70, s70, 1
        s_add_u32 s70, s70, s76
        s_lshl_b32 s70, s70, 7
        s_add_u32 s70, s70, {W_FK-14*128}
        s_mov_b64 exec, 1
        buffer_store_dword v248, off, {WS}, s70 sc1
        s_mov_b64 exec, -1""")
    a("s_cmp_eq_u32 s67, 3")
    with a.guard('ncst', 's_cbranch_scc0'):
        a(f"""v_lshlrev_b32 v9, 2, v1
        s_lshl_b32 s70, s{sI}, 5
        s_add_u32 s70, s70, {W_MODN}
        s_mov_b64 exec, 0xff
        buffer_store_dword v{k.NCV}, v9, {WS}, s70 offen sc1
        s_mov_b64 exec, -1""")
    def main_setup():
        a(f"""s_and_b32 s70, s{sW}, 1
        s_mul_i32 s71, s{sW}, 7
        s_add_u32 s72, s71, s70
        s_mul_i32 s72, s72, 14336
        s_add_u32 s72, s72, {W_WO}
        s_mul_i32 s78, s70, 6
        s_sub_u32 s78, s71, s78
        s_add_u32 s78, s78, 6
        s_mul_i32 s78, s78, 14336
        s_add_u32 s78, s78, {W_WO}""")
        for jj in range(1, 6): a(f"s_add_u32 s{72+jj}, s{71+jj}, 14336")
        a(f"""s_lshr_b32 s71, s{sW}, 1
        s_mul_i32 s64, s71, {224*3584}
        s_and_b32 s81, s{sI}, 15
        s_mul_i32 s81, s81, 96
        s_add_u32 s64, s64, s81
        s_mul_i32 s70, s70, {GU0}
        s_mul_i32 s71, s71, {224*96}
        s_add_u32 s81, s70, s71
        s_mov_b32 m0, s80""")
        for s in range(3):
            a(f"""s_add_u32 s70, s{sW}, {1+s}
            s_and_b32 s70, s70, 3
            s_mul_i32 s70, s70, 12288
            s_add_u32 s70, s70, {L_OS+4096*s}
            v_add_u32 v{10+s}, s70, v13""")
        a(f"""s_add_u32 s70, s68, {8*896-1024}
        s_mul_i32 s71, s{sW}, 1792""")
    main_setup()
    for s in range(4):
        d = OB + 16 * s
        a(f"""v_mfma_f32_32x32x16_bf16 {vr(d,16)}, {vr(KB+32,4)}, {vr(QB+8*s,4)}, 0
        s_mov_b32 exec_lo, 0
        v_mov_b32 v{QB+8*s+6}, 0
        v_mov_b32 v{QB+8*s+7}, 0
        s_mov_b32 exec_lo, -1
        v_mfma_f32_32x32x16_bf16 {vr(d,16)}, {vr(KB+36,4)}, {vr(QB+8*s+4,4)}, {vr(d,16)}""")
    a("s_mov_b32 exec_lo, 0")
    for s in range(4):
        d = OB + 16 * s
        a(f"v_max3_f32 v{d}, v{d}, v{d+1}, v{d+2}")
        for r in range(3, 15, 2): a(f"v_max3_f32 v{d}, v{d}, v{d+r}, v{d+r+1}")
        a(f"""v_max_f32 v{d}, v{d}, v{d+15}
        v_sub_f32 v{d}, {f32(-32.0):#x}, v{d}
        v_cvt_pk_bf16_f32 v{QB+8*s+6}, v{d}, 0""")
    a("s_mov_b32 exec_lo, -1")
    a("L_att_main:")
    sl = Slots(256)
    P = lambda u, g: 4 * u + g
    FKP, FKC = k.par('fkp', 1), k.par('fkc', 4)
    fkl = f"buffer_load_dword v9, v241, {WS}, 0 offen sc1"
    sl.put(P(FKP, 0), fkl)
    pos = sl.put(P(FKC, 0), late_check(k, 'fk', fkl, chk1))
    for j in range(1, 16):
        r = KB + 16 * (j % 3)
        sl.put(P(4*j-2, 3), lambda r=r: a.need([f"v{x}" for x in range(r, r+8)]), cap=2)
    for j in range(0, 16):
        r = KB + 16 * (j % 3) + 8
        sl.put(P(4*j+1, 1), lambda r=r: a.need([f"v{x}" for x in range(r, r+8)]), cap=2)
    pos = sl.seq(pos, [kvload(2, 0) + "\n" + kvload(2, 1)], cap=2)
    pos = sl.seq(pos, [kvload(2, 2), kvload(2, 3)])
    for j in range(0 if 'nokv' in k.x else 13):
        sl.seq(max(pos, P(4*j+3, 0)), [kvload(j+3, 0), kvload(j+3, 1)])
        sl.seq(max(pos, P(4*j+5, 2)), [kvload(j+3, 2), kvload(j+3, 3)])
    pwo = sl.put(P(1, 2), late_check(k, 'wofl', wofl, lambda: chk4(a, 252)))
    ids = {}
    def wdd(): ids['wd'] = a(f"buffer_load_dwordx4 v245, {RC}, s70 offen offset:1024 lds")
    pos = sl.seq(P(7, 0), [f"buffer_load_dwordx4 v245, {RC}, s68 offen lds", wdd, f"s_add_u32 m0, s81, {L_X0}"])
    pdma = pos
    pos = sl.seq(P(16, 0), [lambda: a.wait_vm(ids['wd'])] +
                 [f"ds_read_b64_tr_b16 {ar(248+4*sub+2*u,2)}, v246 offset:{512*u+64*sub}" for sub in range(2) for u in range(2)])
    def wds(): ids['wds'] = a(f"buffer_store_dwordx4 a[252:255], v13, {WS}, s69 offen offset:1024 sc1")
    pos = sl.seq(pos + 2, [lambda: a.wait_lg(), f"buffer_store_dwordx4 a[248:251], v13, {WS}, s69 offen sc1", wds])
    def ftf():
        a.wait_vm(ids['wds'])
        a(f"buffer_store_dword v248, v247, {WS}, 0 offen sc1")
    sl.put(P(28, 0), ftf)
    ftl = f"buffer_load_dwordx4 v[252:255], v243, {WS}, 0 offen sc1"
    sl.put(P(40, 0), ftl)
    pft = sl.put(P(46, 0), late_check(k, 'ftfl', ftl, lambda: chk4(a, 252)))
    def wol(jj, ks): return f"buffer_load_dwordx4 {wo_reg(jj,ks)}, v{(13,2,3,4)[ks//4]}, {WS}, s{WOS[jj]} offen offset:{(ks%4)*1024} sc1"
    won = lambda n: wol(n % 7, n // 7)
    dma = []
    for g in range(7):
        for q in range(3): dma.append(f"buffer_load_dwordx4 v{6+q}, s[{R_A}:{R_A+3}], s64 offen offset:{1024*q} lds")
        if g < 6: dma.append(f"s_add_u32 m0, m0, 3072\ns_add_u32 s64, s64, {32*3584}")
    if 'nodma' in k.x: dma = []
    pos = sl.spread(pdma, P(50, 0), dma)
    pos = sl.seq(max(pos, pft + 1), [f"s_add_u32 m0, s71, {L_MODN}\ns_add_u32 s71, s71, {W_MODN}",
                  f"buffer_load_dwordx4 v13, {WS}, s71 offen sc1 lds", f"buffer_load_dwordx4 v13, {WS}, s71 offen offset:1024 sc1 lds"])
    if 'nowo' not in k.x:
        pos = sl.spread(pwo + 1, P(52, 0), [won(n) for n in list(range(62)) + list(range(64, 72))])
        pos = sl.seq(max(pos, pft + 1), [won(n) for n in (62, 63, 72, 73, 74, 75)])
    assert pos <= P(57, 0), pos
    late_items = lambda ns: [won(76 + n) for n in ns]
    sl.seq(P(57, 0), late_items([0, 1, 2, 3]))
    sl.seq(P(59, 0), late_items([4, 5]))
    sl.seq(P(60, 0), late_items([8, 9]))
    sl.seq(P(61, 0), late_items([6, 7, 10, 11]))
    def owr(s, q): return f"ds_write_b128 v{10+s}, {vr(OB+16*s+4*q,4)} offset:{1024*q}"
    sl.seq(P(62, 1), [owr(0, q) for q in range(4)], step=0, cap=2)
    a.section = 'att'
    def QK(u, h):
        j, s = divmod(u, 4); d = vr(SB + 16 * (u & 1), 16)
        a(f"v_mfma_f32_32x32x16_bf16 {d}, {vr(KB+16*(j%3)+4*h,4)}, {vr(QB+8*s+4*h,4)}, {d if h else '0'}")
    def PV(u, h):
        j, s = divmod(u, 4); d = vr(OB + 16 * s, 16)
        a(f"v_mfma_f32_32x32x16_bf16 {d}, {vr(KB+16*(j%3)+8+4*h,4)}, {vr(PB+8*(u&1)+4*h,4)}, {'0' if (j == 0 and h == 0) else d}")
    QK(0, 0); QK(0, 1)
    a("s_nop 10\n.p2align 3")
    k.stamp('att')
    for u in range(64):
        S, Pc = SB + 16 * (u & 1), PB + 8 * (u & 1)
        for g in range(4):
            n0 = len(a.out)
            if g < 2 and u < 63: QK(u + 1, g)
            if g >= 2 and u > 0: PV(u - 1, g - 2)
            sl.run(a, P(u, g))
            odd = sum(isize(i) for i in a.out[n0:]) % 8
            for e in range(4):
                r = S + 4 * g + e
                a(f"v_exp_f32{'_e64' if (odd and e == 1) else ''} v{r}, v{r}")
            a(f"v_cvt_pk_bf16_f32 v{Pc+2*g}, v{S+4*g}, v{S+4*g+1}\nv_cvt_pk_bf16_f32 v{Pc+2*g+1}, v{S+4*g+2}, v{S+4*g+3}")
    a.section = 'att_post'
    PV(63, 0)
    for q in range(4): a(owr(1, q))
    PV(63, 1)
    for q in range(4): a(owr(2, q))
    for it in late_items([12, 13, 14, 15, 16, 17, 18, 19, 20, 21]): a(it)
    k.stamp('attend')
    k.ool.append(lambda: truemax(k, kvload, main_setup))

def truemax(k, kvload, main_setup):
    a = k.a
    a.set_state(([], []))
    a.section = 'truemax'
    M = PB
    a("L_truemax:\ns_waitcnt vmcnt(0)\ns_mov_b32 exec_lo, 0")
    for s in range(4): a(f"v_mov_b32 v{QB+8*s+6}, 0\nv_mov_b32 v{QB+8*s+7}, 0")
    a("s_mov_b32 exec_lo, -1")
    for s in range(4): a(f"v_mov_b32 v{M+s}, 0xff800000")
    a(f"s_mov_b32 s70, s79\nL_tm_loop:")
    a(kvload(0, 0, 70)); a(kvload(0, 1, 70))
    for s in range(4):
        d = OB + 16 * s
        a(f"""v_mfma_f32_32x32x16_bf16 {vr(d,16)}, {vr(KB,4)}, {vr(QB+8*s,4)}, 0
        v_mfma_f32_32x32x16_bf16 {vr(d,16)}, {vr(KB+4,4)}, {vr(QB+8*s+4,4)}, {vr(d,16)}""")
    for s in range(4):
        d = OB + 16 * s
        for r in range(0, 16, 2): a(f"v_max3_f32 v{M+s}, v{M+s}, v{d+r}, v{d+r+1}")
    a(f"s_add_u32 s70, s70, 0x4000\ns_cmp_lt_u32 s70, {W_KV+0x40000}\ns_cbranch_scc1 L_tm_loop")
    a(f"""v_and_b32 v10, 31, v1
    v_lshlrev_b32 v10, 4, v10
    s_lshl_b32 s71, s{sW}, 2""")
    for s in range(4):
        a(f"""v_mov_b32 v{M+4}, v{M+s}
        v_permlane32_swap_b32 v{M+4}, v{M+s}
        v_max_f32 v{M+s}, v{M+s}, v{M+4}
        s_add_u32 s70, s{sW}, {1+s}
        s_and_b32 s70, s70, 3
        s_lshl_b32 s70, s70, 9
        s_add_u32 s70, s70, {L_TST}
        v_add_u32 v{M+8+s}, s70, v10
        v_add_u32 v11, s71, v{M+8+s}
        ds_write_b32 v11, v{M+s}""")
    k.barrier()
    for s in range(4): a(f"ds_read_b128 {vr(OB+4*s,4)}, v{M+8+s}")
    a("s_mov_b32 exec_lo, 0")
    for s in range(4):
        d = OB + 4 * s
        a(f"""v_max3_f32 v{d}, v{d}, v{d+1}, v{d+2}
        v_max_f32 v{d}, v{d}, v{d+3}
        v_and_b32 v{d+1}, s{sMASK}, v{d}
        v_sub_f32 v{d}, v{d}, v{d+1}
        v_and_b32 v{d+2}, s{sMASK}, v{d}
        v_sub_f32 v{d}, v{d}, v{d+2}
        v_cvt_pk_bf16_f32 v{QB+8*s+6}, -v{d+1}, -v{d+2}
        v_cvt_pk_bf16_f32 v{QB+8*s+7}, -v{d}, 0""")
    a("s_mov_b32 exec_lo, -1")
    for j in range(2):
        for part in range(4): a(kvload(j, part))
    for r in range(252, 256): a(f"v_mov_b32 v{r}, s{sT}")
    main_setup()
    a.wait_all()
    a("s_branch L_att_main")

def outproj(k):
    a = k.a
    a.section = 'ored'
    O = OB + 48
    a(f"""s_mul_i32 s70, s{sW}, 12288
    s_add_u32 s70, s70, {L_OS}
    v_add_u32 v10, s70, v13
    v_and_b32 v14, 7, v1
    v_mul_u32_u24 v12, 912, v14
    v_bfe_u32 v11, v1, 3, 2
    v_mul_u32_u24 v11, 56, v11
    v_add_u32 v11, v11, v12
    v_lshrrev_b32 v15, 5, v1
    v_lshl_add_u32 v11, v15, 4, v11
    s_mul_i32 s70, s{sW}, 224
    s_add_u32 s70, s70, {L_OT}
    v_add_u32 v11, s70, v11
    v_lshrrev_b32 v15, 4, v1
    v_lshl_add_u32 v12, v15, 4, v12
    v_add_u32 v12, {L_OT}, v12
    v_mul_u32_u24 v14, 896, v14
    v_lshl_add_u32 v14, v15, 4, v14
    s_and_b32 s70, s{sW}, 1
    s_mul_i32 s71, s{sW}, 7
    s_add_u32 s72, s71, s70
    s_lshr_b32 s72, s72, 1
    s_lshr_b32 s73, s{sW}, 1
    s_mul_i32 s73, s73, 7
    s_add_u32 s73, s73, 3
    s_lshl_b32 s74, s72, 6
    s_lshl_b32 s75, s73, 6
    s_lshl_b32 s70, s70, 3
    s_add_u32 s75, s75, s70
    s_mul_i32 s76, s{sI}, {8*896}
    s_add_u32 s77, s76, s75
    s_add_u32 s76, s76, s74""")
    XV = 32
    k.barrier()
    k.stamp('obar')
    for s in range(3):
        for q in range(4): a(f"ds_read_b128 {vr(OB+16*s+4*q,4)}, v10 offset:{4096*s+1024*q}")
    for s in range(3):
        for q in range(8): a(f"v_pk_add_f32 {vr(O+2*q,2)}, {vr(O+2*q,2)}, {vr(OB+16*s+2*q,2)}")
    a(f"""v_mov_b32 v16, v{O+12}
    v_mov_b32 v17, v{O+12}
    v_mov_b32 v18, 0
    v_mov_b32 v19, 0
    v_permlane32_swap_b32 v16, v17
    s_mov_b32 s78, {f32(2.0**-60):#x}
    s_mov_b32 s79, {f32(2.0**60):#x}
    v_rcp_f32 v16, v17
    v_cmp_nle_f32 s[80:81], s78, v17
    v_cmp_nge_f32 vcc, s79, v17""")
    for q in range(8): a(f"v_pk_mul_f32 {vr(O+2*q,2)}, {vr(O+2*q,2)}, v[16:17] op_sel_hi:[1,0]")
    a("s_or_b64 s[80:81], s[80:81], vcc")
    for q in range(8): a(f"v_cvt_pk_bf16_f32 v{20+q}, v{O+2*q}, v{O+2*q+1}")
    a(f"""ds_write_b64 v11, v[20:21]
    ds_write_b64 v11, v[22:23] offset:8
    ds_write_b64 v11, v[24:25] offset:32
    s_mov_b32 exec_hi, 0
    ds_write_b64 v11, v[26:27] offset:40
    s_mov_b32 exec_hi, -1""")
    for q in range(8): a(f"v_pk_fma_f32 v[18:19], {vr(O+2*q,2)}, 0, v[18:19] op_sel_hi:[1,0,1]")
    a(f"""v_cmp_u_f32 vcc, v18, v19
    s_lshl_b32 s78, s{sW}, 2
    s_add_u32 s78, s78, {L_MISC}
    v_mov_b32 v18, s78
    s_or_b64 s[80:81], s[80:81], vcc
    s_cselect_b32 s79, 1, 0
    v_mov_b32 v19, s79
    ds_write_b32 v18, v19
    v_mov_b32 v18, {L_MISC}""")
    k.barrier()
    a.section = 'oproj'
    k.stamp('otile')
    BF = OB
    ACC = 16
    a("ds_read_b128 v[44:47], v18")
    for ks in range(14): a(f"ds_read_b128 {vr(BF+4*ks,4)}, v12 offset:{64*ks}")
    XR = 56
    xr = [56, 60, 200]
    for p in range(3): a(f"buffer_load_dwordx4 {vr(xr[p],4)}, v14, s[{R_X}:{R_X+3}], s76 offen offset:{64*p}")
    a(f"buffer_load_dwordx2 v[204:205], v14, s[{R_X}:{R_X+3}], s77 offen")
    a(f"""v_lshlrev_b32 v10, 5, v15
    s_lshl_b32 s78, s74, 1
    s_lshl_b32 s79, s75, 1
    s_add_u32 s78, s78, {L_MODN}
    s_add_u32 s79, s79, {L_MODN}
    v_add_u32 v11, s79, v10
    v_add_u32 v10, s78, v10""")
    GA = BF
    def modread(dst, off):
        return [f"ds_read_b128 {vr(dst+4*q,4)}, v10 offset:{off+128*(q>>1)+16*(q&1)}" for q in range(6)] + [f"ds_read_b128 {vr(dst+24,4)}, v11 offset:{off}"]
    ga = modread(GA, 0)
    for ks in range(14):
        for jj in range(7):
            d = vr(ACC + 4 * jj, 4)
            a(f"v_mfma_f32_16x16x32_bf16 {d}, {wo_reg(jj,ks)}, {vr(BF+4*ks,4)}, {'0' if ks == 0 else d}")
            if ks == 8: a(ga[jj])
    a(f"""v_or3_b32 v44, v44, v45, v46
    v_or_b32 v44, v44, v47
    s_nop 0
    v_readfirstlane_b32 s78, v44
    s_andn2_b32 s78, s78, s{sFB}
    s_cbranch_scc1 L_fallback""")
    def fb():
        a.set_state(([], []))
        a(f"L_fallback:\ns_mov_b32 s{sFB}, 1\ns_waitcnt vmcnt(0) lgkmcnt(0)\ns_nop 7")
        for ln in sum(att_pre(k), []): a(ln)
        a("s_branch L_att_q")
    k.ool.append(fb)
    a.section = 'ln2'
    k.stamp('oproj')
    XF, CB, SBv = 208, 64, 96
    src = [56, 57, 58, 59, 60, 61, 62, 63, 200, 201, 202, 203, 204, 205]
    for q, r in enumerate(src): a(f"v_lshlrev_b32 v{XF+2*q}, 16, v{r}\nv_and_b32 v{XF+2*q+1}, s{sMASK}, v{r}")
    for it in modread(CB, 3584) + modread(SBv, 1792): a(it)
    for q in range(14): a(f"v_pk_fma_f32 {vr(ACC+2*q,2)}, {vr(ACC+2*q,2)}, {vr(GA+2*q,2)}, {vr(XF+2*q,2)}")
    def xg(r):
        a(f"""v_mov_b32 v{r+1}, v{r}
        s_nop 0
        v_permlane32_swap_b32 v{r}, v{r+1}
        v_add_f32 v{r}, v{r}, v{r+1}
        v_mov_b32 v{r+1}, v{r}
        s_nop 0
        v_permlane16_swap_b32 v{r}, v{r+1}
        v_add_f32 v{r}, v{r}, v{r+1}""")
    a(f"v_pk_add_f32 v[44:45], {vr(ACC,2)}, {vr(ACC+2,2)}\nv_pk_add_f32 v[46:47], {vr(ACC+4,2)}, {vr(ACC+6,2)}")
    for q in range(4, 14): a(f"v_pk_add_f32 {vr(44+2*(q&1),2)}, {vr(44+2*(q&1),2)}, {vr(ACC+2*q,2)}")
    a("v_pk_add_f32 v[44:45], v[44:45], v[46:47]\nv_add_f32 v44, v44, v45")
    X1 = 128
    xg(44)
    a(f"v_mul_f32 v48, {f32(1/112):#x}, v44")
    for q in range(14): a(f"v_pk_add_f32 {vr(XF+2*q,2)}, {vr(ACC+2*q,2)}, v[48:49] op_sel_hi:[1,0] neg_lo:[0,1] neg_hi:[0,1]")
    a(f"v_pk_mul_f32 v[44:45], {vr(XF,2)}, {vr(XF,2)}\nv_pk_mul_f32 v[46:47], {vr(XF+2,2)}, {vr(XF+2,2)}")
    for q in range(2, 14): a(f"v_pk_fma_f32 {vr(44+2*(q&1),2)}, {vr(XF+2*q,2)}, {vr(XF+2*q,2)}, {vr(44+2*(q&1),2)}")
    a("v_pk_add_f32 v[44:45], v[44:45], v[46:47]\nv_add_f32 v49, v44, v45")
    xg(49)
    a(f"""v_and_b32 v12, 7, v1
    v_lshlrev_b32 v11, 5, v12
    v_add_u32 v11, {L_MISC+64}, v11
    s_lshl_b32 s78, s{sW}, 3
    v_add_u32 v10, s78, v11
    ds_write_b64 v10, v[48:49]""")
    for q in range(14): a(f"v_cvt_pk_bf16_f32 v{X1+q}, v{ACC+2*q}, v{ACC+2*q+1}")
    k.barrier()
    k.stamp('lnbar')
    a(f"""ds_read_b128 v[52:55], v11
    ds_read_b128 v[56:59], v11 offset:16
    v_lshlrev_b32 v12, 4, v12
    v_lshl_add_u32 v12, v15, 9, v12
    v_mov_b32 v10, {OOB}
    v_and_b32 v11, 8, v1
    v_cmp_eq_u32 vcc, 0, v11
    s_add_u32 s76, s76, {W_X1}
    s_add_u32 s77, s77, {W_X1}
    v_cndmask_b32 v12, v10, v12, vcc
    v_cndmask_b32 v14, v10, v14, vcc
    s_lshr_b32 s78, s{sI}, 2
    s_mul_i32 s78, s78, 28672
    s_and_b32 s79, s{sI}, 3
    s_lshl_b32 s79, s79, 7
    s_add_u32 s78, s78, s79
    s_add_u32 s78, s78, {W_H2}
    s_lshl_b32 s72, s72, 11
    s_lshl_b32 s73, s73, 11
    s_add_u32 s72, s72, s78
    s_add_u32 s73, s73, s78
    s_add_u32 s73, s73, s70
    s_add_u32 s71, s72, 4096""")
    k.st([f"buffer_store_dwordx4 {vr(X1+4*p,4)}, v14, {WS}, s76 offen offset:{64*p}" for p in range(3)] +
         [f"buffer_store_dwordx2 {vr(X1+12,2)}, v14, {WS}, s77 offen"])
    a(f"""v_pk_add_f32 v[44:45], v[52:53], v[54:55]
    v_pk_add_f32 v[46:47], v[56:57], v[58:59]
    v_pk_add_f32 v[44:45], v[44:45], v[46:47]
    v_mul_f32 v44, 0.25, v44
    v_sub_f32 v52, v52, v44
    v_sub_f32 v54, v54, v44
    v_sub_f32 v56, v56, v44
    v_sub_f32 v58, v58, v44
    v_mul_f32 v46, v52, v52
    v_fmac_f32 v46, v54, v54
    v_fmac_f32 v46, v56, v56
    v_fmac_f32 v46, v58, v58
    v_fmac_f32 v45, {f32(112.0):#x}, v46
    v_mov_b32 v46, {f32(1e-5):#x}
    v_fmac_f32 v46, {f32(1/448):#x}, v45
    v_rsq_f32 v46, v46
    v_sub_f32 v48, v48, v44
    v_mul_f32 v47, v48, v46""")
    for q in range(14): a(f"v_pk_fma_f32 {vr(XF+2*q,2)}, {vr(XF+2*q,2)}, v[46:47], v[46:47] op_sel:[0,0,1] op_sel_hi:[1,0,1]")
    H2 = 16
    for p in range(4):
        for q in range(4 * p, min(4 * p + 4, 14)): a(f"v_pk_fma_f32 {vr(XF+2*q,2)}, {vr(XF+2*q,2)}, {vr(CB+2*q,2)}, {vr(SBv+2*q,2)}")
        for q in range(4 * p, min(4 * p + 4, 14)): a(f"v_cvt_pk_bf16_f32 v{H2+q}, v{XF+2*q}, v{XF+2*q+1}")
        if p == 1: k.st([f"buffer_store_dwordx4 {vr(H2+4*t,4)}, v12, {WS}, s72 offen offset:{2048*t}" for t in range(2)])
        if p == 3: last = k.st([f"buffer_store_dwordx4 {vr(H2+8,4)}, v12, {WS}, s71 offen", f"buffer_store_dwordx2 {vr(H2+12,2)}, v12, {WS}, s73 offen"])
    k.stamp('h2st')
    return last

def rest(k):
    import k3
    attention(k)
    last = outproj(k)
    if k.stop == 'att':
        k.a.wait_all()
    else:
        k3.ffn(k, last)
```

```python
from k import *
from k2 import WS, Slots, isize

GU2 = GU0 + 32
HB = 144
AR, NAR = 96, 8
HT = 128
RA = f"s[{R_A}:{R_A+3}]"

def f16_of(kk):
    if kk < 12: return 0, kk
    if kk < 20: return 1, kk - 12
    return 2, kk - 20

def ffn(k, last):
    a = k.a
    a.section = 'd3'
    a(f"""s_lshr_b32 s64, s{sI}, 4
    s_lshl_b32 s64, s64, 2
    s_add_u32 s64, s64, s{sW}
    s_lshl_b32 s70, s64, 7
    v_and_b32 v2, 3, v1
    v_lshrrev_b32 v3, 2, v1
    v_mul_u32_u24 v3, 3584, v3
    v_lshl_add_u32 v3, v2, 4, v3
    v_and_b32 v2, 15, v1
    v_lshl_add_u32 v2, v2, 2, s70
    s_and_b32 s65, s{sI}, 15
    s_and_b32 s70, s{sW}, 1
    s_lshr_b32 s71, s{sW}, 1
    s_mul_i32 s66, s71, {224*3584}
    s_lshl_b32 s72, s65, 6
    s_add_u32 s66, s66, s72
    s_add_u32 s67, s66, {2*1280}
    s_add_u32 s66, s66, {2*768}
    s_mul_i32 s71, s71, {224*64}
    s_mul_i32 s72, s70, {GU1}
    s_mul_i32 s68, s70, {GU2}
    s_add_u32 s72, s72, s71
    s_add_u32 s68, s68, s71
    s_add_u32 s68, s68, {L_X0}
    s_add_u32 m0, s72, {L_Y}
    s_lshr_b32 s71, s{sI}, 2
    s_lshl_b32 s71, s71, 3
    s_and_b32 s72, s{sI}, 3
    s_add_u32 s71, s71, s72
    s_lshl_b32 s71, s71, 2
    s_add_u32 s71, s71, s{sW}
    s_lshl_b32 s71, s71, 2
    s_add_u32 s71, s71, {W_F3}""")
    k.tr_lane(4, 96, 8, GU0, 10)
    k.tr_lane(5, 64, 8, GU1, 10)
    k.tr_lane(6, 64, 8, GU2, 10)
    a(f"""v_add_u32 v5, {L_Y}, v5
    s_mul_i32 s73, s{sR}, 9363
    s_lshr_b32 s73, s73, 16
    s_mul_i32 s74, s73, 7
    s_sub_u32 s74, s{sR}, s74
    s_lshl_b32 s72, s{sXC}, 2
    s_add_u32 s73, s73, s72
    s_lshl_b32 s72, s70, 10
    s_xor_b32 s75, s72, 1024
    s_cmp_lt_u32 s{sR}, 28
    s_cselect_b32 s72, s72, {OOB}
    s_cselect_b32 s75, s75, {OOB}
    v_add_u32 v7, s72, v13
    v_add_u32 v8, s75, v13
    s_mul_i32 s75, s74, {112*2048}
    s_add_u32 s75, s75, {W_WD}
    s_mul_i32 s76, s{sW}, {12*2048}
    s_add_u32 s76, s76, s75
    s_lshl_b32 s77, s{sW}, 14
    s_add_u32 s77, s77, s75
    s_add_u32 s78, s77, {80*2048}
    s_add_u32 s77, s77, {48*2048}""")
    a(f"v_mov_b32 v10, s{sT}")
    a.wait_vm(last)
    a("s_mov_b64 exec, 1")
    k.st([f"buffer_store_dword v10, off, {WS}, s71"])
    a("s_mov_b64 exec, -1")
    k.stamp('f3')
    dma1 = []
    for p in range(14):
        dma1.append(a(f"buffer_load_dwordx4 v3, {RA}, s66 offen lds"))
        if p < 13: a(f"s_add_u32 m0, m0, 1024\ns_add_u32 s66, s66, {16*3584}")
    a(f"""s_mov_b32 s70, {W_F3}
    s_mul_i32 s69, s64, 28672
    s_add_u32 s69, s69, {W_H2}""")
    k.poll('d3', lambda: a(f"buffer_load_dword v9, v2, {WS}, s70 offen sc1"), lambda: a(f"v_cmp_ne_u32 vcc, s{sT}, v9"))
    k.stamp('d3done')
    for ks in range(28):
        a(f"buffer_load_dwordx4 {vr(HB+4*ks,4)}, v13, {WS}, s69 offen offset:{1024*(ks&3)} sc1")
        if ks & 3 == 3 and ks < 27: a("s_add_u32 s69, s69, 4096")
    a(f"""s_mul_i32 s79, s64, {112*1024}
    s_add_u32 s79, s79, {W_H}
    s_lshl_b32 s70, s65, 11
    s_add_u32 s80, s79, s70
    s_add_u32 s81, s80, {80*1024}
    s_add_u32 s80, s80, {48*1024}
    s_mul_i32 s70, s65, 3072
    s_add_u32 s79, s79, s70
    s_lshl_b32 s4, s64, 5
    s_add_u32 s4, s4, s65
    s_lshl_b32 s4, s4, 2
    s_add_u32 s4, s4, {W_F4}
    s_add_u32 s5, s4, 8192
    s_add_u32 s6, s4, 16384
    s_mov_b32 m0, s68
    v_mov_b32 v10, s{sT}
    v_mov_b32 v11, {OOB}
    v_cmp_eq_u32 vcc, 0, v1
    s_nop 1
    v_cndmask_b32 v11, v11, 0, vcc""")
    a.section = 'g1'
    steps = [(0, ks, t) for ks in range(28) for t in range(3)] + [(p, ks, t) for p in (1, 2) for ks in range(28) for t in range(2)]
    ACC = {0: 16, 1: 64, 2: 16}
    N = len(steps)
    def aread(n):
        p, ks, t = steps[n]
        r = AR + 4 * (n % NAR)
        pitch = 96 if p == 0 else 64
        for u in range(2):
            a(f"ds_read_b64_tr_b16 {vr(r+2*u,2)}, v{4+p} offset:{(16*ks+4*u)*pitch+32*t}")
    sl = Slots(N)
    wd = []
    for kk in range(28):
        st, c = f16_of(kk)
        if c % 2 == 0: wd.append(f"s_add_u32 s69, s{76+st}, {c*2048}")
        for sub in range(2): wd.append(f"buffer_load_dwordx4 {ar(8*kk+4*sub,4)}, v{7+sub}, {WS}, s69 offen offset:{2048*(c%2)} sc1")
    BA, BC, BD = 57, 134, 150
    ids = {}
    def bar_a(): a.wait_vm(dma1[-1]); a("s_barrier")
    sl.put(BA, bar_a)
    d2 = []
    for p in range(14):
        def f(p=p):
            ids['d2'] = a(f"buffer_load_dwordx4 v3, {RA}, s67 offen lds")
            if p < 13: a(f"s_add_u32 m0, m0, 1024\ns_add_u32 s67, s67, {16*3584}")
        d2.append(f)
    sl.seq(BA + 1, d2)
    def bar_c(): a.wait_vm(ids['d2']); a("s_barrier")
    sl.put(BC, bar_c)
    sl.put(BD, "s_barrier")
    def epi(p, t):
        d = ACC[p] + 16 * t; h = HT + 4 * t
        it = []
        for q in range(4):
            it.append(f"""v_max_f32 v{d+2*q}, 0, v{d+2*q}
            v_max_f32 v{d+2*q+1}, 0, v{d+2*q+1}
            v_mul_f32 v{d+2*q}, v{d+2*q}, v{d+8+2*q}
            v_mul_f32 v{d+2*q+1}, v{d+2*q+1}, v{d+9+2*q}
            v_cvt_pk_bf16_f32 v{h+q}, v{d+2*q}, v{d+2*q+1}""")
        def st(): ids[('h', p)] = k.st([f"buffer_store_dwordx4 {vr(h,4)}, v13, {WS}, s{79+p} offen offset:{1024*t}"])
        it.append(st)
        return it
    def hflag(p):
        a.wait_vm(ids[('h', p)])
        k.st([f"buffer_store_dword v10, v11, {WS}, s{4+p} offen"])
    pos = sl.seq(84 + 2, epi(0, 0) + epi(0, 1) + epi(0, 2))
    sl.put(pos + 30, lambda: hflag(0))
    pos = sl.seq(140 + 2, epi(1, 0) + epi(1, 1))
    sl.put(pos + 30, lambda: hflag(1))
    pos = sl.seq(20, wd)
    assert pos < 140, pos
    PF = 5
    for n in range(PF): aread(n)
    k.stamp('g1')
    for n, (p, ks, t) in enumerate(steps):
        d = vr(ACC[p] + 16 * t, 16)
        a(f"v_mfma_f32_32x32x16_bf16 {d}, {vr(AR+4*(n%NAR),4)}, {vr(HB+4*ks,4)}, {'0' if ks == 0 else d}")
        sl.run(a, n)
        if n + PF < N: aread(n + PF)
    for it in epi(2, 0) + epi(2, 1):
        if callable(it): it()
        else: a(it)
    k.stamp('g1end')
    a.section = 'g2'
    a(f"s_cmp_lt_u32 s{sR}, 28\ns_cbranch_scc1 L_g2")
    st = a.state()
    hflag(2)
    a("s_branch L_g2_done\nL_g2:")
    a.set_state(st)
    a(f"""s_lshl_b32 s70, s73, 8
    s_lshl_b32 s71, s{sW}, 4
    s_add_u32 s70, s70, s71
    v_and_b32 v2, 3, v1
    v_lshl_add_u32 v2, v2, 2, s70
    v_bfe_u32 v3, v1, 2, 1
    v_lshl_add_u32 v2, v3, 7, v2
    v_bfe_u32 v3, v1, 3, 1
    v_lshl_add_u32 v3, v3, 13, v2
    s_mov_b32 s7, {W_F4}
    s_mov_b32 s8, {W_F4+16384}
    s_lshr_b32 s70, s{sW}, 1
    s_lshl_b32 s71, s73, 1
    s_add_u32 s64, s71, s70
    s_xor_b32 s65, s64, 1
    s_mul_i32 s66, s64, {32*896}
    s_mul_i32 s64, s64, {112*1024}
    s_mul_i32 s65, s65, {112*1024}
    v_add_u32 v4, s64, v13
    v_add_u32 v5, s65, v13
    s_mul_i32 s76, s{sW}, {12*1024}
    s_add_u32 s76, s76, {W_H}
    s_lshl_b32 s77, s{sW}, 13
    s_add_u32 s78, s77, {W_H+80*1024}
    s_add_u32 s77, s77, {W_H+48*1024}""")
    k.poll('d4a', lambda: a(f"buffer_load_dword v9, v3, {WS}, s7 offen sc1"), lambda: a(f"v_cmp_ne_u32 vcc, s{sT}, v9"), between=lambda: hflag(2))
    k.stamp('d4a')
    G2 = 16
    HR = 80
    def hreg(kk, mi): return vr(HR + 8 * (kk % 20) + 4 * mi, 4)
    def hload(kk):
        stg, c = f16_of(kk)
        if c % 4 == 0: a(f"s_add_u32 s69, s{76+stg}, {c*1024}")
        for mi in range(2): a(f"buffer_load_dwordx4 {hreg(kk,mi)}, v{4+mi}, {WS}, s69 offen offset:{1024*(c%4)} sc1")
    for kk in range(20): hload(kk)
    a(f"""v_and_b32 v6, 31, v1
    v_mul_u32_u24 v6, 896, v6
    v_lshrrev_b32 v7, 5, v1
    v_lshl_add_u32 v6, v7, 4, v6
    s_lshl_b32 s70, s74, 7
    s_and_b32 s71, s{sW}, 1
    s_lshl_b32 s71, s71, 6
    s_add_u32 s70, s70, s71
    s_add_u32 s66, s66, s70
    s_add_u32 s67, s66, {W_X1}
    s_lshl_b32 s70, s70, 1
    s_add_u32 s70, s70, {L_MODN+5376}
    v_lshlrev_b32 v7, 5, v7
    v_add_u32 v7, s70, v7
    buffer_load_dwordx4 v[240:243], v6, {WS}, s67 offen sc1
    buffer_load_dwordx4 v[244:247], v6, {WS}, s67 offen offset:32 sc1""")
    k.srd(R_B, S_OUT, 2048 * 896)
    for s in range(1, 4):
        a(f"""s_xor_b32 s70, s{sW}, {s}
        s_mul_i32 s70, s70, 12288
        s_add_u32 s70, s70, {L_Y+4096*(s-1)}
        v_add_u32 v{247+s}, s70, v13""")
    a(f"""s_mul_i32 s70, s{sW}, 12288
    s_add_u32 s70, s70, {L_Y}
    v_add_u32 v8, s70, v13""")
    def mm(kk, order=(0, 1, 2, 3)):
        for s in order:
            mi, sub = s >> 1, s & 1
            d = vr(G2 + 16 * s, 16)
            a(f"v_mfma_f32_32x32x16_bf16 {d}, {ar(8*kk+4*sub,4)}, {hreg(kk,mi)}, {'0' if kk == 0 else d}")
    for kk in range(12): mm(kk)
    k.poll('d4b', lambda: a(f"buffer_load_dword v9, v2, {WS}, s8 offen sc1"), lambda: a(f"v_cmp_ne_u32 vcc, s{sT}, v9"))
    k.stamp('d4b')
    for kk in range(20, 28): hload(kk)
    for kk in range(12, 27): mm(kk)
    mm(27, (1, 2, 3, 0))
    GB = 144
    for q in range(4): a(f"ds_read_b128 {vr(GB+4*q,4)}, v7 offset:{64*(q>>1)+16*(q&1)}")
    XF = 160
    for q in range(8): a(f"v_lshlrev_b32 v{XF+2*q}, 16, v{240+q}\nv_and_b32 v{XF+2*q+1}, s{sMASK}, v{240+q}")
    for s in range(1, 4):
        for q in range(4): a(f"ds_write_b128 v{247+s}, {vr(G2+16*s+4*q,4)} offset:{1024*q}")
    k.barrier()
    for s in range(1, 4):
        for q in range(4): a(f"ds_read_b128 {vr(G2+16*s+4*q,4)}, v8 offset:{4096*(s-1)+1024*q}")
    for s in range(1, 4):
        for q in range(8): a(f"v_pk_add_f32 {vr(G2+2*q,2)}, {vr(G2+2*q,2)}, {vr(G2+16*s+2*q,2)}")
    for h in range(2):
        for q in range(4 * h, 4 * h + 4): a(f"v_pk_fma_f32 {vr(XF+2*q,2)}, {vr(G2+2*q,2)}, {vr(GB+2*q,2)}, {vr(XF+2*q,2)}")
        for q in range(4 * h, 4 * h + 4): a(f"v_cvt_pk_bf16_f32 v{240+q}, v{XF+2*q}, v{XF+2*q+1}")
        a(f"buffer_store_dwordx4 {vr(240+4*h,4)}, v6, s[{R_B}:{R_B+3}], s66 offen offset:{32*h}")
    a("L_g2_done:")
```

```python
import sys, struct, math
sys.path.insert(0, "gen")
from fw import Asm, Ins

NAME = "adaLN_cond__grouped_kv_mqa__glu_gated_reglu__prompt"
def f32(x): return struct.unpack('<I', struct.pack('<f', x))[0]
def vr(b, n=1, k='v'): return f"{k}{b}" if n == 1 else f"{k}[{b}:{b+n-1}]"
def ar(b, n=1): return vr(b, n, 'a')
def sr(b, n=1): return vr(b, n, 's')

W_EPOCH = 0
W_XID = 0x400
W_FT = 0x1000
FT_WO, FT_NC = 4096, 5120
W_FQ = 0x4000
W_F3 = 0x6000
W_F4 = 0x8000
W_FK = 0x10000
W_MODC = 0x18000
W_MODN = 0x20000
W_KV = 0x40000
W_KVL = 0x80000
W_Q = 0x100000
W_X1 = 0x300000
W_H2 = 0x500000
W_WO = 0x700000
W_WD = 0x800000
W_H = 0xA00000
W_STAMP = 0x1200000
W_SIZE = 0x2000000
OOB = 0x7000_0000
L_WST = 0
L_HT = 114688
L_P0 = L_HT
L_SILU = L_HT + 4096
L_WOST = L_HT + 8192
L_MODL = 143872
L_MODN = 147456
L_TST = 154624
L_MISC = 162816
L_X0 = 0
GU0 = 43008 + 128
L_Y = 86272
GU1 = 28672 + 32
L_OS = L_Y
L_OT = L_Y + 49152
LDS_SIZE = 163840
S_X, S_WQ, S_WK, S_WV, S_WO, S_WG, S_WU, S_WD, S_C, S_WM, S_OUT, S_DBG, S_WS = 4, 6, 8, 10, 12, 16, 18, 20, 22, 24, 26, 28, 30
R_WS, R_X, R_A, R_B, R_C = 32, 36, 40, 44, 48
sI, sW, sT, sXC, sR = 52, 53, 54, 55, 56
sT0 = 57
sMASK = 61
sCNT = 62
sFB = 63
sLOC, sE = 2, 3
s0 = 64
S_STAMP = 82
POLL_LIMIT = 20000

class K:
    def __init__(self, stamps=False, stop=None, x=(), probe=None):
        self.x = set(x); self.probe = probe
        self.a = Asm()
        self.stamps = stamps
        self.nstamp = 0
        self.stop = stop
        self.stamp_names = []

    def par(self, name, default):
        for x in self.x:
            if x.startswith(name + '='): return int(x.split('=')[1])
        return default

    def stamp(self, name):
        if not self.stamps or name not in self.stamps: return
        assert self.nstamp < 10
        r = S_STAMP + 2 * self.nstamp
        self.a(f"{'s_memtime' if 'cyc' in self.x else 's_memrealtime'} {sr(r,2)}")
        self.nstamp += 1
        self.stamp_names.append(name)

    def srd(self, r, ptr, size):
        self.a(f"""s_mov_b32 s{r}, s{ptr}
        s_mov_b32 s{r+1}, s{ptr+1}
        s_mov_b32 s{r+2}, {size}
        s_mov_b32 s{r+3}, 0x20000""")

    def barrier(self):
        self.a.wait_lg()
        self.a("s_barrier")

    def prologue(self):
        a = self.a
        a.section = 'prologue'
        a(f"""s_cmp_ge_u32 s2, 256
        s_cbranch_scc1 L_end
        s_load_dwordx4 s[28:31], s[0:1], 96
        s_load_dwordx8 s[20:27], s[0:1], 64
        s_load_dwordx16 s[4:19], s[0:1], 0""")
        self.stamp('start')
        a(f"""v_lshrrev_b32 v2, 6, v0
        v_and_b32 v1, 63, v0
        s_and_b32 s{sXC}, s2, 7
        v_readfirstlane_b32 s{sW}, v2
        s_lshr_b32 s{sR}, s2, 3
        s_lshl_b32 s{sI}, s{sXC}, 5
        s_add_u32 s{sI}, s{sI}, s{sR}
        s_mov_b32 s{sMASK}, 0xffff0000
        s_mov_b32 s{sFB}, 0""")

    def p0_setup(self):
        a = self.a
        a(f"""v_lshrrev_b32 v3, 1, v1
        v_and_b32 v4, 1, v1
        v_mul_u32_u24 v3, 5376, v3
        v_lshl_add_u32 v3, v4, 4, v3
        v_min_u32 v4, 55, v1
        s_and_b32 s68, s{sI}, 3
        s_lshr_b32 s69, s{sI}, 2
        s_mul_i32 s70, s68, 224
        v_lshlrev_b32 v2, 4, v4
        v_lshl_add_u32 v4, v4, 2, s70
        s_mul_i32 s64, s68, {112*5376}
        s_lshl_b32 s70, s69, 5
        s_add_u32 s64, s64, s70
        s_movk_i32 s70, 224
        s_cmp_eq_u32 s{sW}, 1
        s_cselect_b32 s70, 196, s70
        s_lshl_b32 s71, s{sW}, 2
        s_lshr_b32 s67, 0x3021, s71
        s_and_b32 s67, s67, 15
        s_cmp_ge_u32 s{sI}, s70
        s_cselect_b32 s67, 0, s67
        s_mov_b32 m0, {L_P0}""")

    def p0_loads(self):
        a = self.a
        a(f"global_load_dword v5, v4, s[{S_C}:{S_C+1}]")
        for p in range(4):
            if p == 3: a("s_mov_b32 exec_hi, 0")
            last = a(f"buffer_load_dwordx4 v3, s[{R_A}:{R_A+3}], s64 offen lds")
            if p < 3: a(f"s_add_u32 m0, m0, 1024\ns_add_u32 s64, s64, {32*5376}")
        a("s_mov_b32 exec_hi, -1")
        return last

    def tagcalc(self):
        self.a(f"""s_and_b32 s70, s{sE}, 0x7f7f7f7f
        s_and_b32 s71, s{sE}, 0x80808080
        s_add_u32 s70, s70, 0x01010101
        s_xor_b32 s{sT}, s70, s71""")

    def silu(self, regs, tmp):
        a = self.a
        for k, r in enumerate(regs): a(f"v_mul_f32 v{tmp+k}, {f32(-math.log2(math.e)):#x}, v{r}")
        for k, r in enumerate(regs): a(f"v_exp_f32 v{tmp+k}, v{tmp+k}")
        for k, r in enumerate(regs): a(f"v_add_f32 v{tmp+k}, 1.0, v{tmp+k}")
        for k, r in enumerate(regs): a(f"v_rcp_f32 v{tmp+k}, v{tmp+k}")
        for k, r in enumerate(regs): a(f"v_mul_f32 v{r}, v{r}, v{tmp+k}")

    def p0_compute(self, last):
        a = self.a
        A0, B0, D = 128, 142, 156
        a(f"""v_lshlrev_b32 v161, 3, v1
        v_lshrrev_b32 v160, 4, v1
        v_lshlrev_b32 v160, 3, v160
        v_lshlrev_b32 v162, 2, v1
        v_add_u32 v161, {L_P0}, v161
        v_add_u32 v160, {L_SILU}, v160
        v_add_u32 v163, {L_SILU}, v162
        v_lshlrev_b32 v6, 16, v5
        v_and_b32 v7, s{sMASK}, v5""")
        self.silu([6, 7], 8)
        a("v_cvt_pk_bf16_f32 v6, v6, v7\nds_write_b32 v163, v6")
        for s in range(7): a(f"ds_read_b64 {vr(A0+2*s,2)}, v160 offset:{32*s}")
        self.tagcalc()
        a(f"""v_and_b32 v6, 3, v1
        v_lshlrev_b32 v6, 3, v6
        v_lshrrev_b32 v6, v6, s{sT}
        v_and_b32 v6, 0xff, v6
        s_lshl_b32 s66, s{sI}, 7
        s_add_u32 s66, s66, {W_MODC}
        s_mov_b32 s71, 0xffffff00""")
        a.wait_vm(last)
        for s in range(7): a(f"ds_read_b64_tr_b16 {vr(B0+2*s,2)}, v161 offset:{512*s}")
        for s in range(7):
            a(f"v_mfma_f32_16x16x16_bf16 {vr(D,4)}, {vr(A0+2*s,2)}, {vr(B0+2*s,2)}, {'0' if s==0 else vr(D,4)}")
        a(f"""s_mov_b64 exec, 0xffff
        v_add_u32 v8, 0x80, v{D}
        v_and_or_b32 v8, v8, s71, v6
        buffer_store_dword v8, v162, s[{R_WS}:{R_WS+3}], s66 offen sc1
        s_mov_b64 exec, -1""")

    def nc_loads(self):
        a = self.a
        a(f"""v_mul_u32_u24 v3, 5376, v1
        s_lshl_b32 s64, s{sI}, 4
        s_add_u32 s64, s64, 1792
        s_mov_b32 m0, {L_TST}""")
        for p in range(7):
            self.nc_last = a(f"buffer_load_dwordx4 v3, s[{R_A}:{R_A+3}], s64 offen lds")
            if p < 6: a(f"s_add_u32 m0, m0, 1024\ns_add_u32 s64, s64, {64*5376}")
        C = 128
        for j in range(4): a(f"v_lshlrev_b32 v{C+2*j}, 16, v{124+j}\nv_and_b32 v{C+2*j+1}, s{sMASK}, v{124+j}")
        self.silu(list(range(C, C + 8)), C + 8)
        for j in range(4): a(f"v_cvt_pk_bf16_f32 v{C+j}, v{C+2*j}, v{C+2*j+1}")
        a(f"v_add_u32 v2, {L_TST+7168}, v2\nds_write_b128 v2, {vr(C,4)}")

    NCV = 15
    def nc_compute(self):
        a = self.a
        A0, B0, D = 128, 184, 112
        a(f"""v_lshrrev_b32 v116, 4, v1
        v_lshlrev_b32 v117, 7, v116
        v_lshlrev_b32 v116, 4, v116
        v_bfe_u32 v118, v1, 2, 2
        v_lshl_add_u32 v117, v118, 4, v117
        v_and_b32 v118, 1, v1
        v_lshl_add_u32 v117, v118, 3, v117
        v_add_u32 v116, {L_TST+7168}, v116
        v_add_u32 v117, {L_TST}, v117""")
        def rd(s):
            a(f"""ds_read_b128 {vr(A0+4*s,4)}, v116 offset:{64*s}
            ds_read_b64_tr_b16 {vr(B0+4*s,2)}, v117 offset:{512*s}
            ds_read_b64_tr_b16 {vr(B0+4*s+2,2)}, v117 offset:{512*s+64}""")
        for s in range(4): rd(s)
        for s in range(14):
            a(f"v_mfma_f32_16x16x32_bf16 {vr(D,4)}, {vr(A0+4*s,4)}, {vr(B0+4*s,4)}, {'0' if s==0 else vr(D,4)}")
            if s + 4 < 14: rd(s + 4)
        a(f"""s_sub_u32 s70, s{sI}, 112
        s_cmp_lt_u32 s70, 56
        s_cselect_b32 s70, 1.0, 0
        v_cvt_pk_bf16_f32 v116, 0, v{D}
        v_add_f32 v116, s70, v116
        v_cvt_pk_bf16_f32 v{self.NCV}, 0, v116""")

    def wo_loads(self):
        a = self.a
        a(f"""s_mul_i32 s70, s{sI}, 9363
        s_lshr_b32 s70, s70, 17
        s_mul_i32 s71, s70, 14
        s_sub_u32 s71, s{sI}, s71
        s_mul_i32 s64, s71, {32*896}
        s_lshl_b32 s72, s70, 6
        s_add_u32 s64, s64, s72
        s_mul_i32 s65, s70, 28
        s_add_u32 s65, s65, s71
        s_lshl_b32 s65, s65, 10
        s_add_u32 s65, s65, {W_WO}
        s_add_u32 s66, s65, {14*1024}
        s_mov_b32 m0, {L_WOST}""")
        self.srd(R_C, S_WO, 401408)
        a(f"""buffer_load_dwordx4 v10, s[{R_C}:{R_C+3}], s64 offen lds
        s_add_u32 m0, m0, 1024
        s_add_u32 s64, s64, {16*896}""")
        return a(f"buffer_load_dwordx4 v10, s[{R_C}:{R_C+3}], s64 offen lds")
    def wo_job(self, last):
        a = self.a
        a(f"""v_lshrrev_b32 v11, 4, v1
        v_bfe_u32 v12, v1, 2, 2
        v_lshl_add_u32 v11, v11, 3, v12
        v_and_b32 v12, 3, v1
        v_lshlrev_b32 v11, 6, v11
        v_lshl_add_u32 v11, v12, 4, v11
        v_add_u32 v11, {L_WOST}, v11""")
        a.wait_vm(last)
        for e in range(2):
            for u in range(2): a(f"ds_read_b64_tr_b16 {vr(128+4*e+2*u,2)}, v11 offset:{256*u+8*e}")
        a(f"""buffer_store_dwordx4 v[128:131], v13, s[{R_WS}:{R_WS+3}], s65 offen sc1
        buffer_store_dwordx4 v[132:135], v13, s[{R_WS}:{R_WS+3}], s66 offen sc1""")

    XR, XH, ACC1 = 16, 48, 112
    def p1_setup(self):
        a = self.a
        a(f"""s_and_b32 s76, s{sI}, 3
        s_lshl_b32 s76, s76, 2
        s_add_u32 s76, s76, s{sW}
        s_cmp_eq_u32 s76, 15
        s_cselect_b32 s{R_B}, s{S_WV}, s{S_WK}
        s_cselect_b32 s{R_B+1}, s{S_WV+1}, s{S_WK+1}
        s_lshl_b32 s79, s76, 6
        s_cmp_lt_u32 s76, 14
        s_cselect_b32 s{R_B}, s{S_WQ}, s{R_B}
        s_cselect_b32 s{R_B+1}, s{S_WQ+1}, s{R_B+1}
        s_mov_b32 s70, 401408
        s_cselect_b32 s{R_B+2}, s70, 25088
        s_mov_b32 s{R_B+3}, 0x20000
        s_cselect_b32 s79, s79, 0
        s_cselect_b32 s70, 896, 56
        s_lshl_b32 s80, s70, 4
        v_lshrrev_b32 v10, 2, v1
        v_and_b32 v11, 3, v1
        v_mul_u32_u24 v10, s70, v10
        v_lshl_add_u32 v10, v11, 4, v10
        v_lshlrev_b32 v13, 4, v1
        v_mov_b32 v14, {OOB}
        v_cmp_gt_u32 vcc, 56, v1
        s_lshr_b32 s77, s{sI}, 2
        s_lshl_b32 s77, s77, 2
        s_add_u32 s77, s77, s{sW}
        s_mul_i32 s77, s77, {8*896}
        v_cndmask_b32 v14, v14, v13, vcc
        s_add_u32 s78, s77, 3584""")

    def x_loads(self):
        a = self.a
        for t in range(8):
            a(f"buffer_load_dwordx4 {vr(self.XR+4*t,4)}, v14, s[{R_X}:{R_X+3}], s{77 if t<4 else 78} offen offset:{(t&3)*896}")

    def w_dma(self):
        a = self.a
        p = len(self.wids)
        if p >= 28: return
        if p == 0: a(f"s_mul_i32 s70, s{sW}, 28672\ns_mov_b32 m0, s70")
        self.wids.append(a(f"buffer_load_dwordx4 v10, s[{R_B}:{R_B+3}], s79 offen lds"))
        if p < 27: a(f"s_add_u32 m0, m0, 1024\ns_add_u32 s79, s79, s80")

    def reduce8(self, r):
        a = self.a
        for k in range(0, 8, 2): a(f"v_permlane32_swap_b32 v{r+k}, v{r+k+1}")
        for k in range(0, 8, 2): a(f"v_add_f32 v{r+k}, v{r+k}, v{r+k+1}")
        for k in (0, 4): a(f"v_permlane16_swap_b32 v{r+k}, v{r+k+2}")
        for k in (0, 4): a(f"v_add_f32 v{r+k}, v{r+k}, v{r+k+2}")
        for sh in (8, 4, 2, 1):
            for k in (0, 4): a(f"v_add_f32_dpp v{r+k}, v{r+k}, v{r+k} row_ror:{sh} row_mask:0xf bank_mask:0xf")
    def bcast8(self, r, s):
        a = self.a
        for k, base in ((0, 0), (4, 4)):
            for row, t in enumerate((0, 2, 1, 3)):
                a(f"v_readlane_b32 s{s+base+t}, v{r+k}, {16*row}")
    def spair(self, s):
        return sr(s & ~1, 2), s & 1

    def ln1_stats(self):
        a = self.a
        a.section = 'ln1'
        XR, XH = self.XR, self.XH
        T = 112
        SS = 68
        for t in range(8):
            for j in range(4):
                a(f"v_lshlrev_b32 v{XH+8*t+2*j}, 16, v{XR+4*t+j}\nv_and_b32 v{XH+8*t+2*j+1}, s{sMASK}, v{XR+4*t+j}")
            x = XH + 8 * t
            a(f"""v_pk_add_f32 v[120:121], {vr(x,2)}, {vr(x+2,2)}
            v_pk_add_f32 v[122:123], {vr(x+4,2)}, {vr(x+6,2)}
            v_pk_add_f32 v[120:121], v[120:121], v[122:123]
            v_add_f32 v{T+t}, v120, v121""")
            self.w_dma()
        self.reduce8(T)
        self.w_dma()
        a(f"v_mul_f32 v{T}, {f32(-1/448):#x}, v{T}\nv_mul_f32 v{T+4}, {f32(-1/448):#x}, v{T+4}")
        self.bcast8(T, SS)
        a("s_mov_b32 exec_hi, 0xffffff")
        for t in range(8):
            p, o = self.spair(SS + t)
            for j in range(4):
                x = XH + 8 * t + 2 * j
                a(f"v_pk_add_f32 {vr(x,2)}, {vr(x,2)}, {p} op_sel:[0,{o}] op_sel_hi:[1,{o}]")
        a("s_mov_b32 exec_hi, -1")
        for t in range(8):
            x = XH + 8 * t
            self.w_dma()
            a(f"""v_pk_mul_f32 v[120:121], {vr(x,2)}, {vr(x,2)}
            v_pk_fma_f32 v[120:121], {vr(x+2,2)}, {vr(x+2,2)}, v[120:121]
            v_pk_fma_f32 v[120:121], {vr(x+4,2)}, {vr(x+4,2)}, v[120:121]
            v_pk_fma_f32 v[120:121], {vr(x+6,2)}, {vr(x+6,2)}, v[120:121]
            v_add_f32 v{T+t}, v120, v121""")
        while len(self.wids) < 28: self.w_dma()
        self.reduce8(T)
        a(f"""v_mov_b32 v120, {f32(1e-5):#x}
        v_fmac_f32 v120, {f32(1/448):#x}, v{T}
        v_mov_b32 v121, {f32(1e-5):#x}
        v_fmac_f32 v121, {f32(1/448):#x}, v{T+4}
        v_rsq_f32 v{T}, v120
        v_rsq_f32 v{T+4}, v121""")
        self.bcast8(T, SS)
        for t in range(8):
            p, o = self.spair(SS + t)
            for j in range(4):
                x = XH + 8 * t + 2 * j
                a(f"v_pk_mul_f32 {vr(x,2)}, {vr(x,2)}, {p} op_sel:[0,{o}] op_sel_hi:[1,{o}]")

    def tr_lane(self, dst, rowpitch, halfrows, g1, tmp):
        a = self.a
        a(f"""v_lshrrev_b32 v{dst}, 5, v1
        v_mul_u32_u24 v{dst}, {halfrows}, v{dst}
        v_bfe_u32 v{tmp}, v1, 2, 2
        v_add_u32 v{dst}, v{dst}, v{tmp}
        v_mul_u32_u24 v{dst}, {rowpitch}, v{dst}
        v_bfe_u32 v{tmp}, v1, 4, 1
        v_mul_u32_u24 v{tmp}, {g1}, v{tmp}
        v_add_u32 v{dst}, v{dst}, v{tmp}
        v_and_b32 v{tmp}, 1, v1
        v_lshl_add_u32 v{dst}, v{tmp}, 4, v{dst}
        v_bfe_u32 v{tmp}, v1, 1, 1
        v_lshl_add_u32 v{dst}, v{tmp}, 3, v{dst}""")

    def p1_wread(self):
        a = self.a
        a.section = 'wread'
        self.tr_lane(10, 64, 8, 32, 11)
        a(f"s_mul_i32 s70, s{sW}, 28672\nv_add_u32 v10, s70, v10")
        for ks in range(28):
            if ks % 4 == 0: a.wait_vm(self.wids[ks + 3])
            for u in range(2):
                a(f"ds_read_b64_tr_b16 {ar(4*ks+2*u,2)}, v10 offset:{1024*ks+256*u}")

    def gran_check(self, regs, tmp):
        a = self.a
        for k, r in enumerate(regs): a(f"v_xor_b32 v{r}, s{sT0+(k&3)}, v{r}")
        a(f"v_or_b32 v{tmp}, v{regs[0]}, v{regs[1]}")
        for k in range(2, len(regs), 2): a(f"v_or3_b32 v{tmp}, v{tmp}, v{regs[k]}, v{regs[k+1]}")
        a(f"v_and_b32 v{tmp}, 0xff, v{tmp}\nv_cmp_ne_u32 vcc, 0, v{tmp}")

    def gran_reduce(self, g, addc, addr):
        a = self.a
        a(f"""v_pk_add_f32 {vr(g,2)}, {vr(g,2)}, {vr(g+4,2)}
        v_pk_add_f32 {vr(g+2,2)}, {vr(g+2,2)}, {vr(g+6,2)}
        v_pk_add_f32 {vr(g+8,2)}, {vr(g+8,2)}, {vr(g+12,2)}
        v_pk_add_f32 {vr(g+10,2)}, {vr(g+10,2)}, {vr(g+14,2)}
        v_pk_add_f32 {vr(g,2)}, {vr(g,2)}, {vr(g+8,2)}
        v_pk_add_f32 {vr(g+2,2)}, {vr(g+2,2)}, {vr(g+10,2)}
        v_cvt_pk_bf16_f32 v{g+4}, v{g}, v{g+1}
        v_cvt_pk_bf16_f32 v{g+5}, v{g+2}, v{g+3}
        v_lshlrev_b32 v{g}, 16, v{g+4}
        v_and_b32 v{g+1}, s{sMASK}, v{g+4}
        v_lshlrev_b32 v{g+2}, 16, v{g+5}
        v_and_b32 v{g+3}, s{sMASK}, v{g+5}
        v_add_f32 v{g}, v{g}, v{addc}
        v_add_f32 v{g+1}, v{g+1}, v{addc}
        v_add_f32 v{g+2}, v{g+2}, v{addc}
        v_add_f32 v{g+3}, v{g+3}, v{addc}
        v_cvt_pk_bf16_f32 v{g+4}, v{g}, v{g+1}
        v_cvt_pk_bf16_f32 v{g+5}, v{g+2}, v{g+3}
        v_lshlrev_b32 v{g}, 16, v{g+4}
        v_and_b32 v{g+1}, s{sMASK}, v{g+4}
        v_lshlrev_b32 v{g+2}, 16, v{g+5}
        v_and_b32 v{g+3}, s{sMASK}, v{g+5}
        ds_write_b128 v{addr}, {vr(g,4)}""")

    def poll(self, name, loads, check, first_issued=False, between=None):
        a = self.a
        L = a.label(name)
        a(f"s_mov_b32 s{sCNT}, {POLL_LIMIT}")
        if not first_issued: loads()
        st = None
        if between:
            a.wait_vm()
            between()
            check()
            a(f"s_cbranch_vccz {L}_ok")
            st = a.state()
            loads()
        a(f"{L}:")
        a.wait_vm()
        check()
        a(f"""s_cbranch_vccz {L}_ok
        s_sub_u32 s{sCNT}, s{sCNT}, 1
        s_cbranch_scc1 {L}_ok""")
        if st is None: st = a.state()
        loads()
        a(f"s_branch {L}\n{L}_ok:")
        a.set_state(st)

    def st(self, lines):
        a = self.a
        L = a.label('st')
        for ln in lines:
            i = Ins(ln); a.need(i.rd + i.wr)
        a(f"s_cmp_eq_u32 s{sLOC}, 0\ns_cbranch_scc1 {L}_g")
        for ln in lines: oid = a(ln)
        a(f"{L}_j:")
        def far():
            a.set_state(([], []))
            a(f"{L}_g:\ns_nop 4")
            for ln in lines: a(ln + " sc1")
            a(f"s_branch {L}_j")
        self.ool.append(far)
        return oid

    def d1(self):
        a = self.a
        a.section = 'd1'
        G = 24
        a(f"""v_min_u32 v43, 223, v0
        v_lshrrev_b32 v41, 2, v43
        v_and_b32 v12, 3, v43
        v_lshlrev_b32 v41, 9, v41
        v_lshl_add_u32 v41, v12, 4, v41
        v_and_b32 v42, 31, v1
        v_lshlrev_b32 v42, 2, v42
        s_mov_b32 s77, {W_MODC}
        s_lshl_b32 s78, s{sXC}, 7
        s_add_u32 s78, s78, {W_XID}""")
        def loads():
            for rg in range(4): a(f"buffer_load_dwordx4 {vr(G+4*rg,4)}, v41, s[{R_WS}:{R_WS+3}], s77 offen offset:{128*rg} sc1")
            a(f"buffer_load_dword v40, v42, s[{R_WS}:{R_WS+3}], s78 offen sc1")
        def check():
            a(f"v_xor_b32 v40, s{sT}, v40\nv_cmp_lt_u32 s[70:71], 15, v40")
            self.gran_check(list(range(G, G + 16)), 9)
            a("s_or_b64 vcc, vcc, s[70:71]")
        self.stamp('d1poll')
        loads()
        a(f"""v_lshlrev_b32 v12, 4, v43
        v_add_u32 v12, {L_MODL}, v12
        v_cmp_le_u32 vcc, 112, v43
        v_lshlrev_b32 v15, 5, v1
        v_add_u32 v15, {L_MODL}, v15
        v_cndmask_b32 v43, 0, 1.0, vcc
        s_mul_i32 s71, s{sW}, {8*912}
        s_add_u32 s71, s71, {L_HT}
        v_add_u32 v14, s71, v13""")
        import k2
        for ln in k2.att_srd(self) + k2.att_pre(self)[0]: a(ln)
        self.p1_wread()
        self.stamp('wread')
        self.poll('d1', loads, check, first_issued=True)
        self.gran_reduce(G, 43, 12)
        a(f"""v_cmp_ne_u32 vcc, s81, v40
        s_lshl_b32 s70, s{sI}, 2
        s_add_u32 s70, s70, {W_FT+FT_WO}
        s_cmp_eq_u64 vcc, 0
        s_cselect_b32 s{sLOC}, {0 if 'global' in self.x else 1}, 0
        s_cmp_eq_u32 s67, 2""")
        with a.guard('wofl', 's_cbranch_scc0'): self.flag('s70', None)
        self.barrier()
        self.stamp('d1done')

    def p1_main(self):
        a = self.a
        a.section = 'p1'
        XH = self.XH
        SH, SC = 24, 32
        a(f"""ds_read_b128 {vr(SC,4)}, v15 offset:1792
        ds_read_b128 {vr(SH,4)}, v15
        ds_read_b128 {vr(SC+4,4)}, v15 offset:1808
        ds_read_b128 {vr(SH+4,4)}, v15 offset:16
        v_and_b32 v10, 31, v1
        v_lshrrev_b32 v11, 5, v1
        v_mul_u32_u24 v12, 912, v10
        v_mul_u32_u24 v9, 896, v10
        v_lshl_add_u32 v12, v11, 4, v12
        v_lshl_add_u32 v9, v11, 4, v9
        v_add_u32 v12, {L_HT}, v12
        s_mov_b32 exec_hi, 0xffffff""")
        for t in range(8):
            x = XH + 8 * t
            for j in range(4): a(f"v_pk_fma_f32 {vr(x+2*j,2)}, {vr(x+2*j,2)}, {vr(SC+2*j,2)}, {vr(SH+2*j,2)}")
            for j in range(4): a(f"v_cvt_pk_bf16_f32 v{x+j}, v{x+2*j}, v{x+2*j+1}")
            a(f"ds_write_b128 v14, {vr(x,4)} offset:{912*t}")
        a("s_mov_b32 exec_hi, -1")
        fill = f"""s_lshr_b32 s72, s{sI}, 2
        s_mul_i32 s70, s72, {32*896}
        s_lshl_b32 s73, s76, 6
        s_add_u32 s70, s70, s73
        s_add_u32 s70, s70, {W_Q}
        s_lshl_b32 s71, s72, 12
        s_and_b32 s73, s76, 1
        s_lshl_b32 s73, s73, 11
        s_add_u32 s71, s71, s73
        s_add_u32 s74, s71, {W_KVL}
        s_add_u32 s71, s71, {W_KV}
        s_lshl_b32 s75, s72, 7
        s_lshl_b32 s73, s76, 2
        s_add_u32 s75, s75, s73
        s_add_u32 s75, s75, {W_FQ}""".split('\n')
        import k2
        fill += k2.att_pre(self)[1]
        self.barrier()
        self.stamp('hbar')
        HF, D = 128, self.ACC1
        L = a.label('p1')
        def mm(swap):
            for ks in range(8): a(f"ds_read_b128 {vr(HF+4*ks,4)}, v12 offset:{32*ks}")
            for ks in range(28):
                A, B = ar(4 * ks, 4), vr(HF + 4 * ks, 4)
                if swap: A, B = B, A
                a(f"v_mfma_f32_32x32x16_bf16 {vr(D,16)}, {A}, {B}, {'0' if ks==0 else vr(D,16)}")
                if ks + 8 < 28: a(f"ds_read_b128 {vr(HF+4*ks+32,4)}, v12 offset:{32*(ks+8)}")
                for ln in fill[len(fill)*ks//28:len(fill)*(ks+1)//28]: a(ln)
        def cvt():
            for j in range(8): a(f"v_cvt_pk_bf16_f32 v{24+j}, v{D+2*j}, v{D+2*j+1}")
        a(f"s_cmp_eq_u32 s76, 15\ns_cbranch_scc1 {L}_v")
        st = a.state()
        mm(False)
        a(f"s_cmp_eq_u32 s76, 14\ns_cbranch_scc1 {L}_k")
        st2 = a.state()
        cvt()
        last = self.st([f"buffer_store_dwordx4 v[24:27], v9, s[{R_WS}:{R_WS+3}], s70 offen",
                        f"buffer_store_dwordx4 v[28:31], v9, s[{R_WS}:{R_WS+3}], s70 offen offset:32"])
        a.wait_vm(last)
        a(f"s_branch {L}_j")
        stq = a.state()
        a(f"{L}_k:"); a.set_state(st2)
        a(f"s_mov_b32 s72, {f32(28**-0.5*math.log2(math.e)):#x}\ns_nop 7\ns_nop 1")
        for j in range(8): a(f"v_pk_mul_f32 {vr(D+2*j,2)}, {vr(D+2*j,2)}, s[72:73] op_sel_hi:[1,0]")
        cvt()
        a(f"""s_mov_b32 exec_lo, 0
        v_mov_b32 v30, 0x3f803f80
        v_mov_b32 v31, 0x3f80
        s_mov_b32 exec_lo, -1
        s_branch {L}_kv
        {L}_v:""")
        a.set_state(st)
        a(f"""v_cmp_eq_u32 vcc, 28, v10
        v_mov_b32 v11, 0x3f803f80
        s_nop 0
        v_cndmask_b32 v11, 0, v11, vcc""")
        mm(True)
        cvt()
        a("s_mov_b32 exec_lo, 0xf0000000\ns_mov_b32 exec_hi, 0xf0000000")
        for j in range(8): a(f"v_mov_b32 v{24+j}, v11")
        a(f"""s_mov_b64 exec, -1
        {L}_kv:""")
        last = self.st([f"buffer_store_dwordx4 v[24:27], v13, s[{R_WS}:{R_WS+3}], s74 offen",
                        f"buffer_store_dwordx4 v[28:31], v13, s[{R_WS}:{R_WS+3}], s74 offen offset:1024"])
        a.opt = 'kvg'
        a(f"""buffer_store_dwordx4 v[24:27], v13, s[{R_WS}:{R_WS+3}], s71 offen sc1
        buffer_store_dwordx4 v[28:31], v13, s[{R_WS}:{R_WS+3}], s71 offen offset:1024 sc1""")
        a.wait_vm(last)
        a.opt = None
        a(f"{L}_j:")
        self.stamp('p1st')
        a("s_mov_b64 exec, 1")
        self.st([f"buffer_store_dword v248, off, s[{R_WS}:{R_WS+3}], s75"])
        a("s_mov_b64 exec, -1")
        a("s_cmp_eq_u32 s67, 3")
        a.section = 'nc'
        with a.guard('nc', 's_cbranch_scc0'): self.nc_compute()
        self.stamp('f2')

    def flag(self, soff, wave=0):
        a = self.a
        def body():
            a(f"""v_mov_b32 v9, s{sT}
            s_mov_b64 exec, 1
            buffer_store_dword v9, off, s[{R_WS}:{R_WS+3}], {soff} sc1
            s_mov_b64 exec, -1""")
        if wave is None: body(); return
        a(f"s_cmp_eq_u32 s{sW}, {wave}")
        with a.guard(a.label('flag'), 's_cbranch_scc0'): body()

    def start_phase(self):
        a = self.a
        self.ool = []
        self.wids = []
        self.prologue()
        self.p0_setup()
        a.need(['s30'])
        self.stamp('karg')
        a(f"s_load_dword s{sE}, s[{S_WS}:{S_WS+1}], {W_EPOCH}")
        self.srd(R_A, S_WM, 448 * 5376)
        a("s_cmp_eq_u32 s67, 1")
        with a.guard('p0c', 's_cbranch_scc0'): lc = self.p0_loads()
        self.srd(R_X, S_X, 2048 * 896)
        self.srd(R_WS, S_WS, W_SIZE)
        self.p1_setup()
        a("s_barrier")
        self.stamp('bar0')
        self.x_loads()
        a("s_cmp_eq_u32 s67, 2")
        with a.guard('wo', 's_cbranch_scc0'): lw = self.wo_loads()
        a("s_cmp_eq_u32 s67, 3")
        with a.guard('nc', 's_cbranch_scc0'): a(f"global_load_dwordx4 v[124:127], v2, s[{S_C}:{S_C+1}]")
        a("s_cmp_eq_u32 s67, 1")
        a.section = 'p0c'
        with a.guard('p0c', 's_cbranch_scc0'): self.p0_compute(lc)
        self.stamp('p0')
        for p in range(10): self.w_dma()
        self.tagcalc()
        a(f"""s_and_b32 s{sT0}, s{sT}, 0xff
        s_bfe_u32 s{sT0+1}, s{sT}, 0x80008
        s_bfe_u32 s{sT0+2}, s{sT}, 0x80010
        s_lshr_b32 s{sT0+3}, s{sT}, 24
        s_getreg_b32 s81, hwreg(HW_REG_XCC_ID, 0, 4)
        s_cmp_eq_u32 s{sW}, 2""")
        with a.guard('xid', 's_cbranch_scc0'):
            a(f"""s_xor_b32 s70, s{sT}, s81
            s_lshl_b32 s71, s{sI}, 2
            s_add_u32 s71, s71, {W_XID}
            v_mov_b32 v9, s70
            s_mov_b64 exec, 1
            buffer_store_dword v9, off, s[{R_WS}:{R_WS+3}], s71 sc1
            s_mov_b64 exec, -1""")
            self.pretouch()
        a("s_cmp_eq_u32 s67, 2")
        with a.guard('wo', 's_cbranch_scc0'): self.wo_job(lw)
        self.ln1_stats()
        self.stamp('ln1')
        a("s_cmp_eq_u32 s67, 3")
        with a.guard('nc', 's_cbranch_scc0'): self.nc_loads()
        self.d1()
        self.p1_main()

    def pretouch(self):
        a = self.a
        if 'nopre' in self.x: return
        a(f"""v_lshrrev_b32 v5, 3, v1
        v_and_b32 v6, 7, v1
        v_min_u32 v5, 4, v5
        v_lshlrev_b32 v5, 13, v5
        v_lshl_add_u32 v5, v6, 7, v5
        s_lshl_b32 s70, s{sXC}, 10
        s_add_u32 s70, s70, {W_FQ}
        buffer_load_dword v5, v5, s[{R_WS}:{R_WS+3}], s70 offen sc1""")

    def epoch_update(self):
        a = self.a
        a(f"s_cmp_eq_u32 s{sI}, 255\ns_cbranch_scc0 L_fin\ns_cmp_eq_u32 s{sW}, 0\ns_cbranch_scc0 L_fin")
        a.wait_all()
        a(f"v_lshlrev_b32 v2, 4, v1\ns_mov_b32 s70, {W_FT}")
        def loads():
            for k in range(4): a(f"buffer_load_dwordx4 {vr(16+4*k,4)}, v2, s[{R_WS}:{R_WS+3}], s70 offen offset:{1024*k} sc1")
        def check():
            for k in range(16): a(f"v_xor_b32 v{16+k}, s{sT}, v{16+k}")
            a("v_or_b32 v4, v16, v17")
            for k in range(2, 16, 2): a(f"v_or3_b32 v4, v4, v{16+k}, v{17+k}")
            a("v_cmp_ne_u32 vcc, 0, v4")
        self.poll('ep', loads, check)
        a(f"s_mov_b32 s70, {W_EPOCH}")
        self.flag('s70', None)
        a("L_fin:")

    def finish(self):
        a = self.a
        if self.probe:
            self.stamp('end')
            j = self.stamp_names.index(self.probe)
            a.force_wait("s_waitcnt lgkmcnt(0)")
            a(f"""s_cmp_eq_u32 s{sI}, 100
            s_cbranch_scc0 L_end
            s_add_u32 s70, s{S_STAMP+2*j}, 6000
            L_probe:
            s_memrealtime s[72:73]
            s_waitcnt lgkmcnt(0)
            s_sub_u32 s71, s72, s70
            s_cmp_lt_i32 s71, 0
            s_cbranch_scc1 L_probe""")
        elif self.stamps:
            self.stamp('end')
            a.force_wait("s_waitcnt lgkmcnt(0)")
            for k in range(self.nstamp): a(f"v_writelane_b32 v2, s{S_STAMP+2*k}, {k}")
            a(f"""s_lshl_b32 s70, s{sI}, 2
            s_add_u32 s70, s70, s{sW}
            s_lshl_b32 s70, s70, 6
            s_add_u32 s70, s70, {W_STAMP}
            v_lshlrev_b32 v3, 2, v1
            s_mov_b64 exec, 0xffff
            buffer_store_dword v2, v3, s[{R_WS}:{R_WS+3}], s70 offen
            s_mov_b64 exec, -1""")
        a("L_end:\ns_endpgm")
        for f in getattr(self, 'ool', []): f()

    def build(self):
        import k2
        self.start_phase()
        if self.stop != 'p1':
            k2.rest(self)
        self.epoch_update()
        self.finish()
        return self.module()

    def module(self):
        hdr = open(f"cdna_kernels/{NAME}.s.ref").read().split("; @launch")[0]
        kn = NAME + "_kernel"
        return hdr + f"""; @launch grid=(256,1,1) block=(256,1,1) lds={LDS_SIZE}
.amdgcn_target "amdgcn-amd-amdhsa--gfx950"
.text
.globl {kn}
.p2align 8
.type {kn},@function
{kn}:
{self.a.text()}.section .rodata,"a"
.p2align 6
.amdhsa_kernel {kn}
  .amdhsa_next_free_vgpr 512
  .amdhsa_next_free_sgpr 102
  .amdhsa_accum_offset 256
  .amdhsa_group_segment_fixed_size 0
  .amdhsa_kernarg_size 112
  .amdhsa_user_sgpr_count 2
  .amdhsa_user_sgpr_kernarg_segment_ptr 1
  .amdhsa_system_sgpr_workgroup_id_x 1
.end_amdhsa_kernel
"""

if __name__ == "__main__":
    import argparse
    ap = argparse.ArgumentParser()
    ap.add_argument("-o", default="out.s")
    ap.add_argument("--stamps", default=None)
    ap.add_argument("--stop", default=None)
    ap.add_argument("-x", default="")
    ap.add_argument("--probe", default=None)
    ap.add_argument("--nops", action="store_true")
    g = ap.parse_args()
    if g.probe: g.stamps = g.probe
    k = K(stamps=(['start', 'end'] + g.stamps.split(',')) if g.stamps else None, stop=g.stop, x=g.x.split(','), probe=g.probe)
    txt = k.build()
    if g.stamps: txt += "; STAMPS " + " ".join(k.stamp_names) + "\n"
    open(g.o, "w").write(txt)
    if g.nops:
        for n in k.a.nops: print(n)
    print("instructions:", sum(1 for i in k.a.out if i.op), "nop states:", sum(n[1] for n in k.a.nops))
```

```python
import re
from k import *


def isize(i):
    if not i.op: return 0
    lit = 0
    for o in i.ops:
        if re.fullmatch(r'-?(0x[0-9a-fA-F]+|\d+)', o):
            v = int(o, 0)
            if not (-16 <= v <= 64): lit = 4
    if i.kind in ('mfma', 'vmem', 'ds', 'smem'): return 8
    if i.kind in ('nop', 'wait', 'ctl'): return 4
    if i.kind == 'salu': return 4 + lit
    if i.op.endswith('_e64') or i.op.startswith(('v_cvt_pk_', 'v_pk_', 'v_fma_', 'v_max3', 'v_or3', 'v_lshl_add', 'v_bfe', 'v_and_or', 'v_readlane', 'v_writelane', 'v_accvgpr')) or i.dpp or i.sdwa: return 8
    return 4 + lit

class Slots:
    def __init__(self, n):
        self.n = n; self.s = [[] for _ in range(n)]
    def put(self, pos, item, cap=1):
        while pos < self.n and len(self.s[pos]) >= cap: pos += 1
        assert pos < self.n, "out of slots"
        self.s[pos].append(item); return pos
    def seq(self, pos, items, step=1, cap=1):
        for it in items:
            pos = self.put(pos, it, cap) + step
        return pos
    def spread(self, p0, p1, items):
        free = [p for p in range(p0, p1) if not self.s[p]]
        assert len(free) >= len(items), (len(free), len(items))
        pos = p0
        for n, it in enumerate(items):
            pos = free[n * len(free) // len(items)]
            self.s[pos].append(it)
        return pos + 1
    def run(self, a, pos):
        for it in self.s[pos]:
            if callable(it): it()
            else: a(it)

SB, PB, QB, OB = 16, 48, 64, 144
NRING = 8
KVS = list(range(4, 12)) + [14, 15, 22, 23, 24, 25, 28, 29]
def kreg(j, part): return ar(16 * (j % NRING) + 4 * part, 4)
def wo_reg(jj, ks):
    n = jj * 7 + ks
    if n < 32: return ar(128 + 4 * n, 4)
    if n < 37: return vr(208 + 4 * (n - 32), 4)
    return vr(96 + 4 * (n - 37), 4)
(vWS, vD2, vFK, vWOF, vQ, vNC2, vNC2T, vOW, vOR, _, _, vXS, vX, _t, vOTW, vOTR, vOWNW, vXR, vOWNR, vMOD, vH2, vSTW, vSTR, vFF) = range(228, 252)
assert _t == vT
vWD, vPF, vMN = 3, 7, 12
sQ, sFKS, sFWO, sFNC, sC14, sOWN, sWD, sPFW, sPFD, sPFO, sXB, sMN, sNA = 44, 12, 13, 30, 31, 64, 66, 68, 69, 77, 78, 79, 80
WOS = list(range(70, 77))

def att_srd(k):
    return f"""s_mov_b32 s{R_C}, s{S_WD}
    s_mov_b32 s{R_C+1}, s{S_WD+1}
    s_mov_b32 s{R_C+2}, {1792*896}
    s_bitcmp1_b32 s{sW}, 0
    s_cselect_b32 s{R_A}, s{S_WU}, s{S_WG}
    s_cselect_b32 s{R_A+1}, s{S_WU+1}, s{S_WG+1}
    s_mov_b32 s{R_A+2}, {448*3584}""".split('\n')

def att_early(k):
    t = f"""v_mov_b32 v{vT}, s{sT}
    v_mov_b32 v15, {OOB}
    v_mov_b32 v{vFF}, 0xff
    v_mov_b32 v{vF}, v15
    v_writelane_b32 v{vF}, 0, 0
    v_add_u32 v2, 4096, v13
    s_lshr_b32 s64, s{sI}, 2
    s_and_b32 s65, s{sI}, 1
    v_and_b32 v252, 7, v1
    v_lshrrev_b32 v253, 3, v1
    v_and_b32 v254, 15, v1
    v_lshrrev_b32 v255, 4, v1
    ; key tile order: two tiles of the own group, then the others starting at a workgroup-dependent one
    v_add_u32 v10, s{sR}, v254
    v_mul_u32_u24 v11, 4682, v10
    v_lshrrev_b32 v11, 16, v11
    v_mul_u32_u24 v11, 14, v11
    v_sub_u32 v10, v10, v11
    s_lshl_b32 s68, s{sXC}, 1
    s_add_u32 s69, s68, 2
    v_add_u32 v10, s69, v10
    v_and_b32 v10, 15, v10
    s_lshl_b32 s69, s{sW}, 12
    s_add_u32 s69, s69, {W_KV}
    v_lshl_add_u32 v10, v10, 14, s69
    s_lshl_b32 s68, s68, 14
    s_add_u32 s68, s68, s69
    s_add_u32 s{KVS[0]}, s68, {W_KVL-W_KV}
    s_add_u32 s{KVS[1]}, s68, {W_KVL-W_KV+0x4000}""".split('\n')
    t += [f"v_readlane_b32 s{KVS[j]}, v10, {j-2}" for j in range(2, 16)]
    t += f"""s_lshl_b32 s68, s64, 7
    s_mul_i32 s69, s65, 28
    s_add_u32 s68, s68, s69
    s_add_u32 s68, s68, {W_FQ}
    v_min_u32 v10, 6, v252
    v_lshl_add_u32 v{vD2}, v10, 2, s68
    s_lshl_b32 s68, s{sXC}, 3
    s_add_u32 s68, s68, s{sW}
    s_lshl_b32 s68, s68, 7
    s_add_u32 s68, s68, {W_FQ+56}
    v_and_b32 v14, 1, v1
    v_lshl_add_u32 v10, v14, 2, s68
    v_bfe_u32 v11, v1, 1, 1
    v_cmp_eq_u32 vcc, 1, v255
    v_lshl_add_u32 v10, v11, 9, v10
    s_lshl_b32 s68, s{sW}, 8
    s_add_u32 s68, s68, {W_FK}
    v_cndmask_b32 v{vD2}, v{vD2}, v10, vcc
    v_bfe_u32 v10, v1, 1, 4
    v_lshl_add_u32 v10, v10, 10, s68
    v_lshl_add_u32 v{vFK}, v14, 7, v10
    v_min_u32 v10, {48*16}, v13
    v_add_u32 v{vWOF}, {W_FWO}, v10
    s_lshr_b32 s68, s{sI}, 1
    s_mul_i32 s68, s68, {16*896}
    s_mul_i32 s69, s65, 448
    s_add_u32 s68, s68, s69
    s_add_u32 s68, s68, {W_Q}
    v_and_b32 v10, 1, v255
    v_mul_u32_u24 v10, 56, v10
    v_lshrrev_b32 v11, 5, v1
    v_lshl_add_u32 v10, v11, 4, v10
    v_mul_u32_u24 v11, 896, v254
    v_add3_u32 v{vQ}, v10, v11, s68
    s_mul_i32 s68, s{sW}, 112
    s_add_u32 s68, s68, {L_OT}
    v_mul_u32_u24 v11, 480, v254
    v_add3_u32 v{vOTW}, v10, v11, s68
    v_lshl_add_u32 v11, v255, 4, v11
    v_add_u32 v{vOTR}, {L_OT}, v11
    s_lshr_b32 s68, s{sI}, 3
    s_mul_i32 s68, s68, 1792
    s_and_b32 s69, s{sI}, 7
    s_lshl_b32 s69, s69, 5
    s_add_u32 s68, s68, s69
    s_add_u32 s68, s68, {W_NCP}
    v_lshl_add_u32 v10, v253, 8, s68
    v_lshl_add_u32 v10, v252, 2, v10
    v_and_b32 v11, 3, v1
    v_lshlrev_b32 v11, 3, v11
    v_lshrrev_b32 v11, v11, s{sT}
    v_cmp_gt_u32 vcc, 56, v1
    v_and_b32 v11, 0xff, v11
    s_mul_i32 s68, s{sI}, {8*896}
    s_mul_i32 s69, s{sW}, 224
    v_cndmask_b32 v{vNC2}, v15, v10, vcc
    v_cndmask_b32 v{vNC2T}, 0, v11, vcc
    s_add_u32 s68, s68, s69
    v_mul_u32_u24 v10, 896, v252
    v_lshl_add_u32 v10, v253, 5, v10
    v_add_u32 v10, s68, v10
    v_cndmask_b32 v{vX}, v15, v10, vcc
    s_mul_i32 s68, s64, 28672
    s_mul_i32 s70, s{sW}, 7168
    s_add_u32 s68, s68, s70
    s_and_b32 s70, s{sI}, 3
    s_lshl_b32 s70, s70, 7
    s_add_u32 s68, s68, s70
    s_add_u32 s68, s68, {W_H2}
    v_lshl_add_u32 v10, v253, 10, s68
    v_lshl_add_u32 v10, v252, 4, v10
    v_cndmask_b32 v{vH2}, v15, v10, vcc
    s_lshl_b32 s69, s69, 1
    s_add_u32 s69, s69, {L_MODN}
    v_lshl_add_u32 v{vMOD}, v253, 6, s69
    s_lshl_b32 s68, s{sI}, 2
    s_add_u32 s68, s68, s{sW}
    s_lshl_b32 s68, s68, 12
    s_xor_b32 s69, s68, 0x4000
    s_add_u32 s68, s68, {W_XC}
    s_add_u32 s69, s69, {W_XC}
    s_lshl_b32 s70, s{sW}, 13
    s_add_u32 s70, s70, {L_ST+4096}
    v_lshlrev_b32 v10, 4, v252
    v_lshl_add_u32 v11, v253, 9, v10
    v_add_u32 v{vXR}, s68, v11
    v_add_u32 v{vOWNR}, s70, v11
    v_and_b32 v14, 1, v253
    v_lshl_add_u32 v11, v255, 7, v10
    v_cmp_eq_u32 vcc, s65, v14
    v_add_u32 v{vOWNW}, s70, v11
    v_add_u32 v11, s69, v11
    v_cndmask_b32 v{vXS}, v11, v15, vcc
    v_lshlrev_b32 v10, 5, v252
    v_add_u32 v{vSTR}, {L_MISC+64}, v10
    s_lshl_b32 s68, s{sW}, 3
    v_add_u32 v{vSTW}, s68, v{vSTR}
    s_mul_i32 s68, s{sW}, 12288
    s_add_u32 s68, s68, {L_OS}
    v_add_u32 v{vOW}, s68, v13""".split('\n')
    for s in range(3):
        t += f"""s_add_u32 s68, s{sW}, {3-s}
        s_and_b32 s68, s68, 3
        s_mul_i32 s68, s68, 12288
        s_add_u32 s68, s68, {L_OS+4096*s}
        v_add_u32 v{vOR+s}, s68, v13""".split('\n')
    t += f"""s_and_b32 s68, s{sW}, 1
    s_lshl_b32 s68, s68, 2
    v_and_b32 v10, 2, v253
    v_xor_b32 v10, v10, v252
    v_xor_b32 v10, s68, v10
    v_mul_u32_u24 v11, 3584, v253
    v_cmp_gt_u32 vcc, 25, v1
    v_lshl_add_u32 v{vWD}, v10, 4, v11
    v_lshlrev_b32 v10, 7, v1
    v_cndmask_b32 v{vPF}, v15, v10, vcc
    v_add_u32 v{vWD+1}, {16*3584-1024}, v{vWD}
    v_add_u32 v{vWD+2}, {2*(16*3584-1024)}, v{vWD}
    v_add_u32 v{vWD+3}, {3*(16*3584-1024)}, v{vWD}
    v_cmp_gt_u32 vcc, 8, v1
    s_lshl_b32 s68, s{sI}, 5
    s_add_u32 s68, s68, {W_MODN}
    v_lshl_add_u32 v10, v1, 2, s68
    v_cndmask_b32 v{vMN}, v15, v10, vcc
    v_add_u32 v15, -32, v1
    v_ashrrev_i32 v15, 31, v15""".split('\n')
    return t

def att_late(k):
    t = []
    for s in range(4):
        t += [f"s_add_u32 s81, s{sW}, {1+s}", "s_and_b32 s81, s81, 3", f"s_mul_i32 s{sQ+s}, s81, 112"]
    t += f"""s_lshr_b32 s81, s{sI}, 2
    s_lshl_b32 s81, s81, 1
    s_add_u32 s81, s81, s{sW}
    s_lshl_b32 s81, s81, 7
    s_add_u32 s{sFKS}, s81, {W_FK-2*128}
    s_and_b32 s81, s{sI}, 3
    s_lshl_b32 s81, s81, 2
    s_add_u32 s81, s81, s{sW}
    s_cmp_ge_u32 s81, 14
    s_cselect_b32 s{sFKS}, s{sFKS}, {OOB}
    s_lshl_b32 s81, s{sI}, 2
    s_add_u32 s{sFWO}, s81, {W_FWO}
    s_add_u32 s{sFNC}, s81, {W_FNC}
    s_cmp_eq_u32 s67, 2
    s_cselect_b32 s{sFWO}, s{sFWO}, {OOB}
    s_cmp_eq_u32 s{sW}, 3
    s_cselect_b32 s{sFNC}, s{sFNC}, {OOB}
    s_add_u32 s81, s81, s{sW}
    s_lshl_b32 s{sXB}, s81, 12
    s_xor_b32 s{sXB}, s{sXB}, 0x4000
    s_add_u32 s{sXB}, s{sXB}, {W_XC}
    s_cmp_eq_u32 s{sLOC}, 0
    s_cselect_b32 s{sXB}, {OOB}, s{sXB}
    s_lshr_b32 s{sPFW}, s81, 1
    s_mul_i32 s{sPFW}, s{sPFW}, 3200
    s_bitcmp1_b32 s{sW}, 0
    s_cselect_b32 s{sPFD}, {OOB}, s{sPFW}
    s_and_b32 s81, s81, 127
    s_mul_i32 s{sPFO}, s81, 3200
    s_add_u32 s{sPFO}, s{sPFO}, {W_WO}
    s_movk_i32 s{sC14}, 14336
    s_mov_b32 s{sOWN}, 0x00ff00ff
    s_bitcmp1_b32 s{sI}, 0
    s_cselect_b32 s{sOWN}, 0xff00ff00, s{sOWN}
    s_mov_b32 s{sOWN+1}, s{sOWN}
    s_lshr_b32 s81, s{sW}, 1
    s_mul_i32 s81, s81, {8*3584}
    s_lshl_b32 s{sWD}, s{sR}, 7
    s_add_u32 s{sWD}, s{sWD}, s81
    s_cmp_lt_u32 s{sR}, 28
    s_cselect_b32 s{sWD}, s{sWD}, {OOB}
    s_mul_i32 s{sMN}, s{sW}, 1792
    s_sub_u32 s81, s{sI}, 112
    s_cmp_lt_u32 s81, 56
    s_cselect_b32 s{sNA}, 1.0, 0""".split('\n')
    return t

def main_setup(k):
    a = k.a
    a(f"""s_mul_i32 s{WOS[0]}, s{sW}, {7*14336}
    s_and_b32 s81, s{sI}, 1
    s_mul_i32 s81, s81, 7168
    s_add_u32 s{WOS[0]}, s{WOS[0]}, s81
    s_add_u32 s{WOS[0]}, s{WOS[0]}, {W_WO}""")
    for jj in range(1, 7): a(f"s_add_u32 s{WOS[jj]}, s{WOS[jj-1]}, s{sC14}")
    a(f"s_lshl_b32 m0, s{sW}, 12")

def chk4(a, r):
    a(f"""v_xor_b32 v{r}, s{sT}, v{r}
    v_xor_b32 v{r+1}, s{sT}, v{r+1}
    v_xor_b32 v{r+2}, s{sT}, v{r+2}
    v_or3_b32 v{r}, v{r}, v{r+1}, v{r+2}
    v_xor_b32 v{r+3}, s{sT}, v{r+3}
    v_or_b32 v{r}, v{r}, v{r+3}
    v_cmp_ne_u32 vcc, 0, v{r}""")

def late_check(k, name, load, check):
    a = k.a
    def item():
        check()
        a(f"s_cbranch_vccnz L_{name}_w\nL_{name}_ok:")
    def far():
        a.set_state(([], []))
        a(f"L_{name}_w:")
        k.poll(name, load if callable(load) else (lambda: a(load)), check)
        a(f"s_branch L_{name}_ok")
    k.ool.append(far)
    return item

def wdma(q): return f"buffer_load_dwordx4 v{vWD+q}, {RA}, s{sWD} offen offset:{1024*q} lds"
WSTEP = f"s_add_u32 m0, m0, 16384\ns_add_u32 s{sWD}, s{sWD}, {64*3584}"

def attention(k):
    a = k.a
    a.section = 'att_pre'
    chk1 = lambda: a(f"v_cmp_ne_u32 vcc, s{sT}, v9")
    d2l = f"buffer_load_dword v9, v{vD2}, {WS}, 0 offen sc1"
    k.nc_compute()
    k.stamp('d2poll')
    a(d2l)
    main_setup(k)
    k.nc_finish()
    k.poll('d2a', lambda: a(d2l), chk1, first_issued=True)
    k.stamp('d2done')
    def kvload(j, part, sreg=None, sc=' sc1'):
        return f"buffer_load_dwordx4 {kreg(j,part)}, v13, {WS}, s{KVS[j] if sreg is None else sreg} offen offset:{1024*part}{sc}"
    def qload(s): return [f"buffer_load_dwordx4 {vr(QB+8*s+4*h,4)}, v{vQ}, {WS}, s{sQ+s} offen offset:{32*h}" for h in range(2)]
    def qzero(s): return f"v_and_b32 v{QB+8*s+6}, v15, v{QB+8*s+6}\nv_and_b32 v{QB+8*s+7}, v15, v{QB+8*s+7}"
    k0 = [kvload(0, p, sc='') for p in range(4)]
    k.st([qload(0)[0], k0[0], qload(0)[1], k0[1]] + qload(1) + qload(2) + k0[2:] + qload(3))
    a(f"buffer_store_dword v{vT}, v{vF}, {WS}, s{sFKS} offen sc1")
    ids = {}
    NT = k.par('nt', 6)
    U = [(j, s) for j in range(16 - NT) for s in range(4)] + [(j, s) for s in range(4) for j in range(16 - NT, 16)]
    def QK(u, h):
        j, s = U[u]; d = vr(SB + 16 * (u & 1), 16)
        a(f"v_mfma_f32_32x32x16_bf16 {d}, {kreg(j,h)}, {vr(QB+8*s+4*h,4)}, {d if h else '0'}")
    def PV(u, h):
        j, s = U[u]; d = vr(OB + 16 * s, 16)
        a(f"v_mfma_f32_32x32x16_bf16 {d}, {kreg(j,2+h)}, {vr(PB+8*(u&1)+4*h,4)}, {'0' if (j == 0 and h == 0) else d}")
    QK(0, 0); a(qzero(0)); QK(0, 1); a(qzero(1))
    a("s_nop 9\n.p2align 3\nL_att_main:")
    sl = Slots(256)
    P = lambda u, g: 4 * u + g
    FKP, FKC = k.par('fkp', 1), k.par('fkc', 3)
    first = {}
    for u, (j, s) in enumerate(U): first.setdefault(j, u)
    lastu = {j: u for u, (j, s) in enumerate(U)}
    lasts = {s: u for u, (j, s) in enumerate(U)}
    fkl = f"buffer_load_dword v9, v{vFK}, {WS}, 0 offen sc1"
    sl.seq(P(0, 0), [kvload(1, p) for p in range(4)])
    sl.put(P(0, 3), qzero(2), cap=2); sl.put(P(1, 3), qzero(3), cap=2)
    def wost():
        a("s_cmp_eq_u32 s67, 2")
        with a.guard('wo', 's_cbranch_scc0'):
            a(f"buffer_store_dwordx4 v[96:99], v{vWS}, {WS}, 0 offen sc1")
            a(f"buffer_store_dwordx4 v[100:103], v{vWS}, {WS}, s{sC14} offen sc1")
    sl.seq(P(1, 0), [f"buffer_store_dword v{pNO}, v{pNS}, {WS}, 0 offen sc1", wost])
    sl.put(P(FKP, 2), fkl)
    pos = sl.put(P(FKC, 0), late_check(k, 'fk', fkl, chk1))
    sl.put(pos + 1, f"buffer_store_dword v{vT}, v{vF}, {WS}, s{sFWO} offen sc1", cap=2)
    for j in range(1, 16):
        sl.put(P(first[j] - 2, 3), lambda j=j: a.need([f"a{x}" for x in range(16*(j%NRING), 16*(j%NRING) + (8 if j < 4 else 16))]), cap=2)
    for j in range(0, 4):
        sl.put(P(first[j] + 1, 1), lambda j=j: a.need([f"a{x}" for x in range(16*(j%NRING) + 8, 16*(j%NRING) + 16)]), cap=2)
    def owr(s, q): return f"ds_write_b128 v{vOW}, {vr(OB+16*s+4*q,4)} offset:{4096*s+1024*q}"
    for s in range(3): pe = sl.seq(P(lasts[s] + 2, 1), [owr(s, q) for q in range(4)])
    def obar():
        a.wait_vm(ids['mn']); k.barrier()
    pe = sl.put(pe + 2, obar) + 1
    pe = sl.seq(pe, [f"ds_read_b128 {vr(OB+16*s+4*q,4)}, v{vOR+s} offset:{1024*q}" for s in range(3) for q in range(4)])
    pos = sl.seq(pos, [kvload(2, 0) + "\n" + kvload(2, 1)], cap=2)
    kv = [kvload(2, 2), kvload(2, 3)] + [kvload(j, p) for j in range(3, NRING) for p in range(4)]
    pkv = sl.spread(pos, pos + len(kv) * 3 // 2, kv)
    for j in range(NRING, 16):
        pkv = sl.seq(max(pkv, P(lastu[j - NRING] + 2, 0)), [kvload(j, p) for p in range(4)], step=2)
    ncl = f"buffer_load_dword v10, v{vNC2}, {WS}, 0 offen sc1"
    def ncchk(): a(f"v_xor_b32 v10, v10, v{vNC2T}\nv_and_b32 v11, 0xff, v10\nv_cmp_ne_u32 vcc, 0, v11")
    nclc = late_check(k, 'nc2', ncl, ncchk)
    def nc2():
        a.need(['v10'])
        a("s_cmp_eq_u32 s67, 3")
        with a.guard('nc2', 's_cbranch_scc0'):
            n0 = len(a.out)
            nclc()
            a(f"""v_add_f32_dpp v10, v10, v10 row_ror:8 row_mask:0xf bank_mask:0xf
            v_mov_b32 v11, v10
            v_permlane16_swap_b32 v10, v11
            v_add_f32 v10, v10, v11
            v_mov_b32 v11, v10
            v_permlane32_swap_b32 v10, v11
            v_add_f32 v10, v10, v11
            v_cvt_pk_bf16_f32 v10, 0, v10
            v_add_f32 v10, s{sNA}, v10
            v_cvt_pk_bf16_f32 v10, 0, v10""")
            ids['nc'] = a(f"buffer_store_dword v10, v{vMN}, {WS}, 0 offen sc1")
    N1, N2, N3, N4, N5 = (k.par(n, d) for n, d in (('n1', 16), ('n2', 22), ('n3', 30), ('n4', 42), ('n5', 47)))
    sl.put(P(N1, 0), ncl)
    sl.put(P(N2, 0), nc2)
    def fnc():
        a.wait_vm(ids['nc'])
        a(f"buffer_store_dword v{vT}, v{vF}, {WS}, s{sFNC} offen sc1")
    sl.put(P(N3, 0), fnc)
    fncl = f"buffer_load_dwordx4 v[252:255], v2, {WS}, 0 offen offset:{W_FNC-4096} sc1"
    sl.put(P(N4, 0), fncl)
    pnc = sl.put(P(N5, 0), late_check(k, 'fnc', fncl, lambda: chk4(a, 252)))
    W1, W2, W3 = (k.par(n, d) for n, d in (('w1', 14), ('w2', 19), ('w3', 24)))
    wofl = f"buffer_load_dwordx4 v[252:255], v{vWOF}, {WS}, 0 offen sc1"
    sl.put(P(W1, 0), wofl)
    pwo = sl.put(P(W2, 0), late_check(k, 'wofl', wofl, lambda: chk4(a, 252)))
    sl.put(pwo + 1, f"buffer_load_dword v{vD2}, v{vPF}, {WS}, s{sPFO} offen sc1")
    F1, F2, F3, F4 = (k.par(n, d) for n, d in (('f1', 9), ('f2', 20), ('f3', 46), ('f4', 34)))
    if 'nopf' not in k.x:
        sl.put(P(F1, 0), f"buffer_load_dword v14, v{vPF}, {RA}, s{sPFW} offen")
        sl.put(P(F4, 0), f"buffer_load_dword v14, v{vPF}, {RC}, s{sPFD} offen")
    pos = sl.put(P(F2, 0), "s_barrier")
    sl.seq(pwo + 2, [f"v_not_b32 v252, s{sT}"] + [f"buffer_store_dwordx4 v[252:255], v13, {WS}, s{sXB} offen offset:{1024*q}" for q in range(4)], step=2)
    dma = []
    for g in range(6): dma += [wdma(q) for q in range(4)] + [WSTEP]
    if 'nodma' in k.x: dma = [WSTEP] * 6
    pos = sl.spread(pos + 1, P(F3, 0), dma)
    def mn2(): ids['mn'] = a(f"buffer_load_dwordx4 v13, {WS}, s{sMN} offen offset:1024 sc1 lds")
    sl.seq(max(pos, pnc + 1), [f"s_add_u32 m0, s{sMN}, {L_MODN}\ns_add_u32 s{sMN}, s{sMN}, {W_MODN}", f"buffer_load_dwordx4 v13, {WS}, s{sMN} offen sc1 lds", mn2])
    sl.seq(P(lasts[0] + 1, 0), [f"buffer_load_dwordx4 {vr(QB+4*q,4)}, v{vX}, {RX}, 0 offen offset:{16*q}" for q in range(2)])
    def wol(jj, ks): return f"buffer_load_dwordx4 {wo_reg(jj,ks)}, v{(13,2)[ks//4]}, {WS}, s{WOS[jj]} offen offset:{(ks%4)*1024} sc1"
    if 'nowo' not in k.x: sl.spread(P(W3, 0), P(k.par('w4', 59), 0), [wol(jj, ks) for jj in range(7) for ks in range(7)])
    a.section = 'att'
    k.stamp('att')
    for u in range(64):
        S, Pc = SB + 16 * (u & 1), PB + 8 * (u & 1)
        if u % 16 == 0 and u: k.stamp(f'u{u}')
        if u == 8: k.stamp('u8')
        for g in range(4):
            n0 = len(a.out)
            if g < 2 and u < 63: QK(u + 1, g)
            if g >= 2 and u > 0: PV(u - 1, g - 2)
            sl.run(a, P(u, g))
            odd = sum(isize(i) for i in a.out[n0:]) % 8
            for e in range(4):
                r = S + 4 * g + e
                a(f"v_exp_f32{'_e64' if (odd and e == 1) else ''} v{r}, v{r}")
            a(f"v_cvt_pk_bf16_f32 v{Pc+2*g}, v{S+4*g}, v{S+4*g+1}\nv_cvt_pk_bf16_f32 v{Pc+2*g+1}, v{S+4*g+2}, v{S+4*g+3}")
    a.section = 'att_post'
    PV(63, 0)
    for q in range(8): a(f"v_add_f32 v{OB+q}, v{OB+q}, v{OB+16+q}")
    PV(63, 1)
    for q in range(8, 16): a(f"v_add_f32 v{OB+q}, v{OB+q}, v{OB+16+q}")
    for q in range(8): a(f"v_pk_add_f32 {vr(OB+2*q,2)}, {vr(OB+2*q,2)}, {vr(OB+32+2*q,2)}")
    k.stamp('attend')
    k.ool.append(lambda: truemax(k, kvload, qload, QK))

def truemax(k, kvload, qload, QK):
    a = k.a
    a.set_state(([], []))
    a.section = 'truemax'
    M = PB
    a(f"L_truemax:\ns_mov_b32 s{sFB}, 1\ns_waitcnt vmcnt(0) lgkmcnt(0)\ns_nop 7")
    for ln in att_late(k): a(ln)
    for s in range(4):
        for ln in qload(s): a(ln + " sc1")
    a.wait_all()
    a("s_mov_b32 exec_lo, 0")
    for s in range(4): a(f"v_mov_b32 v{QB+8*s+6}, 0\nv_mov_b32 v{QB+8*s+7}, 0")
    a("s_mov_b32 exec_lo, -1")
    for s in range(4): a(f"v_mov_b32 v{M+s}, 0xff800000")
    a(f"s_lshl_b32 s70, s{sW}, 12\ns_add_u32 s70, s70, {W_KV}\nL_tm_loop:")
    a(kvload(0, 0, 70)); a(kvload(0, 1, 70))
    for s in range(4):
        d = OB + 16 * s
        a(f"""v_mfma_f32_32x32x16_bf16 {vr(d,16)}, {kreg(0,0)}, {vr(QB+8*s,4)}, 0
        v_mfma_f32_32x32x16_bf16 {vr(d,16)}, {kreg(0,1)}, {vr(QB+8*s+4,4)}, {vr(d,16)}""")
    for s in range(4):
        d = OB + 16 * s
        for r in range(0, 16, 2): a(f"v_max3_f32 v{M+s}, v{M+s}, v{d+r}, v{d+r+1}")
    a(f"s_add_u32 s70, s70, 0x4000\ns_cmp_lt_u32 s70, {W_KV+0x40000}\ns_cbranch_scc1 L_tm_loop")
    a(f"""v_and_b32 v10, 31, v1
    v_lshlrev_b32 v10, 4, v10
    s_lshl_b32 s71, s{sW}, 2
    s_barrier""")
    for s in range(4):
        a(f"""v_mov_b32 v{M+4}, v{M+s}
        v_permlane32_swap_b32 v{M+4}, v{M+s}
        v_max_f32 v{M+s}, v{M+s}, v{M+4}
        s_add_u32 s70, s{sW}, {1+s}
        s_and_b32 s70, s70, 3
        s_lshl_b32 s70, s70, 9
        s_add_u32 s70, s70, {L_OT}
        v_add_u32 v{M+8+s}, s70, v10
        v_add_u32 v11, s71, v{M+8+s}
        ds_write_b32 v11, v{M+s}""")
    k.barrier()
    for s in range(4): a(f"ds_read_b128 {vr(OB+4*s,4)}, v{M+8+s}")
    a("s_mov_b32 exec_lo, 0")
    for s in range(4):
        d = OB + 4 * s
        a(f"""v_max3_f32 v{d}, v{d}, v{d+1}, v{d+2}
        v_max_f32 v{d}, v{d}, v{d+3}
        v_and_b32 v{d+1}, s{sMASK}, v{d}
        v_sub_f32 v{d}, v{d}, v{d+1}
        v_and_b32 v{d+2}, s{sMASK}, v{d}
        v_sub_f32 v{d}, v{d}, v{d+2}
        v_cvt_pk_bf16_f32 v{QB+8*s+6}, -v{d+1}, -v{d+2}
        v_cvt_pk_bf16_f32 v{QB+8*s+7}, -v{d}, 0""")
    a("s_mov_b32 exec_lo, -1")
    for part in range(4): a(kvload(0, part))
    a(f"v_mov_b32 v15, -1\nv_mov_b32 v{pNS}, {OOB}\nv_mov_b32 v{vWS}, {OOB}")
    main_setup(k)
    a.wait_all()
    QK(0, 0); QK(0, 1)
    a("s_nop 15\ns_branch L_att_main")

def outproj(k):
    import k3
    a = k.a
    a.section = 'ored'
    O = OB
    for q in (6, 0, 1, 2, 3, 4, 5): a(f"v_pk_add_f32 {vr(O+2*q,2)}, {vr(O+2*q,2)}, {vr(OB+48+2*q,2)}")
    a(f"""v_mov_b32 v16, v{O+12}
    v_mov_b32 v17, v{O+12}
    v_pk_add_f32 {vr(O+14,2)}, {vr(O+14,2)}, {vr(OB+62,2)}
    v_mov_b32 v18, 0
    v_permlane32_swap_b32 v16, v17
    s_mov_b32 s68, {f32(2.0**-90):#x}
    s_mov_b32 s69, {f32(2.0**110):#x}
    v_rcp_f32 v16, v17
    v_cmp_nle_f32 s[80:81], s68, v17
    v_cmp_nge_f32 vcc, s69, v17
    v_mov_b32 v19, 0""")
    for q in range(8): a(f"v_pk_mul_f32 {vr(O+2*q,2)}, {vr(O+2*q,2)}, v[16:17] op_sel_hi:[1,0]")
    a("s_or_b64 s[80:81], s[80:81], vcc")
    for q in range(8):
        a(f"v_cvt_pk_bf16_f32 v{20+q}, v{O+2*q}, v{O+2*q+1}")
        if q in (1, 3, 5): a(f"ds_write_b64 v{vOTW}, {vr(19+q,2)} offset:{(0,0,0,8,0,32)[q]}")
    a(f"""s_mov_b32 exec_hi, 0
    ds_write_b64 v{vOTW}, v[26:27] offset:40
    s_mov_b32 exec_hi, -1""")
    for q in range(8): a(f"v_pk_fma_f32 v[18:19], {vr(O+2*q,2)}, 0, v[18:19] op_sel_hi:[1,0,1]")
    a(f"""v_cmp_u_f32 vcc, v18, v19
    s_lshl_b32 s68, s{sW}, 2
    s_add_u32 s68, s68, {L_MISC}
    v_mov_b32 v18, s68
    s_or_b64 s[80:81], s[80:81], vcc
    s_cselect_b32 s69, 1, 0
    v_mov_b32 v19, s69
    ds_write_b32 v18, v19
    v_mov_b32 v18, {L_MISC}
    s_lshl_b32 s68, s{sW}, 12
    s_add_u32 m0, s68, {6*16384}""")
    k.barrier()
    a.section = 'oproj'
    k.stamp('otile')
    BF, ACC, TG = OB, 16, 172
    a("ds_read_b128 v[44:47], v18")
    for ks in range(7): a(f"ds_read_b128 {vr(BF+4*ks,4)}, v{vOTR} offset:{64*ks}")
    for q in range(4): a(wdma(q))
    a(f"""v_or3_b32 v44, v44, v45, v46
    v_or_b32 v44, v44, v47
    s_nop 0
    v_readfirstlane_b32 s68, v44
    s_andn2_b32 s68, s68, s{sFB}
    s_cbranch_scc1 L_truemax""")
    def send(jjs):
        it = []
        for jj in jjs:
            it += [f"v_bfi_b32 v{TG+4*jj+e}, v{vFF}, s{sT0+e}, v{ACC+4*jj+e}" for e in range(4)]
        it.append(lambda: k.st([f"buffer_store_dwordx4 {vr(TG+4*jj,4)}, v{vXS}, {WS}, 0 offen offset:{512*jj}" for jj in jjs]))
        it.append(f"s_mov_b64 exec, s[{sOWN}:{sOWN+1}]\n" + "\n".join(f"ds_write_b128 v{vOWNW}, {vr(ACC+4*jj,4)} offset:{512*jj}" for jj in jjs) + "\ns_mov_b64 exec, -1")
        return it
    pend = []
    for grp in ((0, 1, 2), (3, 4), (5, 6)):
        n = 0
        for ks in range(7):
            for jj in grp:
                d = vr(ACC + 4 * jj, 4)
                a(f"v_mfma_f32_16x16x32_bf16 {d}, {wo_reg(jj,ks)}, {vr(BF+4*ks,4)}, {'0' if ks == 0 else d}")
                n += 1
                for _ in range(2):
                    if n > 5 and pend:
                        it = pend.pop(0)
                        it() if callable(it) else a(it)
        for it in pend: it() if callable(it) else a(it)
        pend = send(grp)
    XF, GA, CB, SBv, OWN, RC_ = 72, 96, 112, 128, 48, 208
    for q in range(4): a(f"v_lshlrev_b32 v{XF+2*q}, 16, v{QB+q}\nv_and_b32 v{XF+2*q+1}, s{sMASK}, v{QB+q}")
    for it in pend: it() if callable(it) else a(it)
    k.stamp('oproj')
    a.section = 'ln2'
    a("s_mov_b32 exec_hi, 0xffffff")
    def xl():
        for q in range(4): a(f"buffer_load_dwordx4 {vr(RC_+4*q,4)}, v{vXR}, {WS}, 0 offen offset:{128*q} sc1")
    xl()
    for q in range(4): a(f"ds_read_b128 {vr(OWN+4*q,4)}, v{vOWNR} offset:{128*q}\nds_read_b128 {vr(GA+4*q,4)}, v{vMOD} offset:{16*q}")
    for q in range(4, 8): a(f"v_lshlrev_b32 v{XF+2*q}, 16, v{QB+q}\nv_and_b32 v{XF+2*q+1}, s{sMASK}, v{QB+q}")
    for q in range(8): a(f"v_pk_fma_f32 {vr(XF+2*q,2)}, {vr(OWN+2*q,2)}, {vr(GA+2*q,2)}, {vr(XF+2*q,2)}")
    for q in range(4): a(f"ds_read_b128 {vr(CB+4*q,4)}, v{vMOD} offset:{3584+16*q}\nds_read_b128 {vr(SBv+4*q,4)}, v{vMOD} offset:{1792+16*q}")
    a(f"s_mov_b32 exec_hi, -1\nv_mov_b32 v44, 0\nv_mov_b32 v49, 0")
    k3.setup(k)
    a("s_mov_b32 exec_hi, 0xffffff")
    k.stamp('xpoll')
    k.poll('xc', xl, lambda: k.gran_check(list(range(RC_, RC_ + 16)), 9), first_issued=True)
    k.stamp('xdone')
    pre = k3.pre_items(k)
    def pp(n=1):
        for _ in range(n):
            if pre: pre.pop(0)()
    a("s_mov_b32 exec_hi, -1")
    pp(2)
    a("s_mov_b32 exec_hi, 0xffffff")
    for q in range(8): a(f"v_pk_fma_f32 {vr(XF+2*q,2)}, {vr(RC_+2*q,2)}, {vr(GA+2*q,2)}, {vr(XF+2*q,2)}")
    a(f"v_pk_add_f32 v[50:51], {vr(XF,2)}, {vr(XF+2,2)}\nv_pk_add_f32 v[46:47], {vr(XF+4,2)}, {vr(XF+6,2)}")
    for q in range(4, 8): a(f"v_pk_add_f32 {vr((50,46)[q&1],2)}, {vr((50,46)[q&1],2)}, {vr(XF+2*q,2)}")
    a("v_pk_add_f32 v[50:51], v[50:51], v[46:47]\nv_add_f32 v44, v50, v51\ns_mov_b32 exec_hi, -1")
    X1 = 16
    cv = [f"v_cvt_pk_bf16_f32 v{X1+q}, v{XF+2*q}, v{XF+2*q+1}" for q in range(8)]
    def xg(r, f):
        f = list(f) + [''] * 8
        a(f"""{f[0]}
        {f[1]}
        v_add_f32_dpp v{r}, v{r}, v{r} row_ror:8 row_mask:0xf bank_mask:0xf
        v_mov_b32 v{r+1}, v{r}
        {f[2]}
        {f[3]}
        v_permlane16_swap_b32 v{r}, v{r+1}
        v_add_f32 v{r}, v{r}, v{r+1}
        v_mov_b32 v{r+1}, v{r}
        {f[4]}
        {f[5]}
        v_permlane32_swap_b32 v{r}, v{r+1}
        v_add_f32 v{r}, v{r}, v{r+1}
        {f[6]}
        {f[7]}""")
    pp(); xg(44, cv); pp()
    a(f"v_mul_f32 v48, {f32(1/112):#x}, v44\ns_mov_b32 s68, {W_X1}\ns_mov_b32 exec_hi, 0xffffff")
    k.st([f"buffer_store_dwordx4 {vr(X1+4*q,4)}, v{vX}, {WS}, s68 offen offset:{16*q}" for q in range(2)])
    for q in range(8): a(f"v_pk_add_f32 {vr(XF+2*q,2)}, {vr(XF+2*q,2)}, v[48:49] op_sel_hi:[1,0] neg_lo:[0,1] neg_hi:[0,1]")
    a(f"v_pk_mul_f32 v[44:45], {vr(XF,2)}, {vr(XF,2)}\nv_pk_mul_f32 v[46:47], {vr(XF+2,2)}, {vr(XF+2,2)}")
    for q in range(2, 8): a(f"v_pk_fma_f32 {vr(44+2*(q&1),2)}, {vr(XF+2*q,2)}, {vr(XF+2*q,2)}, {vr(44+2*(q&1),2)}")
    a("v_pk_add_f32 v[44:45], v[44:45], v[46:47]\nv_add_f32 v49, v44, v45\ns_mov_b32 exec_hi, -1")
    pp()
    xg(49, [f"v_pk_mul_f32 {vr(XF+2*q,2)}, {vr(XF+2*q,2)}, {vr(CB+2*q,2)}" for q in range(6)])
    a(f"ds_write_b64 v{vSTW}, v[48:49]")
    for q in range(6, 8): a(f"v_pk_mul_f32 {vr(XF+2*q,2)}, {vr(XF+2*q,2)}, {vr(CB+2*q,2)}")
    pp(3)
    k.barrier()
    k.stamp('lnbar')
    a(f"""ds_read_b128 v[52:55], v{vSTR}
    ds_read_b128 v[56:59], v{vSTR} offset:16
    v_mov_b32 v60, {f32(1e-5):#x}
    v_pk_add_f32 v[44:45], v[52:53], v[54:55]
    v_pk_add_f32 v[46:47], v[56:57], v[58:59]
    v_pk_add_f32 v[44:45], v[44:45], v[46:47]
    v_fma_f32 v52, v44, -0.25, v52
    v_fma_f32 v54, v44, -0.25, v54
    v_fma_f32 v56, v44, -0.25, v56
    v_fma_f32 v58, v44, -0.25, v58
    v_fmac_f32 v60, {f32(1/448):#x}, v45
    v_mul_f32 v46, v52, v52
    v_fmac_f32 v46, v54, v54
    v_fmac_f32 v46, v56, v56
    v_fmac_f32 v46, v58, v58
    v_fmac_f32 v60, 0.25, v46
    v_rsq_f32 v46, v60
    v_fma_f32 v48, v44, -0.25, v48""".replace("-0.25", "s69").replace("v_mov_b32 v60", f"s_mov_b32 s69, {f32(-0.25):#x}\nv_mov_b32 v60").replace("0.25", f"{f32(0.25):#x}"))
    H2 = 24
    for h in range(2):
        for q in range(4 * h, 4 * h + 4): a(f"v_pk_fma_f32 {vr(XF+2*q,2)}, {vr(CB+2*q,2)}, v[48:49], {vr(XF+2*q,2)} op_sel_hi:[1,0,1]")
        for q in range(4 * h, 4 * h + 4): a(f"v_pk_fma_f32 {vr(XF+2*q,2)}, {vr(XF+2*q,2)}, v[46:47], {vr(SBv+2*q,2)} op_sel_hi:[1,0,1]")
        for q in range(4 * h, 4 * h + 4): a(f"v_cvt_pk_bf16_f32 v{H2+q}, v{XF+2*q}, v{XF+2*q+1}")
    last = k.st([f"buffer_store_dwordx4 {vr(H2+4*h,4)}, v{vH2}, {WS}, 0 offen offset:{512*h}" for h in range(2)])
    k.stamp('h2st')
    return last

def rest(k):
    import k3
    attention(k)
    last = outproj(k)
    if k.stop == 'att':
        k.a.wait_all()
    else:
        k3.ffn(k, last)
```

```python
from k import *
from k2 import Slots, isize, late_check, vX, vH2

ACA, ACB = 16, 80
AR, NAR = 144, 6
def h2reg(ks):
    if ks < 18: return vr(168 + 4 * ks, 4)
    if ks < 26: return ar(224 + 4 * (ks - 18), 4)
    return vr(244 + 4 * (ks - 26), 4)
vTR, vDV, vDT, vF3, vF4, vO, vGB, vRW = 3, 10, 14, 7, 12, 240, 242, 243
sG, sHG, sHS, sFL, sH2, sD, sST, sF3, sX1, sRR = 4, 8, 14, 22, 24, 28, 29, 25, 70, 72

def setup(k):
    a = k.a
    a(f"""s_mul_i32 s75, s{sR}, 9363
    s_lshr_b32 s75, s75, 16
    s_mul_i32 s76, s75, 7
    s_sub_u32 s76, s{sR}, s76
    s_lshl_b32 s77, s{sXC}, 2
    s_add_u32 s78, s77, s75
    s_add_u32 s77, s77, s{sW}
    s_lshl_b32 s77, s77, 1
    s_lshl_b32 s78, s78, 1
    v_lshrrev_b32 v228, 4, v1
    v_bfe_u32 v229, v1, 2, 2
    v_and_b32 v230, 1, v1
    v_bfe_u32 v231, v1, 1, 1
    v_lshlrev_b32 v230, 4, v230
    v_lshl_add_u32 v230, v231, 3, v230
    v_lshl_add_u32 v230, v229, 7, v230
    v_lshrrev_b32 v229, 1, v229
    v_and_b32 v231, 1, v228
    v_lshl_add_u32 v232, v231, 1, v229
    v_lshl_add_u32 v232, v232, 5, v230
    v_lshl_add_u32 v{vTR}, v228, 12, v232
    v_xor_b32 v{vTR+1}, 32, v{vTR}
    v_xor_b32 v{vTR+2}, 64, v{vTR}
    v_xor_b32 v{vTR+3}, 96, v{vTR}
    s_lshl_b32 s{sST}, s{sW}, 13
    s_add_u32 s{sST}, s{sST}, {L_ST}
    v_lshl_add_u32 v232, v229, 1, v231
    v_lshl_add_u32 v232, v232, 5, v230
    v_lshrrev_b32 v228, 5, v1
    v_lshl_add_u32 v232, v228, 10, v232
    v_add_u32 v{vDT}, s{sST}, v232
    v_xor_b32 v{vDT+1}, 64, v{vDT}
    v_add_u32 v{vRW}, s{sST}, v13
    v_lshrrev_b32 v229, 3, v1
    v_and_b32 v230, 7, v1
    v_and_b32 v231, 2, v229
    v_xor_b32 v231, s{sW}, v231
    v_lshlrev_b32 v231, 1, v231
    v_xor_b32 v231, v231, v230
    v_mul_u32_u24 v229, 896, v229
    v_lshl_add_u32 v{vDV}, v231, 4, v229
    v_add_u32 v{vDV+1}, {8*896-1024}, v{vDV}
    s_mul_i32 s79, s{sW}, {448*896}
    s_lshl_b32 s80, s76, 7
    s_add_u32 s79, s79, s80
    s_cmp_lt_u32 s{sR}, 28
    s_cselect_b32 s79, s79, {OOB}
    s_mul_i32 s81, s78, {112*1024}
    s_mul_i32 s{sD}, s{sW}, {28*1024}
    s_add_u32 s81, s81, s{sD}
    s_add_u32 s81, s81, {W_H}""")
    for g in range(4):
        a(f"""s_add_u32 s{sD}, s75, {g}
        s_and_b32 s{sD}, s{sD}, {3}
        s_mul_i32 s{sG+g}, s{sD}, {112*896}
        s_mul_i32 s{sHG+g}, s{sD}, 7168
        s_add_u32 s{sG+g}, s{sG+g}, s79
        s_add_u32 s{sHG+g}, s{sHG+g}, s81""")
    a(f"""s_mul_i32 s{sHS}, s77, {112*1024}
    s_lshl_b32 s79, s{sR}, 12
    s_add_u32 s{sHS}, s{sHS}, s79
    s_add_u32 s{sHS}, s{sHS}, {W_H}
    s_add_u32 s{sHS+1}, s{sHS}, {112*1024}
    s_lshl_b32 s79, s77, 7
    s_lshl_b32 s{sFL}, s{sR}, 2
    s_add_u32 s{sFL}, s{sFL}, s79
    s_add_u32 s{sFL}, s{sFL}, {W_F4}
    s_add_u32 s{sFL+1}, s{sFL}, 128
    s_mul_i32 s{sH2}, s77, 28672
    s_add_u32 s{sH2}, s{sH2}, {W_H2}
    s_add_u32 s79, s79, {W_F3}
    v_and_b32 v229, 15, v1
    v_lshl_add_u32 v229, v229, 2, s79
    v_bfe_u32 v231, v1, 4, 1
    v_lshl_add_u32 v{vF3}, v231, 7, v229
    s_lshl_b32 s79, s78, 7
    s_mul_i32 s81, s{sW}, 28
    s_add_u32 s79, s79, s81
    s_add_u32 s79, s79, {W_F4}
    v_min_u32 v230, 6, v230
    v_lshl_add_u32 v{vF4}, v230, 2, s79
    s_lshr_b32 s79, s{sI}, 2
    s_lshl_b32 s79, s79, 3
    s_and_b32 s81, s{sI}, 3
    s_add_u32 s79, s79, s81
    s_lshl_b32 s79, s79, 2
    s_add_u32 s79, s79, s{sW}
    s_lshl_b32 s79, s79, 2
    s_add_u32 s{sF3}, s79, {W_F3}
    s_lshl_b32 s81, s{sW}, 5
    s_add_u32 s80, s80, s81
    s_mul_i32 s79, s78, {32*896}
    s_add_u32 s79, s79, s80
    v_and_b32 v229, 31, v1
    v_mul_u32_u24 v229, 896, v229
    v_lshl_add_u32 v229, v228, 4, v229
    v_add_u32 v238, s79, v229
    s_lshl_b32 s80, s80, 1
    s_add_u32 s80, s80, {L_MODN+5376}
    v_lshl_add_u32 v{vGB}, v228, 5, s80
    s_mov_b32 s{sX1}, {W_X1}
    s_mov_b32 s{sX1+1}, {W_X1+32*896}""")
    for q in range(1, 4):
        a(f"""s_xor_b32 s79, s{sW}, {q}
        s_lshl_b32 s79, s79, 13
        s_add_u32 s{sRR+q-1}, s79, {2048*(q-1)}""")
    k.srd(R_B, S_OUT, 2048 * 896)

class Wd:
    def __init__(self, k): self.a = k.a; self.ids = {}
    def wd_a(self, kk):
        def f():
            if kk >= 4: self.a.wait_lg(self.ids[('t', kk - 4)])
            self.a(f"s_add_u32 m0, s{sST}, {2048*(kk&3)}\ns_add_u32 s{sD}, s{sG+kk//7}, {(kk%7)*16*896}\nbuffer_load_dwordx4 v{vDV}, {RC}, s{sD} offen lds")
        return f
    def wd_b(self, kk):
        def f(): self.ids[('d', kk)] = self.a(f"buffer_load_dwordx4 v{vDV+1}, {RC}, s{sD} offen offset:1024 lds")
        return f
    def wd_t(self, kk, sub, u):
        def f():
            self.a.wait_vm(self.ids[('d', kk)])
            self.ids[('t', kk)] = self.a(f"ds_read_b64_tr_b16 {ar(8*kk+4*sub+2*u,2)}, v{vDT+sub} offset:{2048*(kk&3)+512*u}")
        return f

def pre_items(k):
    k.wd = Wd(k)
    return [f(kk) for kk in range(k.par('pre', 4)) for f in (k.wd.wd_a, k.wd.wd_b)]

def ffn(k, last):
    a = k.a
    wd_a, wd_b, wd_t, ids, PRE = k.wd.wd_a, k.wd.wd_b, k.wd.wd_t, k.wd.ids, k.par('pre', 4)
    a.section = 'd3'
    chk1 = lambda: a(f"v_cmp_ne_u32 vcc, s{sT}, v9")
    a(f"v_mov_b32 v{vO}, v238")
    a.wait_vm(last)
    k.st([f"buffer_store_dword v{vT}, v{vF}, {WS}, s{sF3} offen"])
    k.stamp('f3')
    a(f"s_cmp_lt_u32 s{sR}, 28\ns_cbranch_scc0 L_g2_done")
    d3l = f"buffer_load_dword v9, v{vF3}, {WS}, 0 offen sc1"
    a(d3l)
    steps = [(p, ks, t) for p in range(2) for ks in range(28) for t in range(4)]
    N = len(steps)
    def aread(n):
        p, ks, t = steps[n]
        r = AR + 4 * (n % NAR)
        if ks == 16: a(f"v_add_u32 v{vTR+t}, 0x10000, v{vTR+t}")
        if ks == 0 and p == 1: a(f"v_subrev_u32 v{vTR+t}, 0x10000, v{vTR+t}")
        for u in range(2):
            a(f"ds_read_b64_tr_b16 {vr(r+2*u,2)}, v{vTR+t} offset:{((ks>>2)&3)*16384+(ks&3)*1024+512*u}")
    PF = 4
    for kk in range(PRE):
        for sub in range(2):
            for u in range(2): wd_t(kk, sub, u)()
    for n in range(PF): aread(n)
    k.poll('d3', lambda: a(d3l), chk1, first_issued=True)
    k.stamp('d3done')
    a.section = 'g1'
    def h2l(p, ks):
        c = (28 * p + ks) % 8
        t = f"buffer_load_dwordx4 {h2reg(ks)}, v{(13,2)[c//4]}, {WS}, s{sH2} offen offset:{1024*(c%4)} sc1"
        if c == 7: t += f"\ns_add_u32 s{sH2}, s{sH2}, 8192"
        return t
    def hreg(st, kk):
        if st == 0: return vr(ACA + 4 * kk, 4) if kk < 16 else h2reg(kk - 16)
        if kk < 10: return h2reg(18 + kk)
        if kk < 26: return vr(ACA + 4 * (kk - 10), 4)
        return h2reg(kk - 26)
    def hl(st, kk):
        c = kk % 7
        return f"buffer_load_dwordx4 {hreg(st,kk)}, v{(13,2)[c//4]}, {WS}, s{sHG+kk//7} offen offset:{1024*(c%4)} sc1"
    def epi(p, t):
        d = (ACA, ACB)[p] + 16 * t
        it = []
        for q in range(4):
            it += [f"v_max_f32 v{d+2*q}, 0, v{d+2*q}\nv_max_f32 v{d+2*q+1}, 0, v{d+2*q+1}",
                   f"v_mul_f32 v{d+2*q}, v{d+2*q}, v{d+8+2*q}\nv_mul_f32 v{d+2*q+1}, v{d+2*q+1}, v{d+9+2*q}\nv_cvt_pk_bf16_f32 v{d+q}, v{d+2*q}, v{d+2*q+1}"]
        def st(): ids[('h', p)] = k.st([f"buffer_store_dwordx4 {vr(d,4)}, v13, {WS}, s{sHS+p} offen offset:{1024*t}"])
        return it, st
    def hflag(p):
        def f():
            a.wait_vm(ids[('h', p)])
            k.st([f"buffer_store_dword v{vT}, v{vF}, {WS}, s{sFL+p} offen"])
        return f
    NG = N + 112
    va, vm, tr = Slots(NG), Slots(NG), Slots(NG)
    NPRE = k.par('npre', 6)
    for ks in range(NPRE): a(h2l(0, ks))
    EA, EB = 112 + 3, N + 2
    pos = EA
    for t in range(4):
        it, st = epi(0, t)
        pos = va.seq(pos, it); vm.put(pos, st)
    pea = pos
    pfa = vm.put(pos + k.par('fa', 22), hflag(0))
    f4a = f"buffer_load_dword v9, v{vF4}, {WS}, 0 offen sc1"
    f4b = f"buffer_load_dword v9, v{vF4}, {WS}, 0 offen offset:128 sc1"
    pla = vm.put(pfa + k.par('la', 16), f4a)
    pca = va.put(pla + k.par('ca', 14), late_check(k, 'f4a', f4a, chk1))
    pos = EB
    for t in range(4):
        it, st = epi(1, t)
        pos = va.seq(pos, ["\n".join(it[2*q:2*q+2]) for q in range(4)]); vm.put(pos, st)
    peb = pos
    pfb = vm.put(pos + k.par('fb', 14), hflag(1))
    plb = vm.put(min(pfb + k.par('lb', 12), N + 55), f4b)
    ST = k.par('vst', 2)
    LAG, SL = k.par('lag', 18), k.par('slack', 24)
    q = [(0, 4 * ks, h2l(0, ks)) for ks in range(NPRE, 28)] + [(4 * ks + 4, 112 + 4 * ks, h2l(1, ks)) for ks in range(28)]
    q += [(max(pca + 1, 112 + 4 * (kk - 16) + 4), N + 2 * kk, hl(0, kk)) for kk in range(28)]
    kk = PRE; tdone = {}; pos = 0
    while q or kk < 28:
        wd_ok = kk < 28 and tdone.get(kk - 4, 0) <= pos
        if q and q[0][0] <= pos and (not wd_ok or (q[0][1] - SL <= pos and q[0][1] < N + 2 * kk - LAG)):
            e = q.pop(0); p = vm.put(pos, e[2]); assert p < e[1], ('late', p, e); pos = p + ST
        elif wd_ok:
            pos = vm.put(pos, wd_a(kk)) + ST
            pos = vm.put(pos, wd_b(kk)) + ST
            tdone[kk] = tr.seq(pos - ST + LAG, [wd_t(kk, sub, u) for sub in range(2) for u in range(2)]) + 1
            assert tdone[kk] < N + 2 * kk, ('Wd late', kk, tdone[kk])
            kk += 1
        else: pos += 1
    k.info = dict(pca=pca, endstream=pos, tlast=tdone[27], pfb=pfb, plb=plb)
    G2 = ((144, 216), (ACB, ACB + 16))
    XV = 252
    vm.put(N + 20, f"buffer_load_dwordx4 {vr(XV,4)}, v{vO}, {WS}, s{sX1} offen sc1")
    def quarter(st, q): return G2[st][q >> 1] + 8 * (q & 1)
    def red_w(st): return [f"ds_write_b128 v{vRW}, {vr(quarter(st,q)+4*h,4)} offset:{2048*(q-1)+1024*h}" for q in (2, 3, 1) for h in range(2)]
    def red_r(st): return [f"ds_read_b128 {vr(quarter(st,q)+4*h,4)}, v{vTR+q-1} offset:{1024*h}" for q in (1, 2, 3) for h in range(2)]
    GB, XF = 160, 232
    def fin(st, pk):
        o = quarter(st, 0)
        it = []
        for q in (1, 2, 3):
            r = quarter(st, q)
            if pk: it += [f"v_pk_add_f32 {vr(o+2*e,2)}, {vr(o+2*e,2)}, {vr(r+2*e,2)}" for e in range(4)]
            else: it += [f"v_add_f32 v{o+e}, v{o+e}, v{r+e}" for e in range(8)]
        if pk: it += [f"v_pk_fma_f32 {vr(o+2*e,2)}, {vr(o+2*e,2)}, {vr(GB+2*e,2)}, {vr(XF+2*e,2)}" for e in range(4)]
        else: it += [f"v_fma_f32 v{o+e}, v{o+e}, v{GB+e}, v{XF+e}" for e in range(8)]
        it += [f"v_cvt_pk_bf16_f32 v{o+e}, v{o+2*e}, v{o+2*e+1}" for e in range(4)]
        return it
    unp = [f"v_lshlrev_b32 v{XF+2*e}, 16, v{XV+e}\nv_and_b32 v{XF+2*e+1}, s{sMASK}, v{XV+e}" for e in range(4)]
    ost = lambda st: f"buffer_store_dwordx4 {vr(quarter(st,0),4)}, v{vO}, {RB}, {('0', 's79')[st]} offen"
    va.seq(N + 30, [f"v_add_u32 v{vTR+q}, s{sRR+q}, v13\nv_add_u32 v{vTR+q}, {L_ST}, v{vTR+q}" for q in range(3)] + unp)
    tr.seq(N + 30, [f"ds_read_b128 {vr(GB+4*h,4)}, v{vGB} offset:{16*h}" for h in range(2)])
    va.put(N + 44, "\n".join(f"s_add_u32 s{sHG+g}, s{sHG+g}, {112*1024}" for g in range(4)))
    assert k.info['endstream'] < N + 44, k.info
    k.stamp('g1')
    def run(n):
        vm.run(a, n); tr.run(a, n); va.run(a, n)
    for n, (p, ks, t) in enumerate(steps):
        d = vr((ACA, ACB)[p] + 16 * t, 16)
        a(f"v_mfma_f32_32x32x16_bf16 {d}, {vr(AR+4*(n%NAR),4)}, {h2reg(ks)}, {'0' if ks == 0 else d}")
        if n + PF < N: aread(n + PF)
        run(n)
        if n == 111: k.stamp('g1a')
    k.stamp('g1end')
    a.section = 'g2'
    def mm(st, kk, sub):
        d = vr(G2[st][sub], 16)
        a(f"v_mfma_f32_32x32x16_bf16 {d}, {ar(8*kk+4*sub,4)}, {hreg(st,kk)}, {'0' if kk == 0 else d}")
    for kk in range(28):
        for i_, sub in enumerate((1, 0)):
            mm(0, kk, sub); run(N + 2 * kk + i_)
    k.stamp('d4a')
    k.poll('d4b', lambda: a(f4b), chk1, first_issued=True)
    k.stamp('d4b')
    NP2 = k.par('np2', 8)
    w0 = red_w(0)
    for kk in range(NP2):
        a(hl(1, kk))
        if kk < 6: a(w0[kk])
    k.barrier()
    for ln in red_r(0): a(ln)
    B = N + 56
    vm.seq(B, [hl(1, kk) for kk in range(NP2, 28)], step=2)
    it = fin(0, False)
    pos = va.seq(B + 2, ["\n".join(it[i_:i_+3]) for i_ in range(0, len(it), 3)])
    pos = vm.put(pos + 1, ost(0))
    pos = vm.put(pos + 1, f"buffer_load_dwordx4 {vr(XV,4)}, v{vO}, {WS}, s{sX1+1} offen sc1")
    va.seq(pos + 2, [f"v_subrev_u32 v{vTR+q}, {L_ST}, v{vTR+q}" for q in range(3)] + [f"v_subrev_u32 v{vRW}, {L_ST}, v{vRW}\ns_movk_i32 s79, {32*896}"])
    va.seq(B + 46, unp)
    order = [(kk, sub) for kk in range(25) for sub in (1, 0)] + [(kk, 1) for kk in range(25, 28)] + [(kk, 0) for kk in range(25, 28)]
    for i_, (kk, sub) in enumerate(order):
        mm(1, kk, sub); run(B + i_)
    k.stamp('g2end')
    for ln in red_w(1): a(ln)
    k.barrier()
    for ln in red_r(1): a(ln)
    for ln in fin(1, True): a(ln)
    a(ost(1))
    a("L_g2_done:")
```

```python
import sys, struct, math
sys.path.insert(0, "gen")
from fw import Asm, Ins

NAME = "adaLN_cond__grouped_kv_mqa__glu_gated_reglu__prompt"
def f32(x): return struct.unpack('<I', struct.pack('<f', x))[0]
def vr(b, n=1, k='v'): return f"{k}{b}" if n == 1 else f"{k}[{b}:{b+n-1}]"
def ar(b, n=1): return vr(b, n, 'a')
def sr(b, n=1): return vr(b, n, 's')

W_EPOCH = 0
W_XID = 0x400
W_FWO = 0x1000
W_FNC = 0x1400
W_FQ = 0x4000
W_F3 = 0x6000
W_F4 = 0x8000
W_FK = 0x10000
W_MODC = 0x18000
W_MODN = 0x20000
W_NCP = 0x24000
W_KV = 0x40000
W_KVL = 0x80000
W_Q = 0x100000
W_X1 = 0x300000
W_H2 = 0x500000
W_WO = 0x6E0000
W_XC = 0x780000
W_H = 0xB80000
W_STAMP = 0x1280000
W_SIZE = 0x2000000
OOB = 0x7000_0000
L_HT = 114688
L_P0 = L_HT
L_SILU = L_HT + 4096
L_MODL = 143872
L_MODN = 147456
L_NC = 147456
L_NS = 155648
L_WOST = 156160
L_OS = 98304
L_ST = 114688
L_OT = 154624
L_MISC = 162816
LDS_SIZE = 163840
S_X, S_WQ, S_WK, S_WV, S_WO, S_WG, S_WU, S_WD, S_C, S_WM, S_OUT, S_DBG, S_WS = 4, 6, 8, 10, 12, 16, 18, 20, 22, 24, 26, 28, 30
R_WS, R_X, R_A, R_B, R_C = 32, 36, 40, 44, 48
sI, sW, sT, sXC, sR = 52, 53, 54, 55, 56
sT0 = 57
sMASK = 61
sCNT = 62
sFB = 63
sLOC, sE = 2, 3
s0 = 64
S_STAMP = 82
POLL_LIMIT = 20000
WS, RX, RA, RB, RC = (f"s[{r}:{r+3}]" for r in (R_WS, R_X, R_A, R_B, R_C))
(pWV, pXV, pTR, pHW, pHR, pQS, pML, pD1, pXI, pGW, pGA, pNV, pNS, pNA, pNB, pNW, pNT, pC, pC1, pC2, pC3, pC4, pWO, pWT,
 p0V, p0C, p0D, pNO, pT0, pT1, pJ0, pJ1) = range(176, 208)
vT, vF = 241, 8

class K:
    def __init__(self, stamps=False, stop=None, x=(), probe=None):
        self.x = set(x); self.probe = probe
        self.a = Asm()
        self.stamps = stamps
        self.nstamp = 0
        self.stop = stop
        self.stamp_names = []

    def par(self, name, default):
        for x in self.x:
            if x.startswith(name + '='): return int(x.split('=')[1])
        return default

    def stamp(self, name):
        if not self.stamps or name not in self.stamps: return
        assert self.nstamp < 10
        r = S_STAMP + 2 * self.nstamp
        self.a(f"{'s_memtime' if 'cyc' in self.x else 's_memrealtime'} {sr(r,2)}")
        self.nstamp += 1
        self.stamp_names.append(name)

    def srd(self, r, ptr, size):
        self.a(f"""s_mov_b32 s{r}, s{ptr}
        s_mov_b32 s{r+1}, s{ptr+1}
        s_mov_b32 s{r+2}, {size}
        s_mov_b32 s{r+3}, 0x20000""")

    def barrier(self):
        self.a.wait_lg()
        self.a("s_barrier")

    def prologue(self):
        a = self.a
        a.section = 'prologue'
        a(f"""s_cmp_ge_u32 s2, 256
        s_cbranch_scc1 L_end
        s_load_dwordx4 s[28:31], s[0:1], 96
        s_load_dwordx8 s[20:27], s[0:1], 64
        s_load_dwordx16 s[4:19], s[0:1], 0""")
        self.stamp('start')
        a(f"""v_lshrrev_b32 v2, 6, v0
        v_and_b32 v1, 63, v0
        s_and_b32 s{sXC}, s2, 7
        v_readfirstlane_b32 s{sW}, v2
        s_lshr_b32 s{sR}, s2, 3
        s_lshl_b32 s{sI}, s{sXC}, 5
        s_add_u32 s{sI}, s{sI}, s{sR}
        s_mov_b32 s{sMASK}, 0xffff0000
        s_mov_b32 s{sFB}, 0""")

    def p0_setup(self):
        a = self.a
        a(f"""v_lshrrev_b32 v3, 1, v1
        v_and_b32 v4, 1, v1
        v_mul_u32_u24 v3, 5376, v3
        v_lshl_add_u32 v{p0V}, v4, 4, v3
        v_min_u32 v4, 55, v1
        s_and_b32 s68, s{sI}, 3
        s_lshr_b32 s69, s{sI}, 2
        s_mul_i32 s70, s68, 224
        v_lshl_add_u32 v{p0C}, v4, 2, s70
        v_lshlrev_b32 v{pT0}, 7, v1
        s_mul_i32 s64, s68, {112*5376}
        s_lshl_b32 s70, s69, 5
        s_add_u32 s64, s64, s70
        s_movk_i32 s70, 224
        s_cmp_eq_u32 s{sW}, 1
        s_cselect_b32 s70, 196, s70
        s_lshl_b32 s71, s{sW}, 2
        s_lshr_b32 s67, 0x3021, s71
        s_and_b32 s67, s67, 15
        s_cmp_ge_u32 s{sI}, s70
        s_cselect_b32 s67, 0, s67
        s_mov_b32 m0, {L_P0}""")

    def p0_loads(self):
        a = self.a
        a(f"global_load_dword v{p0D}, v{p0C}, s[{S_C}:{S_C+1}]")
        for p in range(4):
            if p == 3: a("s_mov_b32 exec_hi, 0")
            last = a(f"buffer_load_dwordx4 v{p0V}, {RA}, s64 offen lds")
            if p < 3: a(f"s_add_u32 m0, m0, 1024\ns_add_u32 s64, s64, {32*5376}")
        a("s_mov_b32 exec_hi, -1")
        return last

    def w_prefetch(self):
        self.a(f"""s_cmp_lt_u32 s{sI}, 238
        s_cselect_b32 s{R_C}, s{S_WK}, s{S_WV}
        s_cselect_b32 s{R_C+1}, s{S_WK+1}, s{S_WV+1}
        s_movk_i32 s70, 238
        s_cselect_b32 s70, 224, s70
        s_cmp_lt_u32 s{sI}, 224
        s_cselect_b32 s{R_C}, s{S_WQ}, s{R_C}
        s_cselect_b32 s{R_C+1}, s{S_WQ+1}, s{R_C+1}
        s_cselect_b32 s70, 0, s70
        s_mov_b32 s71, 401408
        s_cselect_b32 s{R_C+2}, s71, 25088
        s_mov_b32 s{R_C+3}, 0x20000
        s_sub_u32 s70, s{sI}, s70
        s_mul_i32 s70, s70, 1792
        s_mov_b64 exec, 0x3fff
        buffer_load_dword v{pJ0}, v{pT0}, {RC}, s70 offen
        s_mov_b64 exec, -1""")

    def tagcalc(self):
        self.a(f"""s_and_b32 s70, s{sE}, 0x7f7f7f7f
        s_and_b32 s71, s{sE}, 0x80808080
        s_add_u32 s70, s70, 0x01010101
        s_xor_b32 s{sT}, s70, s71""")

    def silu(self, regs, tmp):
        a = self.a
        for k, r in enumerate(regs): a(f"v_mul_f32 v{tmp+k}, {f32(-math.log2(math.e)):#x}, v{r}")
        for k, r in enumerate(regs): a(f"v_exp_f32 v{tmp+k}, v{tmp+k}")
        for k, r in enumerate(regs): a(f"v_add_f32 v{tmp+k}, 1.0, v{tmp+k}")
        for k, r in enumerate(regs): a(f"v_rcp_f32 v{tmp+k}, v{tmp+k}")
        for k, r in enumerate(regs): a(f"v_mul_f32 v{r}, v{r}, v{tmp+k}")

    def p0_compute(self, last):
        a = self.a
        A0, B0, D = 128, 142, 156
        a(f"""v_lshlrev_b32 v161, 3, v1
        v_lshrrev_b32 v160, 4, v1
        v_lshlrev_b32 v160, 3, v160
        v_lshlrev_b32 v162, 2, v1
        v_add_u32 v161, {L_P0}, v161
        v_add_u32 v160, {L_SILU}, v160
        v_add_u32 v163, {L_SILU}, v162
        s_lshl_b32 s66, s{sI}, 7
        s_add_u32 s66, s66, {W_MODC}
        s_mov_b32 s71, 0xffffff00
        v_lshlrev_b32 v164, 16, v{p0D}
        v_and_b32 v165, s{sMASK}, v{p0D}""")
        self.silu([164, 165], 166)
        a("v_cvt_pk_bf16_f32 v164, v164, v165\nds_write_b32 v163, v164")
        for s in range(7): a(f"ds_read_b64 {vr(A0+2*s,2)}, v160 offset:{32*s}")
        a.wait_vm(last)
        for s in range(7): a(f"ds_read_b64_tr_b16 {vr(B0+2*s,2)}, v161 offset:{512*s}")
        for s in range(7):
            a(f"v_mfma_f32_16x16x16_bf16 {vr(D,4)}, {vr(A0+2*s,2)}, {vr(B0+2*s,2)}, {'0' if s==0 else vr(D,4)}")
        a(f"""s_mov_b64 exec, 0xffff
        v_add_u32 v164, 0x80, v{D}
        v_and_or_b32 v164, v164, s71, v{pNT}
        buffer_store_dword v164, v162, {WS}, s66 offen sc1
        s_mov_b64 exec, -1""")

    def nc_setup(self):
        self.a(f"""s_mul_i32 s70, s{sI}, 9363
        s_lshr_b32 s70, s70, 16
        s_mul_i32 s71, s70, 7
        s_sub_u32 s71, s{sI}, s71
        s_lshl_b32 s72, s71, 7
        v_and_b32 v{pT0}, 31, v1
        v_lshl_add_u32 v{pT1}, v{pT0}, 2, s72
        global_load_dword v{pC}, v{pT1}, s[{S_C}:{S_C+1}]
        s_mul_i32 s71, s71, {64*5376}
        s_lshl_b32 s70, s70, 7
        s_add_u32 s70, s70, s71
        s_lshl_b32 s71, s{sW}, 5
        s_add_u32 s70, s70, s71
        s_add_u32 s70, s70, 1792
        s_lshl_b32 s71, s{sI}, 2
        s_add_u32 s71, s71, s{sW}
        s_lshl_b32 s71, s71, 6
        s_add_u32 s71, s71, {W_NCP}
        s_cmp_lt_u32 s{sI}, 196
        s_cselect_b32 s70, s70, {OOB}
        s_cselect_b32 s71, s71, {OOB}
        v_add_u32 v{pNV}, s70, v{p0V}
        v_lshl_add_u32 v{pNS}, v1, 2, s71
        v_mov_b32 v{pNO}, {OOB}
        v_cmp_gt_u32 vcc, 16, v1
        s_lshl_b32 s70, s{sW}, 7
        s_add_u32 s70, s70, {L_NS}
        v_cndmask_b32 v{pNS}, v{pNO}, v{pNS}, vcc
        v_lshl_add_u32 v{pNW}, v{pT0}, 2, s70
        v_lshrrev_b32 v{pT0}, 4, v1
        v_lshl_add_u32 v{pNA}, v{pT0}, 4, s70
        s_lshl_b32 s70, s{sW}, 11
        s_add_u32 s70, s70, {L_NC}
        v_lshl_add_u32 v{pNB}, v{pT0}, 8, s70
        v_and_b32 v{pT0}, 15, v1
        v_lshl_add_u32 v{pNB}, v{pT0}, 3, v{pNB}""")
    def nc_silu(self):
        a = self.a
        a(f"v_lshlrev_b32 v{pC1}, 16, v{pC}\nv_and_b32 v{pC2}, s{sMASK}, v{pC}")
        self.silu([pC1, pC2], pC3)
        a(f"v_cvt_pk_bf16_f32 v{pC1}, v{pC1}, v{pC2}\nds_write_b32 v{pNW}, v{pC1}")
    def nc_loads(self):
        self.a(f"""s_lshl_b32 s70, s{sW}, 11
        s_add_u32 m0, s70, {L_NC}
        s_mov_b32 s70, {32*5376-1024}
        buffer_load_dwordx4 v{pNV}, {RA}, 0 offen lds
        buffer_load_dwordx4 v{pNV}, {RA}, s70 offen offset:1024 lds""")
    def nc_compute(self):
        a = self.a
        A0, B0, D = 128, 136, 112
        for s in range(2):
            a(f"""ds_read_b128 {vr(A0+4*s,4)}, v{pNA} offset:{64*s}
            ds_read_b64_tr_b16 {vr(B0+4*s,2)}, v{pNB} offset:{1024*s}
            ds_read_b64_tr_b16 {vr(B0+4*s+2,2)}, v{pNB} offset:{1024*s+128}""")
        a("s_cmp_eq_u32 s67, 2")
        with a.guard('wo', 's_cbranch_scc0'):
            for e in range(2):
                for u in range(2): a(f"ds_read_b64_tr_b16 {vr(96+4*e+2*u,2)}, v{pWT} offset:{256*u+32*e}")
        for s in range(2):
            a(f"v_mfma_f32_16x16x32_bf16 {vr(D,4)}, {vr(A0+4*s,4)}, {vr(B0+4*s,4)}, {'0' if s==0 else vr(D,4)}")
    def nc_finish(self):
        self.a(f"""v_add_u32 v{pNO}, 0x80, v112
        v_bfi_b32 v{pNO}, v251, v{pNT}, v{pNO}""")

    def wo_setup(self):
        self.srd(R_C, S_WO, 401408)
        self.a(f"""s_mul_i32 s70, s{sI}, 9363
        s_lshr_b32 s70, s70, 17
        s_mul_i32 s71, s70, 14
        s_sub_u32 s71, s{sI}, s71
        s_mul_i32 s72, s71, {32*896}
        s_lshl_b32 s73, s70, 6
        s_add_u32 s72, s72, s73
        s_mul_i32 s70, s70, 28
        s_add_u32 s70, s70, s71
        s_lshl_b32 s70, s70, 10
        s_add_u32 s70, s70, {W_WO}
        v_add_u32 v228, s70, v13
        v_add_u32 v{pWO}, s72, v{pWV}
        v_lshrrev_b32 v{pWT}, 4, v1
        v_bfe_u32 v{pT0}, v1, 2, 2
        v_lshl_add_u32 v{pWT}, v{pWT}, 3, v{pT0}
        v_and_b32 v{pT0}, 3, v1
        v_lshlrev_b32 v{pWT}, 6, v{pWT}
        v_lshl_add_u32 v{pWT}, v{pT0}, 3, v{pWT}
        v_add_u32 v{pWT}, {L_WOST}, v{pWT}""")
    def wo_loads(self):
        self.a(f"""s_mov_b32 m0, {L_WOST}
        s_movk_i32 s70, {16*896-1024}
        buffer_load_dwordx4 v{pWO}, {RC}, 0 offen lds
        buffer_load_dwordx4 v{pWO}, {RC}, s70 offen offset:1024 lds""")

    XR, XH, ACC1 = 16, 48, 112
    def p1_setup(self):
        a = self.a
        a(f"""s_lshr_b32 s77, s{sI}, 2
        s_and_b32 s81, s77, 7
        s_lshl_b32 s77, s77, 2
        s_add_u32 s77, s77, s{sW}
        s_mul_i32 s77, s77, {8*896}
        v_lshlrev_b32 v13, 4, v1
        v_mov_b32 v2, {OOB}
        v_cmp_gt_u32 vcc, 56, v1
        v_add_u32 v{pXV}, s77, v13
        s_movk_i32 s72, 3584
        v_cndmask_b32 v{pXV}, v2, v{pXV}, vcc""")
    def p1_setup2(self):
        a = self.a
        a(f"""s_and_b32 s76, s{sI}, 3
        s_lshl_b32 s76, s76, 2
        s_add_u32 s76, s76, s{sW}
        s_cmp_eq_u32 s76, 15
        s_cselect_b32 s{R_B}, s{S_WV}, s{S_WK}
        s_cselect_b32 s{R_B+1}, s{S_WV+1}, s{S_WK+1}
        s_lshl_b32 s78, s76, 6
        s_cmp_lt_u32 s76, 14
        s_cselect_b32 s{R_B}, s{S_WQ}, s{R_B}
        s_cselect_b32 s{R_B+1}, s{S_WQ+1}, s{R_B+1}
        s_mov_b32 s70, 401408
        s_cselect_b32 s{R_B+2}, s70, 25088
        s_mov_b32 s{R_B+3}, 0x20000
        s_cselect_b32 s78, s78, 0
        s_cselect_b32 s70, 896, 56
        s_lshl_b32 s80, s70, 4
        s_mul_i32 s81, s81, {0 if 'norot' in self.x else 7}
        s_lshr_b32 s81, s81, 1
        s_mul_i32 s79, s81, s80
        s_add_u32 s79, s79, s78
        s_mul_i32 s77, s80, 28
        s_add_u32 s77, s77, s78
        v_lshrrev_b32 v{pWV}, 2, v1
        v_and_b32 v{pT0}, 3, v1
        v_mul_u32_u24 v{pWV}, s70, v{pWV}
        v_lshl_add_u32 v{pWV}, v{pT0}, 4, v{pWV}
        s_mul_i32 s70, s{sW}, 28672
        s_mov_b32 m0, s70""")
    def p1_setup3(self):
        a = self.a
        self.tr_lane(pTR, 64, 8, 32, pT0)
        a(f"""s_mul_i32 s70, s{sW}, 28672
        v_add_u32 v{pTR}, s70, v{pTR}
        s_lshl_b32 s70, s81, 1
        v_subrev_u32 v{pHW}, s70, v1
        v_add_u32 v{pT0}, 56, v{pHW}
        v_min_u32 v{pHW}, v{pHW}, v{pT0}
        s_mul_i32 s71, s{sW}, {8*912}
        s_add_u32 s71, s71, {L_HT}
        v_lshl_add_u32 v{pHW}, v{pHW}, 4, s71
        v_and_b32 v{pT0}, 31, v1
        v_lshrrev_b32 v{pT1}, 5, v1
        v_mul_u32_u24 v{pHR}, 912, v{pT0}
        v_mul_u32_u24 v{pQS}, 896, v{pT0}
        v_lshl_add_u32 v{pHR}, v{pT1}, 4, v{pHR}
        v_lshl_add_u32 v{pQS}, v{pT1}, 4, v{pQS}
        v_add_u32 v{pHR}, {L_HT}, v{pHR}
        s_lshl_b32 s70, s{sXC}, 7
        s_add_u32 s70, s70, {W_XID}
        v_lshl_add_u32 v{pXI}, v{pT0}, 2, s70
        v_lshlrev_b32 v{pML}, 5, v1
        v_add_u32 v{pML}, {L_MODL}, v{pML}
        v_min_u32 v{pGA}, 223, v0
        v_lshrrev_b32 v{pD1}, 2, v{pGA}
        v_and_b32 v{pT0}, 3, v{pGA}
        v_lshlrev_b32 v{pD1}, 9, v{pD1}
        v_lshl_add_u32 v{pD1}, v{pT0}, 4, v{pD1}
        v_cmp_le_u32 vcc, 112, v{pGA}
        v_add_u32 v{pD1}, {W_MODC}, v{pD1}
        v_lshlrev_b32 v{pGW}, 4, v{pGA}
        v_add_u32 v{pGW}, {L_MODL}, v{pGW}
        v_cndmask_b32 v{pGA}, 0, 1.0, vcc""")

    def x_loads(self):
        a = self.a
        for t in range(8):
            a(f"buffer_load_dwordx4 {vr(self.XR+4*t,4)}, v{pXV}, {RX}, {0 if t<4 else 's72'} offen offset:{(t&3)*896}{'' if 'xdef' in self.x else ' nt'}")

    def w_dma(self):
        a = self.a
        p = len(self.wids)
        if p == self.nw1 and not self.d1_issued:
            self.d1_issued = True
            self.stamp('d1poll')
            self.d1_loads(); return
        if p >= 28: return
        self.wids.append(a(f"buffer_load_dwordx4 v{pWV}, {RB}, s79 offen lds"))
        if p < 27: a(f"s_add_u32 m0, m0, 1024\ns_add_u32 s79, s79, s80\ns_cmp_eq_u32 s79, s77\ns_cselect_b32 s79, s78, s79")

    def reduce8(self, r):
        a = self.a
        for k in range(0, 8, 2): a(f"v_permlane32_swap_b32 v{r+k}, v{r+k+1}")
        for k in range(0, 8, 2): a(f"v_add_f32 v{r+k}, v{r+k}, v{r+k+1}")
        for k in (0, 4): a(f"v_permlane16_swap_b32 v{r+k}, v{r+k+2}")
        for k in (0, 4): a(f"v_add_f32 v{r+k}, v{r+k}, v{r+k+2}")
        for sh in (8, 4, 2, 1):
            for k in (0, 4): a(f"v_add_f32_dpp v{r+k}, v{r+k}, v{r+k} row_ror:{sh} row_mask:0xf bank_mask:0xf")
    def bcast8(self, r, s):
        a = self.a
        for k, base in ((0, 0), (4, 4)):
            for row, t in enumerate((0, 2, 1, 3)):
                a(f"v_readlane_b32 s{s+base+t}, v{r+k}, {16*row}")
    def spair(self, s):
        return sr(s & ~1, 2), s & 1

    def ln1_stats(self):
        a = self.a
        a.section = 'ln1'
        XR, XH = self.XR, self.XH
        T = 112
        SS = 68
        for t in range(8):
            for j in range(4):
                a(f"v_lshlrev_b32 v{XH+8*t+2*j}, 16, v{XR+4*t+j}\nv_and_b32 v{XH+8*t+2*j+1}, s{sMASK}, v{XR+4*t+j}")
            x = XH + 8 * t
            a(f"""v_pk_add_f32 v[120:121], {vr(x,2)}, {vr(x+2,2)}
            v_pk_add_f32 v[122:123], {vr(x+4,2)}, {vr(x+6,2)}
            v_pk_add_f32 v[120:121], v[120:121], v[122:123]
            v_add_f32 v{T+t}, v120, v121""")
            self.w_dma()
        self.reduce8(T)
        self.w_dma()
        a(f"v_mul_f32 v{T}, {f32(-1/448):#x}, v{T}\nv_mul_f32 v{T+4}, {f32(-1/448):#x}, v{T+4}")
        self.bcast8(T, SS)
        a("s_mov_b32 exec_hi, 0xffffff")
        for t in range(8):
            p, o = self.spair(SS + t)
            for j in range(4):
                x = XH + 8 * t + 2 * j
                a(f"v_pk_add_f32 {vr(x,2)}, {vr(x,2)}, {p} op_sel:[0,{o}] op_sel_hi:[1,{o}]")
        a("s_mov_b32 exec_hi, -1")
        for t in range(8):
            x = XH + 8 * t
            self.w_dma()
            a(f"""v_pk_mul_f32 v[120:121], {vr(x,2)}, {vr(x,2)}
            v_pk_fma_f32 v[120:121], {vr(x+2,2)}, {vr(x+2,2)}, v[120:121]
            v_pk_fma_f32 v[120:121], {vr(x+4,2)}, {vr(x+4,2)}, v[120:121]
            v_pk_fma_f32 v[120:121], {vr(x+6,2)}, {vr(x+6,2)}, v[120:121]
            v_add_f32 v{T+t}, v120, v121""")
        self.w_dma()
        self.reduce8(T)
        self.w_dma()
        a(f"""v_mov_b32 v120, {f32(1e-5):#x}
        v_fmac_f32 v120, {f32(1/448):#x}, v{T}
        v_mov_b32 v121, {f32(1e-5):#x}
        v_fmac_f32 v121, {f32(1/448):#x}, v{T+4}
        v_rsq_f32 v{T}, v120
        v_rsq_f32 v{T+4}, v121""")
        self.bcast8(T, SS)
        for t in range(8):
            p, o = self.spair(SS + t)
            for j in range(4):
                x = XH + 8 * t + 2 * j
                a(f"v_pk_mul_f32 {vr(x,2)}, {vr(x,2)}, {p} op_sel:[0,{o}] op_sel_hi:[1,{o}]")
            self.w_dma()
        while len(self.wids) < 28 or not self.d1_issued: self.w_dma()

    def tr_lane(self, dst, rowpitch, halfrows, g1, tmp):
        a = self.a
        a(f"""v_lshrrev_b32 v{dst}, 5, v1
        v_mul_u32_u24 v{dst}, {halfrows}, v{dst}
        v_bfe_u32 v{tmp}, v1, 2, 2
        v_add_u32 v{dst}, v{dst}, v{tmp}
        v_mul_u32_u24 v{dst}, {rowpitch}, v{dst}
        v_bfe_u32 v{tmp}, v1, 4, 1
        v_mul_u32_u24 v{tmp}, {g1}, v{tmp}
        v_add_u32 v{dst}, v{dst}, v{tmp}
        v_and_b32 v{tmp}, 1, v1
        v_lshl_add_u32 v{dst}, v{tmp}, 4, v{dst}
        v_bfe_u32 v{tmp}, v1, 1, 1
        v_lshl_add_u32 v{dst}, v{tmp}, 3, v{dst}""")

    def wread(self, n):
        return [f"ds_read_b64_tr_b16 {ar(4*n+2*u,2)}, v{pTR} offset:{1024*n+256*u}" for u in range(2)]

    def gran_check(self, regs, tmp):
        a = self.a
        for k, r in enumerate(regs): a(f"v_xor_b32 v{r}, s{sT0+(k&3)}, v{r}")
        a(f"v_or_b32 v{tmp}, v{regs[0]}, v{regs[1]}")
        for k in range(2, len(regs), 2): a(f"v_or3_b32 v{tmp}, v{tmp}, v{regs[k]}, v{regs[k+1]}")
        a(f"v_and_b32 v{tmp}, 0xff, v{tmp}\nv_cmp_ne_u32 vcc, 0, v{tmp}")

    def gran_reduce(self, g, addc, addr):
        a = self.a
        a(f"""v_pk_add_f32 {vr(g,2)}, {vr(g,2)}, {vr(g+4,2)}
        v_pk_add_f32 {vr(g+2,2)}, {vr(g+2,2)}, {vr(g+6,2)}
        v_pk_add_f32 {vr(g+8,2)}, {vr(g+8,2)}, {vr(g+12,2)}
        v_pk_add_f32 {vr(g+10,2)}, {vr(g+10,2)}, {vr(g+14,2)}
        v_pk_add_f32 {vr(g,2)}, {vr(g,2)}, {vr(g+8,2)}
        v_pk_add_f32 {vr(g+2,2)}, {vr(g+2,2)}, {vr(g+10,2)}
        v_cvt_pk_bf16_f32 v{g+4}, v{g}, v{g+1}
        v_cvt_pk_bf16_f32 v{g+5}, v{g+2}, v{g+3}
        v_lshlrev_b32 v{g}, 16, v{g+4}
        v_and_b32 v{g+1}, s{sMASK}, v{g+4}
        v_lshlrev_b32 v{g+2}, 16, v{g+5}
        v_and_b32 v{g+3}, s{sMASK}, v{g+5}
        v_add_f32 v{g}, v{g}, v{addc}
        v_add_f32 v{g+1}, v{g+1}, v{addc}
        v_add_f32 v{g+2}, v{g+2}, v{addc}
        v_add_f32 v{g+3}, v{g+3}, v{addc}
        v_cvt_pk_bf16_f32 v{g+4}, v{g}, v{g+1}
        v_cvt_pk_bf16_f32 v{g+5}, v{g+2}, v{g+3}
        v_lshlrev_b32 v{g}, 16, v{g+4}
        v_and_b32 v{g+1}, s{sMASK}, v{g+4}
        v_lshlrev_b32 v{g+2}, 16, v{g+5}
        v_and_b32 v{g+3}, s{sMASK}, v{g+5}
        ds_write_b128 v{addr}, {vr(g,4)}""")

    def poll(self, name, loads, check, first_issued=False, between=None):
        a = self.a
        L = a.label(name)
        a(f"s_mov_b32 s{sCNT}, {POLL_LIMIT}")
        if not first_issued: loads()
        st = None
        if between:
            a.wait_vm()
            between()
            check()
            a(f"s_cbranch_vccz {L}_ok")
            st = a.state()
            loads()
        a(f"{L}:")
        a.wait_vm()
        check()
        a(f"""s_cbranch_vccz {L}_ok
        s_sub_u32 s{sCNT}, s{sCNT}, 1
        s_cbranch_scc1 {L}_ok""")
        if st is None: st = a.state()
        loads()
        a(f"s_branch {L}\n{L}_ok:")
        a.set_state(st)

    def st(self, lines):
        a = self.a
        L = a.label('st')
        for ln in lines:
            i = Ins(ln); a.need(i.rd + i.wr)
        a(f"s_cmp_eq_u32 s{sLOC}, 0\ns_cbranch_scc1 {L}_g")
        for ln in lines: oid = a(ln)
        a(f"{L}_j:")
        def far():
            a.set_state(([], []))
            a(f"{L}_g:\ns_nop 4")
            for ln in lines: a(ln + " sc1")
            a(f"s_branch {L}_j")
        self.ool.append(far)
        return oid

    G1 = 128
    def d1_loads(self):
        a = self.a
        for rg in range(4): a(f"buffer_load_dwordx4 {vr(self.G1+4*rg,4)}, v{pD1}, {WS}, 0 offen offset:{128*rg} sc1")
        self.d1_id = a(f"buffer_load_dword v144, v{pXI}, {WS}, 0 offen sc1")
    def d1(self):
        a = self.a
        a.section = 'd1'
        G = self.G1
        def check():
            a(f"v_xor_b32 v144, s{sT}, v144\nv_cmp_lt_u32 s[70:71], 15, v144")
            self.gran_check(list(range(G, G + 16)), 145)
            a("s_or_b64 vcc, vcc, s[70:71]")
        self.nc_silu()
        for n in range(self.nw1):
            if n % 4 == 0: a.wait_vm(self.wids[min(n + 3, self.nw1 - 1)])
            for ln in self.wread(n): a(ln)
        self.stamp('wread')
        a.wait_vm(self.d1_id)
        check()
        a("s_cbranch_vccnz L_d1_w\nL_d1_ok:")
        def far():
            a.set_state(([], []))
            a("L_d1_w:")
            self.poll('d1', self.d1_loads, check)
            a("s_branch L_d1_ok")
        self.ool.append(far)
        self.gran_reduce(G, pGA, pGW)
        a(f"""s_getreg_b32 s70, hwreg(HW_REG_XCC_ID, 0, 4)
        v_cmp_ne_u32 vcc, s70, v144""")
        self.nc_loads()
        a(f"""s_cmp_eq_u64 vcc, 0
        s_cselect_b32 s{sLOC}, {0 if 'global' in self.x else 1}, 0
        s_cmp_eq_u32 s67, 2""")
        with a.guard('wo', 's_cbranch_scc0'): self.wo_loads()
        self.barrier()
        self.stamp('d1done')

    def p1_main(self):
        a = self.a
        a.section = 'p1'
        XH = self.XH
        SH, SC = 24, 32
        a(f"""ds_read_b128 {vr(SC,4)}, v{pML} offset:1792
        ds_read_b128 {vr(SH,4)}, v{pML}
        ds_read_b128 {vr(SC+4,4)}, v{pML} offset:1808
        ds_read_b128 {vr(SH+4,4)}, v{pML} offset:16
        s_mov_b32 exec_hi, 0xffffff""")
        for t in range(8):
            x = XH + 8 * t
            for j in range(4): a(f"v_pk_fma_f32 {vr(x+2*j,2)}, {vr(x+2*j,2)}, {vr(SC+2*j,2)}, {vr(SH+2*j,2)}")
            for j in range(4): a(f"v_cvt_pk_bf16_f32 v{x+j}, v{x+2*j}, v{x+2*j+1}")
            a(f"ds_write_b128 v{pHW}, {vr(x,4)} offset:{912*t}")
        a("s_mov_b32 exec_hi, -1")
        fill = f"""s_lshr_b32 s72, s{sI}, 2
        s_mul_i32 s70, s72, {32*896}
        s_lshl_b32 s73, s76, 6
        s_add_u32 s70, s70, s73
        s_add_u32 s70, s70, {W_Q}
        s_lshl_b32 s71, s72, 12
        s_and_b32 s73, s76, 1
        s_lshl_b32 s73, s73, 11
        s_add_u32 s71, s71, s73
        s_add_u32 s74, s71, {W_KVL}
        s_add_u32 s71, s71, {W_KV}
        s_lshl_b32 s75, s72, 7
        s_lshl_b32 s73, s76, 2
        s_add_u32 s75, s75, s73
        s_add_u32 s75, s75, {W_FQ}""".split('\n')
        import k2
        fill += k2.att_srd(self) + k2.att_late(self)
        self.barrier()
        self.stamp('hbar')
        HF, NH, D = 128, 12, self.ACC1
        L = a.label('p1')
        def mm(swap):
            hf = lambda ks: vr(HF + 4 * (ks % NH), 4)
            for ks in range(8): a(f"ds_read_b128 {hf(ks)}, v{pHR} offset:{32*ks}")
            n = self.nw1
            for ks in range(28):
                A, B = ar(4 * ks, 4), hf(ks)
                if swap: A, B = B, A
                a(f"v_mfma_f32_32x32x16_bf16 {vr(D,16)}, {A}, {B}, {'0' if ks==0 else vr(D,16)}")
                if ks + 8 < 28: a(f"ds_read_b128 {hf(ks+8)}, v{pHR} offset:{32*(ks+8)}")
                while n < 28 and n <= ks + 8:
                    a.wait_vm(self.wids[n])
                    for ln in self.wread(n): a(ln)
                    n += 1
                for ln in fill[len(fill)*ks//28:len(fill)*(ks+1)//28]: a(ln)
        def cvt():
            for j in range(8): a(f"v_cvt_pk_bf16_f32 v{24+j}, v{D+2*j}, v{D+2*j+1}")
        a(f"s_cmp_eq_u32 s76, 15\ns_cbranch_scc1 {L}_v")
        st = a.state()
        mm(False)
        a(f"s_cmp_eq_u32 s76, 14\ns_cbranch_scc1 {L}_k")
        st2 = a.state()
        cvt()
        last = self.st([f"buffer_store_dwordx4 v[24:27], v{pQS}, {WS}, s70 offen",
                        f"buffer_store_dwordx4 v[28:31], v{pQS}, {WS}, s70 offen offset:32"])
        a.wait_vm(last)
        a(f"s_branch {L}_j")
        a(f"{L}_k:"); a.set_state(st2)
        a(f"s_mov_b32 s72, {f32(28**-0.5*math.log2(math.e)):#x}\ns_nop 7\ns_nop 1")
        for j in range(8): a(f"v_pk_mul_f32 {vr(D+2*j,2)}, {vr(D+2*j,2)}, s[72:73] op_sel_hi:[1,0]")
        cvt()
        a(f"""s_mov_b32 exec_lo, 0
        v_mov_b32 v30, 0x3f803f80
        v_mov_b32 v31, 0x3f80
        s_mov_b32 exec_lo, -1
        s_branch {L}_kv
        {L}_v:""")
        a.set_state(st)
        a(f"""v_and_b32 v10, 31, v1
        v_cmp_eq_u32 vcc, 28, v10
        v_mov_b32 v11, 0x3f803f80
        s_nop 0
        v_cndmask_b32 v11, 0, v11, vcc""")
        mm(True)
        cvt()
        a("s_mov_b32 exec_lo, 0xf0000000\ns_mov_b32 exec_hi, 0xf0000000")
        for j in range(8): a(f"v_mov_b32 v{24+j}, v11")
        a(f"""s_mov_b64 exec, -1
        {L}_kv:""")
        last = self.st([f"buffer_store_dwordx4 v[24:27], v13, {WS}, s74 offen",
                        f"buffer_store_dwordx4 v[28:31], v13, {WS}, s74 offen offset:1024"])
        a.opt = 'kvg'
        a(f"""buffer_store_dwordx4 v[24:27], v13, {WS}, s71 offen sc1
        buffer_store_dwordx4 v[28:31], v13, {WS}, s71 offen offset:1024 sc1""")
        a.wait_vm(last)
        a.opt = None
        a(f"{L}_j:")
        self.stamp('p1st')
        self.st([f"buffer_store_dword v{vT}, v{vF}, {WS}, s75 offen"])
        self.stamp('f2')

    def flag(self, soff, wave=0):
        a = self.a
        def body():
            a(f"""v_mov_b32 v9, s{sT}
            s_mov_b64 exec, 1
            buffer_store_dword v9, off, s[{R_WS}:{R_WS+3}], {soff} sc1
            s_mov_b64 exec, -1""")
        if wave is None: body(); return
        a(f"s_cmp_eq_u32 s{sW}, {wave}")
        with a.guard(a.label('flag'), 's_cbranch_scc0'): body()

    def start_phase(self):
        a = self.a
        import k2
        self.ool = []
        self.wids = []
        self.nw1 = self.par('nw1', 20); self.d1_issued = False
        self.prologue()
        self.p0_setup()
        self.p1_setup()
        a.need(['s30'])
        self.stamp('karg')
        self.srd(R_A, S_WM, 448 * 5376)
        a("s_cmp_eq_u32 s67, 1")
        with a.guard('p0c', 's_cbranch_scc0'): lc = self.p0_loads()
        a(f"s_load_dword s{sE}, s[{S_WS}:{S_WS+1}], {W_EPOCH}")
        if 'nowpf' not in self.x:
            a(f"s_cmp_eq_u32 s{sW}, 1")
            with a.guard('wpf', 's_cbranch_scc0'): self.w_prefetch()
        self.srd(R_X, S_X, 2048 * 896)
        a("s_barrier")
        self.stamp('bar0')
        self.x_loads()
        self.srd(R_WS, S_WS, W_SIZE)
        self.p1_setup2()
        self.nc_setup()
        for p in range(self.par('nw0', 2)): self.w_dma()
        self.p1_setup3()
        self.wo_setup()
        self.tagcalc()
        a(f"""s_and_b32 s{sT0}, s{sT}, 0xff
        s_bfe_u32 s{sT0+1}, s{sT}, 0x80008
        s_bfe_u32 s{sT0+2}, s{sT}, 0x80010
        s_lshr_b32 s{sT0+3}, s{sT}, 24
        v_and_b32 v{pNT}, 3, v1
        v_lshlrev_b32 v{pNT}, 3, v{pNT}
        v_lshrrev_b32 v{pNT}, v{pNT}, s{sT}
        v_and_b32 v{pNT}, 0xff, v{pNT}
        s_cmp_eq_u32 s{sW}, 2""")
        with a.guard('xid', 's_cbranch_scc0'):
            a(f"""s_getreg_b32 s70, hwreg(HW_REG_XCC_ID, 0, 4)
            s_xor_b32 s70, s{sT}, s70
            s_lshl_b32 s71, s{sI}, 2
            s_add_u32 s71, s71, {W_XID}
            v_mov_b32 v9, s70
            s_mov_b64 exec, 1
            buffer_store_dword v9, off, {WS}, s71 sc1
            s_mov_b64 exec, -1""")
            self.pretouch()
        self.stamp('set1')
        a("s_cmp_eq_u32 s67, 1")
        a.section = 'p0c'
        with a.guard('p0c', 's_cbranch_scc0'): self.p0_compute(lc)
        self.stamp('p0')
        for ln in k2.att_early(self): a(ln)
        self.stamp('set2')
        for p in range(self.par('nw0b', 2)): self.w_dma()
        self.ln1_stats()
        self.stamp('ln1')
        self.d1()
        self.p1_main()

    def pretouch(self):
        a = self.a
        if 'nopre' in self.x: return
        a(f"""v_lshrrev_b32 v{pT0}, 3, v1
        v_and_b32 v{pT1}, 7, v1
        v_min_u32 v{pT0}, 2, v{pT0}
        v_lshlrev_b32 v{pT0}, 13, v{pT0}
        v_lshl_add_u32 v{pT0}, v{pT1}, 7, v{pT0}
        s_lshl_b32 s70, s{sXC}, 10
        s_add_u32 s70, s70, {W_FQ}
        buffer_load_dword v{pJ1}, v{pT0}, {WS}, s70 offen sc1""")

    def epoch_update(self):
        a = self.a
        a(f"s_cmp_eq_u32 s{sI}, 255\ns_cbranch_scc0 L_fin\ns_cmp_eq_u32 s{sW}, 0\ns_cbranch_scc0 L_fin")
        a(f"s_mov_b32 s70, {W_EPOCH}")
        self.flag('s70', None)
        a("L_fin:")

    def finish(self):
        a = self.a
        if self.probe:
            self.stamp('end')
            j = self.stamp_names.index(self.probe)
            a.force_wait("s_waitcnt lgkmcnt(0)")
            a(f"""s_cmp_eq_u32 s{sI}, 100
            s_cbranch_scc0 L_end
            s_add_u32 s70, s{S_STAMP+2*j}, 6000
            L_probe:
            s_memrealtime s[72:73]
            s_waitcnt lgkmcnt(0)
            s_sub_u32 s71, s72, s70
            s_cmp_lt_i32 s71, 0
            s_cbranch_scc1 L_probe""")
        elif self.stamps:
            self.stamp('end')
            a.force_wait("s_waitcnt lgkmcnt(0)")
            for k in range(self.nstamp): a(f"v_writelane_b32 v2, s{S_STAMP+2*k}, {k}")
            a(f"""s_lshl_b32 s70, s{sI}, 2
            s_add_u32 s70, s70, s{sW}
            s_lshl_b32 s70, s70, 6
            s_add_u32 s70, s70, {W_STAMP}
            v_lshlrev_b32 v3, 2, v1
            s_mov_b64 exec, 0xffff
            buffer_store_dword v2, v3, s[{R_WS}:{R_WS+3}], s70 offen
            s_mov_b64 exec, -1""")
        a("L_end:\ns_endpgm")
        for f in getattr(self, 'ool', []): f()

    def build(self):
        import k2
        self.start_phase()
        if self.stop != 'p1':
            k2.rest(self)
        self.epoch_update()
        self.finish()
        return self.module()

    def module(self):
        hdr = open(f"cdna_kernels/{NAME}.s.ref").read().split("; @launch")[0]
        kn = NAME + "_kernel"
        return hdr + f"""; @launch grid=(256,1,1) block=(256,1,1) lds={LDS_SIZE}
.amdgcn_target "amdgcn-amd-amdhsa--gfx950"
.text
.globl {kn}
.p2align 8
.type {kn},@function
{kn}:
{self.a.text()}.section .rodata,"a"
.p2align 6
.amdhsa_kernel {kn}
  .amdhsa_next_free_vgpr 512
  .amdhsa_next_free_sgpr 102
  .amdhsa_accum_offset 256
  .amdhsa_group_segment_fixed_size 0
  .amdhsa_kernarg_size 112
  .amdhsa_user_sgpr_count 2
  .amdhsa_user_sgpr_kernarg_segment_ptr 1
  .amdhsa_system_sgpr_workgroup_id_x 1
.end_amdhsa_kernel
"""

if __name__ == "__main__":
    import argparse
    ap = argparse.ArgumentParser()
    ap.add_argument("-o", default="out.s")
    ap.add_argument("--stamps", default=None)
    ap.add_argument("--stop", default=None)
    ap.add_argument("-x", default="")
    ap.add_argument("--probe", default=None)
    ap.add_argument("--nops", action="store_true")
    g = ap.parse_args()
    if g.probe: g.stamps = g.probe
    k = K(stamps=(['start', 'end'] + g.stamps.split(',')) if g.stamps else None, stop=g.stop, x=g.x.split(','), probe=g.probe)
    txt = k.build()
    if g.stamps: txt += "; STAMPS " + " ".join(k.stamp_names) + "\n"
    open(g.o, "w").write(txt)
    if g.nops:
        for n in k.a.nops: print(n)
    print(getattr(k, 'info', ''))
    print("instructions:", sum(1 for i in k.a.out if i.op), "nop states:", sum(n[1] for n in k.a.nops))
```

```python
import re
from k import *


def isize(i):
    if not i.op: return 0
    lit = 0
    for o in i.ops:
        if re.fullmatch(r'-?(0x[0-9a-fA-F]+|\d+)', o):
            v = int(o, 0)
            if not (-16 <= v <= 64): lit = 4
    if i.kind in ('mfma', 'vmem', 'ds', 'smem'): return 8
    if i.kind in ('nop', 'wait', 'ctl'): return 4
    if i.kind == 'salu': return 4 + lit
    if i.op.endswith('_e64') or i.op.startswith(('v_cvt_pk_', 'v_pk_', 'v_fma_', 'v_max3', 'v_or3', 'v_lshl_add', 'v_bfe', 'v_and_or', 'v_readlane', 'v_writelane', 'v_accvgpr')) or i.dpp or i.sdwa: return 8
    return 4 + lit

class Slots:
    def __init__(self, n):
        self.n = n; self.s = [[] for _ in range(n)]
    def put(self, pos, item, cap=1):
        while pos < self.n and len(self.s[pos]) >= cap: pos += 1
        assert pos < self.n, "out of slots"
        self.s[pos].append(item); return pos
    def seq(self, pos, items, step=1, cap=1):
        for it in items:
            pos = self.put(pos, it, cap) + step
        return pos
    def spread(self, p0, p1, items):
        free = [p for p in range(p0, p1) if not self.s[p]]
        assert len(free) >= len(items), (len(free), len(items))
        pos = p0
        for n, it in enumerate(items):
            pos = free[n * len(free) // len(items)]
            self.s[pos].append(it)
        return pos + 1
    def run(self, a, pos):
        for it in self.s[pos]:
            if callable(it): it()
            else: a(it)

SB, PB, QB, OB = 16, 48, 64, 144
NRING = 8
KVS = list(range(4, 12)) + [14, 15, 22, 23, 24, 25, 28, 29]
def kreg(j, part): return ar(16 * (j % NRING) + 4 * part, 4)
def wo_reg(jj, ks):
    n = jj * 7 + ks
    if n < 32: return ar(128 + 4 * n, 4)
    if n < 37: return vr(208 + 4 * (n - 32), 4)
    return vr(96 + 4 * (n - 37), 4)
(vWS, vD2, vFK, vWOF, vQ, vNC2, vNC2T, vOW, vOR, _, _, vXS, vX, _t, vOTW, vOTR, vOWNW, vXR, vOWNR, vMOD, vH2, vSTW, vSTR, vFF) = range(228, 252)
assert _t == vT
vWD, vPF, vMN = 3, 7, 12
sQ, sFKS, sFWO, sFNC, sC14, sOWN, sWD, sPFW, sPFD, sPFO, sXB, sMN, sNA = 44, 12, 13, 30, 31, 64, 66, 68, 69, 77, 78, 79, 80
XRAW = (228, 252)
sXO = 3
WOS = list(range(70, 77))

def att_srd(k):
    return f"""s_mov_b32 s{R_C}, s{S_WD}
    s_mov_b32 s{R_C+1}, s{S_WD+1}
    s_mov_b32 s{R_C+2}, {1792*896}
    s_bitcmp1_b32 s{sW}, 0
    s_cselect_b32 s{R_A}, s{S_WU}, s{S_WG}
    s_cselect_b32 s{R_A+1}, s{S_WU+1}, s{S_WG+1}
    s_mov_b32 s{R_A+2}, {448*3584}""".split('\n')

def att_early(k):
    t0 = f"""v_mov_b32 v{vT}, s{sT}
    v_mov_b32 v14, {OOB}
    v_mov_b32 v{vFF}, 0xff
    v_mov_b32 v{vF}, v14
    v_writelane_b32 v{vF}, 0, 0
    v_cmp_gt_u32 vcc, 28, v1
    v_lshlrev_b32 v10, 7, v1
    v_and_b32 v252, 7, v1
    v_cndmask_b32 v{vPF}, v14, v10, vcc
    v_lshrrev_b32 v253, 3, v1
    v_and_b32 v254, 15, v1
    v_lshrrev_b32 v255, 4, v1
    s_lshr_b32 s70, s{sI}, 2
    s_and_b32 s71, s{sI}, 1
    s_lshl_b32 s72, s70, 7
    s_mul_i32 s73, s71, 28
    s_add_u32 s72, s72, s73
    s_add_u32 s72, s72, {W_FQ}
    v_min_u32 v10, 6, v252
    v_lshl_add_u32 v{vD2}, v10, 2, s72
    s_lshl_b32 s72, s{sXC}, 3
    s_add_u32 s72, s72, s{sW}
    s_lshl_b32 s73, s72, 12
    s_add_u32 s{KVS[0]}, s73, {W_KVL}
    s_add_u32 s{KVS[1]}, s73, {W_KVL+0x4000}
    s_lshl_b32 s72, s72, 7
    s_add_u32 s72, s72, {W_FQ+56}
    v_and_b32 v10, 1, v1
    v_lshl_add_u32 v10, v10, 2, s72
    v_bfe_u32 v11, v1, 1, 1
    v_cmp_eq_u32 vcc, 1, v255
    v_lshl_add_u32 v10, v11, 9, v10
    s_xor_b32 s72, s{sI}, 1
    s_mul_i32 s72, s72, {BLK}
    v_cndmask_b32 v{vD2}, v{vD2}, v10, vcc
    s_add_u32 s72, s72, {W_B}
    v_and_b32 v10, 1, v255
    v_mul_u32_u24 v10, 896, v10
    v_lshrrev_b32 v11, 5, v1
    v_cmp_gt_u32 vcc, 32, v1
    v_lshl_add_u32 v10, v11, 8, v10
    v_lshl_add_u32 v10, v254, 3, v10
    v_add_u32 v{vQ}, s72, v10
    v_cndmask_b32 v15, v14, v{vQ}, vcc""".split('\n')
    t = f"""s_lshr_b32 s70, s{sI}, 2
    s_and_b32 s71, s{sI}, 1
    v_add_u32 v2, 4096, v13
    ; key tile order: two tiles of the own group, then the others starting at a workgroup-dependent one
    v_add_u32 v10, s{sR}, v254
    v_mul_u32_u24 v11, 4682, v10
    v_lshrrev_b32 v11, 16, v11
    v_mul_u32_u24 v11, 14, v11
    v_sub_u32 v10, v10, v11
    s_lshl_b32 s72, s{sXC}, 1
    s_add_u32 s72, s72, 2
    v_add_u32 v10, s72, v10
    v_and_b32 v10, 15, v10
    s_lshl_b32 s73, s{sW}, 12
    s_add_u32 s73, s73, {W_KV}
    v_lshl_add_u32 v10, v10, 14, s73
    s_lshl_b32 s72, s{sW}, 8""".split('\n')
    t += [f"v_readlane_b32 s{KVS[j]}, v10, {j-2}" for j in range(2, 16)]
    t += f"""s_add_u32 s72, s72, {W_FK}
    v_bfe_u32 v10, v1, 1, 4
    v_lshl_add_u32 v10, v10, 10, s72
    v_and_b32 v11, 1, v1
    v_lshl_add_u32 v{vFK}, v11, 7, v10
    v_min_u32 v10, {48*16}, v13
    v_add_u32 v{vWOF}, {W_FWO}, v10
    v_and_b32 v10, 1, v255
    v_mul_u32_u24 v10, 56, v10
    v_lshrrev_b32 v11, 5, v1
    v_lshl_add_u32 v10, v11, 4, v10
    s_mul_i32 s72, s{sW}, 112
    s_add_u32 s72, s72, {L_OT}
    v_mul_u32_u24 v11, 480, v254
    v_add3_u32 v{vOTW}, v10, v11, s72
    v_lshl_add_u32 v11, v255, 4, v11
    v_add_u32 v{vOTR}, {L_OT}, v11
    s_lshr_b32 s72, s{sI}, 3
    s_mul_i32 s72, s72, 1792
    s_and_b32 s73, s{sI}, 7
    s_lshl_b32 s73, s73, 5
    s_add_u32 s72, s72, s73
    s_add_u32 s72, s72, {W_NCP}
    v_lshl_add_u32 v10, v253, 8, s72
    v_lshl_add_u32 v10, v252, 2, v10
    v_and_b32 v11, 3, v1
    v_lshlrev_b32 v11, 3, v11
    v_lshrrev_b32 v11, v11, s{sT}
    v_cmp_gt_u32 vcc, 56, v1
    v_and_b32 v11, 0xff, v11
    s_mul_i32 s72, s{sI}, {8*896}
    s_mul_i32 s73, s{sW}, 224
    v_cndmask_b32 v{vNC2}, v14, v10, vcc
    v_cndmask_b32 v{vNC2T}, 0, v11, vcc
    s_add_u32 s72, s72, s73
    v_mul_u32_u24 v10, 896, v252
    v_lshl_add_u32 v10, v253, 5, v10
    v_add_u32 v10, s72, v10
    v_cndmask_b32 v{vX}, v14, v10, vcc
    s_lshl_b32 s73, s73, 1
    s_add_u32 s73, s73, {L_MODN}
    v_lshl_add_u32 v{vMOD}, v253, 6, s73
    s_lshl_b32 s74, s{sW}, 13
    s_add_u32 s74, s74, {L_ST+4096}
    v_lshlrev_b32 v10, 4, v252
    v_lshl_add_u32 v11, v253, 8, v10
    v_cndmask_b32 v{vH2}, v14, v11, vcc
    v_lshl_add_u32 v11, v253, 9, v10
    v_cndmask_b32 v{vXR}, v14, v11, vcc
    v_add_u32 v{vOWNR}, s74, v11
    v_and_b32 v11, 1, v253
    v_cmp_eq_u32 vcc, s71, v11
    v_lshl_add_u32 v11, v255, 7, v10
    v_add_u32 v{vOWNW}, s74, v11
    v_cndmask_b32 v{vXS}, v11, v14, vcc
    v_lshlrev_b32 v10, 5, v252
    v_add_u32 v{vSTR}, {L_MISC+64}, v10
    s_lshl_b32 s72, s{sW}, 3
    v_add_u32 v{vSTW}, s72, v{vSTR}
    s_mul_i32 s72, s{sW}, 12288
    s_add_u32 s72, s72, {L_OS}
    v_add_u32 v{vOW}, s72, v13""".split('\n')
    for s in range(3):
        t += f"""s_add_u32 s72, s{sW}, {3-s}
        s_and_b32 s72, s72, 3
        s_mul_i32 s72, s72, 12288
        s_add_u32 s72, s72, {L_OS+4096*s}
        v_add_u32 v{vOR+s}, s72, v13""".split('\n')
    t += f"""s_and_b32 s72, s{sW}, 1
    s_lshl_b32 s72, s72, 2
    v_and_b32 v10, 2, v253
    v_xor_b32 v10, v10, v252
    v_xor_b32 v10, s72, v10
    v_mul_u32_u24 v11, 3584, v253
    v_lshl_add_u32 v{vWD}, v10, 4, v11
    v_add_u32 v{vWD+1}, {16*3584-1024}, v{vWD}
    v_add_u32 v{vWD+2}, {2*(16*3584-1024)}, v{vWD}
    v_add_u32 v{vWD+3}, {3*(16*3584-1024)}, v{vWD}
    v_cmp_gt_u32 vcc, 8, v1
    s_lshl_b32 s72, s{sI}, 5
    s_add_u32 s72, s72, {W_MODN}
    v_lshl_add_u32 v10, v1, 2, s72
    v_cndmask_b32 v{vMN}, v14, v10, vcc""".split('\n')
    return t0, t

def att_late(k):
    t = []
    for s in range(4):
        t += [f"s_add_u32 s81, s{sW}, {1+s}", "s_and_b32 s81, s81, 3", f"s_mul_i32 s{sQ+s}, s81, 1792"]
    t += f"""s_lshr_b32 s81, s{sI}, 2
    s_lshl_b32 s81, s81, 1
    s_add_u32 s81, s81, s{sW}
    s_lshl_b32 s81, s81, 7
    s_add_u32 s{sFKS}, s81, {W_FK-2*128}
    s_and_b32 s81, s{sI}, 3
    s_lshl_b32 s81, s81, 2
    s_add_u32 s81, s81, s{sW}
    s_cmp_ge_u32 s81, 14
    s_cselect_b32 s{sFKS}, s{sFKS}, {OOB}
    s_lshl_b32 s81, s{sI}, 2
    s_add_u32 s{sFWO}, s81, {W_FWO}
    s_add_u32 s{sFNC}, s81, {W_FNC}
    s_cmp_eq_u32 s67, 2
    s_cselect_b32 s{sFWO}, s{sFWO}, {OOB}
    s_cmp_eq_u32 s{sW}, 3
    s_cselect_b32 s{sFNC}, s{sFNC}, {OOB}
    s_add_u32 s81, s81, s{sW}
    s_xor_b32 s{sXB}, s81, 4
    s_mul_i32 s{sXB}, s{sXB}, 3584
    s_add_u32 s{sXB}, s{sXB}, {W_B}
    s_mul_i32 s{sXO}, s81, 3584
    s_add_u32 s{sXO}, s{sXO}, {W_B}
    s_lshr_b32 s{sPFW}, s81, 1
    s_mul_i32 s{sPFW}, s{sPFW}, 3584
    s_bitcmp1_b32 s{sW}, 0
    s_cselect_b32 s{sPFD}, {OOB}, s{sPFW}
    s_and_b32 s81, s81, 127
    s_mul_i32 s{sPFO}, s81, 3584
    s_add_u32 s{sPFO}, s{sPFO}, {W_WO}
    s_movk_i32 s{sC14}, 14336
    s_mov_b32 s{sOWN}, 0x00ff00ff
    s_bitcmp1_b32 s{sI}, 0
    s_cselect_b32 s{sOWN}, 0xff00ff00, s{sOWN}
    s_mov_b32 s{sOWN+1}, s{sOWN}
    s_lshr_b32 s81, s{sW}, 1
    s_mul_i32 s81, s81, {8*3584}
    s_lshl_b32 s{sWD}, s{sR}, 7
    s_add_u32 s{sWD}, s{sWD}, s81
    s_cmp_lt_u32 s{sR}, 28
    s_cselect_b32 s{sWD}, s{sWD}, {OOB}
    s_cselect_b32 s{sPFO}, s{sPFO}, {OOB}
    s_mul_i32 s{sMN}, s{sW}, 1792
    s_sub_u32 s81, s{sI}, 112
    s_cmp_lt_u32 s81, 56
    s_cselect_b32 s{sNA}, 1.0, 0""".split('\n')
    return t

def main_setup(k):
    a = k.a
    a(f"""s_mul_i32 s{WOS[0]}, s{sW}, {7*14336}
    s_and_b32 s81, s{sI}, 1
    s_mul_i32 s81, s81, 7168
    s_add_u32 s{WOS[0]}, s{WOS[0]}, s81
    s_add_u32 s{WOS[0]}, s{WOS[0]}, {W_WO}""")
    for jj in range(1, 7): a(f"s_add_u32 s{WOS[jj]}, s{WOS[jj-1]}, s{sC14}")
    a(f"s_lshl_b32 m0, s{sW}, 12")

def chk4(a, r):
    a(f"""v_xor_b32 v{r}, s{sT}, v{r}
    v_xor_b32 v{r+1}, s{sT}, v{r+1}
    v_xor_b32 v{r+2}, s{sT}, v{r+2}
    v_or3_b32 v{r}, v{r}, v{r+1}, v{r+2}
    v_xor_b32 v{r+3}, s{sT}, v{r+3}
    v_or_b32 v{r}, v{r}, v{r+3}
    v_cmp_ne_u32 vcc, 0, v{r}""")

def late_check(k, name, load, check):
    a = k.a
    def item():
        check()
        a(f"s_cbranch_vccnz L_{name}_w\nL_{name}_ok:")
    def far():
        a.set_state(([], []))
        a(f"L_{name}_w:")
        k.poll(name, load if callable(load) else (lambda: a(load)), check)
        a(f"s_branch L_{name}_ok")
    k.ool.append(far)
    return item

def wdma(q): return f"buffer_load_dwordx4 v{vWD+q}, {RA}, s{sWD} offen offset:{1024*q} lds"
WSTEP = f"s_add_u32 m0, m0, 16384\ns_add_u32 s{sWD}, s{sWD}, {64*3584}"

def attention(k):
    a = k.a
    a.section = 'att_pre'
    chk1 = lambda: a(f"v_cmp_ne_u32 vcc, s{sT}, v9")
    d2l = f"buffer_load_dword v9, v{vD2}, {WS}, 0 offen sc1"
    k.nc_compute()
    k.stamp('d2poll')
    a(d2l)
    for ln in k.e1: a(ln)
    main_setup(k)
    k.nc_finish()
    k.poll('d2a', lambda: a(d2l), chk1, first_issued=True)
    k.stamp('d2done')
    def kvload(j, part, sreg=None, sc=' sc1'):
        return f"buffer_load_dwordx4 {kreg(j,part)}, v13, {WS}, s{KVS[j] if sreg is None else sreg} offen offset:{1024*part}{sc}"
    def qload(s): return [f"buffer_load_dwordx2 {vr(QB+8*s+2*e,2)}, v{vQ if e < 3 else 15}, {WS}, s{sQ+s} offen offset:{(0,128,512,640)[e]}" for e in range(4)]
    k0 = [kvload(0, p, sc='') for p in range(4)]
    k.st(qload(0)[:2] + k0[:1] + qload(0)[2:] + k0[1:2] + qload(1) + qload(2) + k0[2:] + qload(3))
    a(f"buffer_store_dword v{vT}, v{vF}, {WS}, s{sFKS} offen sc1")
    ids = {}
    NT = k.par('nt', 6)
    U = [(j, s) for j in range(16 - NT) for s in range(4)] + [(j, s) for s in range(4) for j in range(16 - NT, 16)]
    def QK(u, h):
        j, s = U[u]; d = vr(SB + 16 * (u & 1), 16)
        a(f"v_mfma_f32_32x32x16_bf16 {d}, {kreg(j,h)}, {vr(QB+8*s+4*h,4)}, {d if h else '0'}")
    def PV(u, h):
        j, s = U[u]; d = vr(OB + 16 * s, 16)
        a(f"v_mfma_f32_32x32x16_bf16 {d}, {kreg(j,2+h)}, {vr(PB+8*(u&1)+4*h,4)}, {'0' if (j == 0 and h == 0) else d}")
    QK(0, 0); QK(0, 1)
    a.need([f"v{r}" for r in range(QB + 8, QB + 16)])
    a("s_nop 10\n.p2align 3\nL_att_main:")
    sl = Slots(256)
    P = lambda u, g: 4 * u + g
    FKP, FKC = k.par('fkp', 1), k.par('fkc', 3)
    first = {}
    for u, (j, s) in enumerate(U): first.setdefault(j, u)
    lastu = {j: u for u, (j, s) in enumerate(U)}
    lasts = {s: u for u, (j, s) in enumerate(U)}
    fkl = f"buffer_load_dword v9, v{vFK}, {WS}, 0 offen sc1"
    sl.seq(P(0, 0), [kvload(1, p) for p in range(4)])
    for s in (2, 3): sl.put(P(s - 2, 3), lambda s=s: a.need([f"v{r}" for r in range(QB + 8 * s, QB + 8 * s + 8)]), cap=2)
    def wost():
        a("s_cmp_eq_u32 s67, 2")
        with a.guard('wo', 's_cbranch_scc0'):
            a(f"buffer_store_dwordx4 v[96:99], v{vWS}, {WS}, 0 offen sc1")
            a(f"buffer_store_dwordx4 v[100:103], v{vWS}, {WS}, s{sC14} offen sc1")
    sl.seq(P(1, 0), [f"buffer_store_dword v{pNO}, v{pNS}, {WS}, 0 offen sc1", wost])
    sl.put(P(FKP, 2), fkl)
    pos = sl.put(P(FKC, 0), late_check(k, 'fk', fkl, chk1))
    sl.put(pos + 1, f"buffer_store_dword v{vT}, v{vF}, {WS}, s{sFWO} offen sc1", cap=2)
    for j in range(1, 16):
        sl.put(P(first[j] - 2, 3), lambda j=j: a.need([f"a{x}" for x in range(16*(j%NRING), 16*(j%NRING) + (8 if j < 4 else 16))]), cap=2)
    for j in range(0, 4):
        sl.put(P(first[j] + 1, 1), lambda j=j: a.need([f"a{x}" for x in range(16*(j%NRING) + 8, 16*(j%NRING) + 16)]), cap=2)
    def owr(s, q): return f"ds_write_b128 v{vOW}, {vr(OB+16*s+4*q,4)} offset:{4096*s+1024*q}"
    for s in range(3): pe = sl.seq(P(lasts[s] + 2, 1), [owr(s, q) for q in range(4)])
    def obar():
        a.wait_vm(ids['mn']); k.barrier()
    pe = sl.put(pe + 2, obar) + 1
    pe = sl.seq(pe, [f"ds_read_b128 {vr(OB+16*s+4*q,4)}, v{vOR+s} offset:{1024*q}" for s in range(3) for q in range(4)])
    pos = sl.seq(pos, [kvload(2, 0) + "\n" + kvload(2, 1)], cap=2)
    kv = [kvload(2, 2), kvload(2, 3)] + [kvload(j, p) for j in range(3, NRING) for p in range(4)]
    pkv = sl.spread(pos, pos + len(kv) * 3 // 2, kv)
    for j in range(NRING, 16):
        pkv = sl.seq(max(pkv, P(lastu[j - NRING] + 2, 0)), [kvload(j, p) for p in range(4)], step=2)
    ncl = f"buffer_load_dword v10, v{vNC2}, {WS}, 0 offen sc1"
    def ncchk(): a(f"v_xor_b32 v10, v10, v{vNC2T}\nv_and_b32 v11, 0xff, v10\nv_cmp_ne_u32 vcc, 0, v11")
    nclc = late_check(k, 'nc2', ncl, ncchk)
    def nc2():
        a.need(['v10'])
        a("s_cmp_eq_u32 s67, 3")
        with a.guard('nc2', 's_cbranch_scc0'):
            n0 = len(a.out)
            nclc()
            a(f"""v_add_f32_dpp v10, v10, v10 row_ror:8 row_mask:0xf bank_mask:0xf
            v_mov_b32 v11, v10
            v_permlane16_swap_b32 v10, v11
            v_add_f32 v10, v10, v11
            v_mov_b32 v11, v10
            v_permlane32_swap_b32 v10, v11
            v_add_f32 v10, v10, v11
            v_cvt_pk_bf16_f32 v10, 0, v10
            v_add_f32 v10, s{sNA}, v10
            v_cvt_pk_bf16_f32 v10, 0, v10""")
            ids['nc'] = a(f"buffer_store_dword v10, v{vMN}, {WS}, 0 offen sc1")
    N1, N2, N3, N4, N5 = (k.par(n, d) for n, d in (('n1', 16), ('n2', 22), ('n3', 30), ('n4', 42), ('n5', 47)))
    sl.put(P(N1, 0), ncl)
    sl.put(P(N2, 0), nc2)
    def fnc():
        a.wait_vm(ids['nc'])
        a(f"buffer_store_dword v{vT}, v{vF}, {WS}, s{sFNC} offen sc1")
    sl.put(P(N3, 0), fnc)
    fncl = f"buffer_load_dwordx4 v[252:255], v2, {WS}, 0 offen offset:{W_FNC-4096} sc1"
    sl.put(P(N4, 0), fncl)
    pnc = sl.put(P(N5, 0), late_check(k, 'fnc', fncl, lambda: chk4(a, 252)))
    W1, W2, W3 = (k.par(n, d) for n, d in (('w1', 14), ('w2', 19), ('w3', 24)))
    wofl = f"buffer_load_dwordx4 v[252:255], v{vWOF}, {WS}, 0 offen sc1"
    sl.put(P(W1, 0), wofl)
    pwo = sl.put(P(W2, 0), late_check(k, 'wofl', wofl, lambda: chk4(a, 252)))
    sl.put(pwo + 1, f"buffer_load_dword v{vD2}, v{vPF}, {WS}, s{sPFO} offen sc1")
    F1, F2, F3, F4 = (k.par(n, d) for n, d in (('f1', 9), ('f2', 20), ('f3', 46), ('f4', 34)))
    if 'nopf' not in k.x:
        sl.put(P(F1, 0), f"buffer_load_dword v14, v{vPF}, {RA}, s{sPFW} offen")
        sl.put(P(F4, 0), f"buffer_load_dword v14, v{vPF}, {RC}, s{sPFD} offen")
    pos = sl.put(P(F2, 0), "s_barrier")
    def junk(h): ids['junk'] = k.st([f"buffer_store_dwordx4 v[252:255], v{vXR}, {WS}, s{sXB} offen offset:{128*q}" for q in (2 * h, 2 * h + 1)])
    pj = sl.seq(max(pos, pwo) + 1, [f"v_not_b32 v252, s{sT}", lambda: junk(0), lambda: junk(1)], step=2)
    def jbar(): a.wait_vm(ids['junk']); a("s_barrier")
    pj = sl.put(max(pj, P(N3 - 2, 0)), jbar)
    assert pj < P(N3, 0)
    if 'not2' not in k.x: sl.put(P(k.par('t2', 40), 0), f"buffer_load_dword v{vQ}, v{vPF}, {WS}, s{sXO} offen sc1")
    dma = []
    for g in range(6): dma += [wdma(q) for q in range(4)] + [WSTEP]
    if 'nodma' in k.x: dma = [WSTEP] * 6
    pos = sl.spread(pos + 1, P(F3, 0), dma)
    def mn2(): ids['mn'] = a(f"buffer_load_dwordx4 v13, {WS}, s{sMN} offen offset:1024 sc1 lds")
    sl.seq(max(pos, pnc + 1), [f"s_add_u32 m0, s{sMN}, {L_MODN}\ns_add_u32 s{sMN}, s{sMN}, {W_MODN}", f"buffer_load_dwordx4 v13, {WS}, s{sMN} offen sc1 lds", mn2])
    sl.seq(pnc + 12, [f"buffer_load_dwordx4 {vr(XRAW[q],4)}, v{vX}, {RX}, 0 offen offset:{16*q}" for q in range(2)], step=2)
    def wol(jj, ks): return f"buffer_load_dwordx4 {wo_reg(jj,ks)}, v{(13,2)[ks//4]}, {WS}, s{WOS[jj]} offen offset:{(ks%4)*1024} sc1"
    if 'nowo' not in k.x: sl.spread(P(W3, 0), P(k.par('w4', 59), 0), [wol(jj, ks) for jj in range(7) for ks in range(7)])
    a.section = 'att'
    k.stamp('att')
    for u in range(64):
        S, Pc = SB + 16 * (u & 1), PB + 8 * (u & 1)
        if u % 16 == 0 and u: k.stamp(f'u{u}')
        if u == 8: k.stamp('u8')
        for g in range(4):
            n0 = len(a.out)
            if g < 2 and u < 63: QK(u + 1, g)
            if g >= 2 and u > 0: PV(u - 1, g - 2)
            sl.run(a, P(u, g))
            odd = sum(isize(i) for i in a.out[n0:]) % 8
            for e in range(4):
                r = S + 4 * g + e
                a(f"v_exp_f32{'_e64' if (odd and e == 1) else ''} v{r}, v{r}")
            a(f"v_cvt_pk_bf16_f32 v{Pc+2*g}, v{S+4*g}, v{S+4*g+1}\nv_cvt_pk_bf16_f32 v{Pc+2*g+1}, v{S+4*g+2}, v{S+4*g+3}")
    a.section = 'att_post'
    PV(63, 0)
    for q in range(8): a(f"v_add_f32 v{OB+q}, v{OB+q}, v{OB+16+q}")
    PV(63, 1)
    for q in range(8, 16): a(f"v_add_f32 v{OB+q}, v{OB+q}, v{OB+16+q}")
    for q in range(8): a(f"v_pk_add_f32 {vr(OB+2*q,2)}, {vr(OB+2*q,2)}, {vr(OB+32+2*q,2)}")
    k.stamp('attend')
    k.ool.append(lambda: truemax(k, kvload, qload, QK))

def truemax(k, kvload, qload, QK):
    a = k.a
    a.set_state(([], []))
    a.section = 'truemax'
    M = PB
    a(f"L_truemax:\ns_mov_b32 s{sFB}, 1\ns_waitcnt vmcnt(0) lgkmcnt(0)\ns_nop 7")
    for ln in sum(att_early(k), []) + att_late(k): a(ln)
    for s in range(4): a(f"v_mov_b32 v{M+s}, 0xff800000")
    a(f"s_lshl_b32 s70, s{sW}, 12\ns_add_u32 s70, s70, {W_KV}\nL_tm_loop:")
    a(kvload(0, 0, 70)); a(kvload(0, 1, 70))
    for s in range(4):
        d = OB + 16 * s
        a(f"""v_mfma_f32_32x32x16_bf16 {vr(d,16)}, {kreg(0,0)}, {vr(QB+8*s,4)}, 0
        v_mfma_f32_32x32x16_bf16 {vr(d,16)}, {kreg(0,1)}, {vr(QB+8*s+4,4)}, {vr(d,16)}""")
    for s in range(4):
        d = OB + 16 * s
        for r in range(0, 16, 2): a(f"v_max3_f32 v{M+s}, v{M+s}, v{d+r}, v{d+r+1}")
    a(f"s_add_u32 s70, s70, 0x4000\ns_cmp_lt_u32 s70, {W_KV+0x40000}\ns_cbranch_scc1 L_tm_loop")
    a(f"""v_and_b32 v10, 31, v1
    v_lshlrev_b32 v10, 4, v10
    s_lshl_b32 s71, s{sW}, 2
    s_barrier""")
    for s in range(4):
        a(f"""v_mov_b32 v{M+4}, v{M+s}
        v_permlane32_swap_b32 v{M+4}, v{M+s}
        v_max_f32 v{M+s}, v{M+s}, v{M+4}
        s_add_u32 s70, s{sW}, {1+s}
        s_and_b32 s70, s70, 3
        s_lshl_b32 s70, s70, 9
        s_add_u32 s70, s70, {L_OT}
        v_add_u32 v{M+8+s}, s70, v10
        v_add_u32 v11, s71, v{M+8+s}
        ds_write_b32 v11, v{M+s}""")
    k.barrier()
    for s in range(4): a(f"ds_read_b128 {vr(OB+4*s,4)}, v{M+8+s}")
    a("s_mov_b32 exec_lo, 0")
    for s in range(4):
        d = OB + 4 * s
        a(f"""v_max3_f32 v{d}, v{d}, v{d+1}, v{d+2}
        v_max_f32 v{d}, v{d}, v{d+3}
        v_and_b32 v{d+1}, s{sMASK}, v{d}
        v_sub_f32 v{d}, v{d}, v{d+1}
        v_and_b32 v{d+2}, s{sMASK}, v{d}
        v_sub_f32 v{d}, v{d}, v{d+2}
        v_cvt_pk_bf16_f32 v{QB+8*s+6}, -v{d+1}, -v{d+2}
        v_cvt_pk_bf16_f32 v{QB+8*s+7}, -v{d}, 0""")
    a("s_mov_b32 exec_lo, -1")
    for part in range(4): a(kvload(0, part))
    a(f"v_mov_b32 v{pNS}, {OOB}\nv_mov_b32 v{vWS}, {OOB}")
    main_setup(k)
    a.wait_all()
    QK(0, 0); QK(0, 1)
    a("s_nop 15\ns_branch L_att_main")

def outproj(k):
    import k3
    a = k.a
    a.section = 'ored'
    O = OB
    for q in (6, 0, 1, 2, 3, 4, 5): a(f"v_pk_add_f32 {vr(O+2*q,2)}, {vr(O+2*q,2)}, {vr(OB+48+2*q,2)}")
    a(f"""v_mov_b32 v16, v{O+12}
    v_mov_b32 v17, v{O+12}
    v_pk_add_f32 {vr(O+14,2)}, {vr(O+14,2)}, {vr(OB+62,2)}
    v_mov_b32 v18, 0
    v_permlane32_swap_b32 v16, v17
    s_mov_b32 s68, {f32(2.0**-90):#x}
    s_mov_b32 s69, {f32(2.0**110):#x}
    v_rcp_f32 v16, v17
    v_cmp_nle_f32 s[80:81], s68, v17
    v_cmp_nge_f32 vcc, s69, v17
    v_mov_b32 v19, 0""")
    for q in range(8): a(f"v_pk_mul_f32 {vr(O+2*q,2)}, {vr(O+2*q,2)}, v[16:17] op_sel_hi:[1,0]")
    a("s_or_b64 s[80:81], s[80:81], vcc")
    for q in range(8):
        a(f"v_cvt_pk_bf16_f32 v{20+q}, v{O+2*q}, v{O+2*q+1}")
        if q in (1, 3, 5): a(f"ds_write_b64 v{vOTW}, {vr(19+q,2)} offset:{(0,0,0,8,0,32)[q]}")
    a(f"""s_mov_b32 exec_hi, 0
    ds_write_b64 v{vOTW}, v[26:27] offset:40
    s_mov_b32 exec_hi, -1""")
    for q in range(8): a(f"v_pk_fma_f32 v[18:19], {vr(O+2*q,2)}, 0, v[18:19] op_sel_hi:[1,0,1]")
    a(f"""v_cmp_u_f32 vcc, v18, v19
    s_lshl_b32 s68, s{sW}, 2
    s_add_u32 s68, s68, {L_MISC}
    v_mov_b32 v18, s68
    s_or_b64 s[80:81], s[80:81], vcc
    s_cselect_b32 s69, 1, 0
    v_mov_b32 v19, s69
    ds_write_b32 v18, v19
    v_mov_b32 v18, {L_MISC}
    s_lshl_b32 s68, s{sW}, 12
    s_add_u32 m0, s68, {6*16384}""")
    k.barrier()
    a.section = 'oproj'
    k.stamp('otile')
    BF, ACC, TG = OB, 16, 172
    a("ds_read_b128 v[44:47], v18")
    for ks in range(7): a(f"ds_read_b128 {vr(BF+4*ks,4)}, v{vOTR} offset:{64*ks}")
    for q in range(4): a(wdma(q))
    a(f"""v_or3_b32 v44, v44, v45, v46
    v_or_b32 v44, v44, v47
    s_nop 0
    v_readfirstlane_b32 s68, v44
    s_andn2_b32 s68, s68, s{sFB}
    s_cbranch_scc1 L_truemax""")
    def send(jjs):
        it = []
        for jj in jjs:
            it += [f"v_bfi_b32 v{TG+4*jj+e}, v{vFF}, s{sT0+e}, v{ACC+4*jj+e}" for e in range(4)]
        it.append(lambda: k.st([f"buffer_store_dwordx4 {vr(TG+4*jj,4)}, v{vXS}, {WS}, s{sXB} offen offset:{512*jj}" for jj in jjs]))
        it.append(f"s_mov_b64 exec, s[{sOWN}:{sOWN+1}]\n" + "\n".join(f"ds_write_b128 v{vOWNW}, {vr(ACC+4*jj,4)} offset:{512*jj}" for jj in jjs) + "\ns_mov_b64 exec, -1")
        return it
    pend = []
    for grp in ((0, 1, 2), (3, 4), (5, 6)):
        n = 0
        for ks in range(7):
            for jj in grp:
                d = vr(ACC + 4 * jj, 4)
                a(f"v_mfma_f32_16x16x32_bf16 {d}, {wo_reg(jj,ks)}, {vr(BF+4*ks,4)}, {'0' if ks == 0 else d}")
                n += 1
                for _ in range(2):
                    if n > 5 and pend:
                        it = pend.pop(0)
                        it() if callable(it) else a(it)
        for it in pend: it() if callable(it) else a(it)
        pend = send(grp)
    XF, GA, CB, SBv, OWN, RC_ = 72, 96, 112, 128, 48, 208
    for q in range(4): a(f"v_lshlrev_b32 v{XF+2*q}, 16, v{XRAW[0]+q}\nv_and_b32 v{XF+2*q+1}, s{sMASK}, v{XRAW[0]+q}")
    for it in pend: it() if callable(it) else a(it)
    k.stamp('oproj')
    a.section = 'ln2'
    a("s_mov_b32 exec_hi, 0xffffff")
    def xl():
        for q in range(4): a(f"buffer_load_dwordx4 {vr(RC_+4*q,4)}, v{vXR}, {WS}, s{sXO} offen offset:{128*q} sc1")
    xl()
    for q in range(4): a(f"ds_read_b128 {vr(OWN+4*q,4)}, v{vOWNR} offset:{128*q}\nds_read_b128 {vr(GA+4*q,4)}, v{vMOD} offset:{16*q}")
    for q in range(4, 8): a(f"v_lshlrev_b32 v{XF+2*q}, 16, v{XRAW[1]+q-4}\nv_and_b32 v{XF+2*q+1}, s{sMASK}, v{XRAW[1]+q-4}")
    for q in range(8): a(f"v_pk_fma_f32 {vr(XF+2*q,2)}, {vr(OWN+2*q,2)}, {vr(GA+2*q,2)}, {vr(XF+2*q,2)}")
    for q in range(4): a(f"ds_read_b128 {vr(CB+4*q,4)}, v{vMOD} offset:{3584+16*q}\nds_read_b128 {vr(SBv+4*q,4)}, v{vMOD} offset:{1792+16*q}")
    a(f"s_mov_b32 exec_hi, -1\nv_mov_b32 v44, 0\nv_mov_b32 v49, 0")
    k3.setup(k)
    a("s_mov_b32 exec_hi, 0xffffff")
    k.stamp('xpoll')
    k.poll('xc', xl, lambda: k.gran_check(list(range(RC_, RC_ + 16)), 9), first_issued=True)
    k.stamp('xdone')
    pre = k3.pre_items(k)
    def pp(n=1):
        for _ in range(n):
            if pre: pre.pop(0)()
    a("s_mov_b32 exec_hi, -1")
    pp(2)
    a("s_mov_b32 exec_hi, 0xffffff")
    for q in range(8): a(f"v_pk_fma_f32 {vr(XF+2*q,2)}, {vr(RC_+2*q,2)}, {vr(GA+2*q,2)}, {vr(XF+2*q,2)}")
    a(f"v_pk_add_f32 v[50:51], {vr(XF,2)}, {vr(XF+2,2)}\nv_pk_add_f32 v[46:47], {vr(XF+4,2)}, {vr(XF+6,2)}")
    for q in range(4, 8): a(f"v_pk_add_f32 {vr((50,46)[q&1],2)}, {vr((50,46)[q&1],2)}, {vr(XF+2*q,2)}")
    a("v_pk_add_f32 v[50:51], v[50:51], v[46:47]\nv_add_f32 v44, v50, v51\ns_mov_b32 exec_hi, -1")
    X1 = 16
    cv = [f"v_cvt_pk_bf16_f32 v{X1+q}, v{XF+2*q}, v{XF+2*q+1}" for q in range(8)]
    def xg(r, f):
        f = list(f) + [''] * 8
        a(f"""{f[0]}
        {f[1]}
        v_add_f32_dpp v{r}, v{r}, v{r} row_ror:8 row_mask:0xf bank_mask:0xf
        v_mov_b32 v{r+1}, v{r}
        {f[2]}
        {f[3]}
        v_permlane16_swap_b32 v{r}, v{r+1}
        v_add_f32 v{r}, v{r}, v{r+1}
        v_mov_b32 v{r+1}, v{r}
        {f[4]}
        {f[5]}
        v_permlane32_swap_b32 v{r}, v{r+1}
        v_add_f32 v{r}, v{r}, v{r+1}
        {f[6]}
        {f[7]}""")
    pp(); xg(44, cv); pp()
    a(f"v_mul_f32 v48, {f32(1/112):#x}, v44\ns_mov_b32 exec_hi, 0xffffff")
    k.st([f"buffer_store_dwordx4 {vr(X1+4*q,4)}, v{vH2}, {WS}, s{sXO} offen offset:{1792+128*q}" for q in range(2)])
    for q in range(8): a(f"v_pk_add_f32 {vr(XF+2*q,2)}, {vr(XF+2*q,2)}, v[48:49] op_sel_hi:[1,0] neg_lo:[0,1] neg_hi:[0,1]")
    a(f"v_pk_mul_f32 v[44:45], {vr(XF,2)}, {vr(XF,2)}\nv_pk_mul_f32 v[46:47], {vr(XF+2,2)}, {vr(XF+2,2)}")
    for q in range(2, 8): a(f"v_pk_fma_f32 {vr(44+2*(q&1),2)}, {vr(XF+2*q,2)}, {vr(XF+2*q,2)}, {vr(44+2*(q&1),2)}")
    a("v_pk_add_f32 v[44:45], v[44:45], v[46:47]\nv_add_f32 v49, v44, v45\ns_mov_b32 exec_hi, -1")
    pp()
    xg(49, [f"v_pk_mul_f32 {vr(XF+2*q,2)}, {vr(XF+2*q,2)}, {vr(CB+2*q,2)}" for q in range(6)])
    a(f"ds_write_b64 v{vSTW}, v[48:49]")
    for q in range(6, 8): a(f"v_pk_mul_f32 {vr(XF+2*q,2)}, {vr(XF+2*q,2)}, {vr(CB+2*q,2)}")
    pp(3)
    k.barrier()
    k.stamp('lnbar')
    a(f"""ds_read_b128 v[52:55], v{vSTR}
    ds_read_b128 v[56:59], v{vSTR} offset:16
    v_mov_b32 v60, {f32(1e-5):#x}
    v_pk_add_f32 v[44:45], v[52:53], v[54:55]
    v_pk_add_f32 v[46:47], v[56:57], v[58:59]
    v_pk_add_f32 v[44:45], v[44:45], v[46:47]
    v_fma_f32 v52, v44, -0.25, v52
    v_fma_f32 v54, v44, -0.25, v54
    v_fma_f32 v56, v44, -0.25, v56
    v_fma_f32 v58, v44, -0.25, v58
    v_fmac_f32 v60, {f32(1/448):#x}, v45
    v_mul_f32 v46, v52, v52
    v_fmac_f32 v46, v54, v54
    v_fmac_f32 v46, v56, v56
    v_fmac_f32 v46, v58, v58
    v_fmac_f32 v60, 0.25, v46
    v_rsq_f32 v46, v60
    v_fma_f32 v48, v44, -0.25, v48""".replace("-0.25", "s69").replace("v_mov_b32 v60", f"s_mov_b32 s69, {f32(-0.25):#x}\nv_mov_b32 v60").replace("0.25", f"{f32(0.25):#x}"))
    H2 = 24
    for h in range(2):
        for q in range(4 * h, 4 * h + 4): a(f"v_pk_fma_f32 {vr(XF+2*q,2)}, {vr(CB+2*q,2)}, v[48:49], {vr(XF+2*q,2)} op_sel_hi:[1,0,1]")
        for q in range(4 * h, 4 * h + 4): a(f"v_pk_fma_f32 {vr(XF+2*q,2)}, {vr(XF+2*q,2)}, v[46:47], {vr(SBv+2*q,2)} op_sel_hi:[1,0,1]")
        for q in range(4 * h, 4 * h + 4): a(f"v_cvt_pk_bf16_f32 v{H2+q}, v{XF+2*q}, v{XF+2*q+1}")
    last = k.st([f"buffer_store_dwordx4 {vr(H2+4*h,4)}, v{vH2}, {WS}, s{sXO} offen offset:{128*h}" for h in range(2)])
    k.stamp('h2st')
    return last

def rest(k):
    import k3
    attention(k)
    last = outproj(k)
    if k.stop == 'att':
        k.a.wait_all()
    else:
        k3.ffn(k, last)
```

```python
from k import *
from k2 import Slots, isize, late_check, vX, vH2

ACA, ACB = 16, 80
AR, NAR = 144, 6
def h2reg(ks):
    if ks < 18: return vr(168 + 4 * ks, 4)
    if ks < 26: return ar(224 + 4 * (ks - 18), 4)
    return vr(244 + 4 * (ks - 26), 4)
vTR, vDV, vDT, vF3, vF4, vO, vGB, vRW, vH = 3, 10, 14, 7, 12, 240, 242, 243, 0
sG, sHG, sHS, sFL, sH2, sD, sST, sF3, sX1, sRR = 4, 8, 14, 22, 24, 28, 29, 25, 70, 72

def setup(k):
    a = k.a
    a(f"""s_mul_i32 s75, s{sR}, 9363
    s_lshr_b32 s75, s75, 16
    s_mul_i32 s76, s75, 7
    s_sub_u32 s76, s{sR}, s76
    s_lshl_b32 s77, s{sXC}, 2
    s_add_u32 s78, s77, s75
    s_add_u32 s77, s77, s{sW}
    s_lshl_b32 s77, s77, 1
    s_lshl_b32 s78, s78, 1
    v_lshrrev_b32 v228, 4, v1
    v_bfe_u32 v229, v1, 2, 2
    v_and_b32 v230, 1, v1
    v_bfe_u32 v231, v1, 1, 1
    v_lshlrev_b32 v230, 4, v230
    v_lshl_add_u32 v230, v231, 3, v230
    v_lshl_add_u32 v230, v229, 7, v230
    v_lshrrev_b32 v229, 1, v229
    v_and_b32 v231, 1, v228
    v_lshl_add_u32 v232, v231, 1, v229
    v_lshl_add_u32 v232, v232, 5, v230
    v_lshl_add_u32 v{vTR}, v228, 12, v232
    v_xor_b32 v{vTR+1}, 32, v{vTR}
    v_xor_b32 v{vTR+2}, 64, v{vTR}
    v_xor_b32 v{vTR+3}, 96, v{vTR}
    s_lshl_b32 s{sST}, s{sW}, 13
    s_add_u32 s{sST}, s{sST}, {L_ST}
    v_lshl_add_u32 v232, v229, 1, v231
    v_lshl_add_u32 v232, v232, 5, v230
    v_lshrrev_b32 v228, 5, v1
    v_lshl_add_u32 v232, v228, 10, v232
    v_add_u32 v{vDT}, s{sST}, v232
    v_xor_b32 v{vDT+1}, 64, v{vDT}
    v_add_u32 v{vRW}, s{sST}, v13
    v_lshrrev_b32 v229, 3, v1
    v_and_b32 v230, 7, v1
    v_and_b32 v231, 2, v229
    v_xor_b32 v231, s{sW}, v231
    v_lshlrev_b32 v231, 1, v231
    v_xor_b32 v231, v231, v230
    v_mul_u32_u24 v229, 896, v229
    v_lshl_add_u32 v{vDV}, v231, 4, v229
    v_add_u32 v{vDV+1}, {8*896-1024}, v{vDV}
    s_mul_i32 s79, s{sW}, {448*896}
    s_lshl_b32 s80, s76, 7
    s_add_u32 s79, s79, s80
    s_cmp_lt_u32 s{sR}, 28
    s_cselect_b32 s79, s79, {OOB}
    s_mul_i32 s81, s78, {112*1024}
    s_mul_i32 s{sD}, s{sW}, {28*1024}
    s_add_u32 s81, s81, s{sD}
    s_add_u32 s81, s81, {W_H}""")
    for g in range(4):
        a(f"""s_add_u32 s{sD}, s75, {g}
        s_and_b32 s{sD}, s{sD}, {3}
        s_mul_i32 s{sG+g}, s{sD}, {112*896}
        s_mul_i32 s{sHG+g}, s{sD}, 7168
        s_add_u32 s{sG+g}, s{sG+g}, s79
        s_add_u32 s{sHG+g}, s{sHG+g}, s81""")
    a(f"""s_mul_i32 s{sHS}, s77, {112*1024}
    s_lshl_b32 s79, s{sR}, 12
    s_add_u32 s{sHS}, s{sHS}, s79
    s_add_u32 s{sHS}, s{sHS}, {W_H}
    s_add_u32 s{sHS+1}, s{sHS}, {112*1024}
    s_lshl_b32 s79, s77, 7
    s_lshl_b32 s{sFL}, s{sR}, 2
    s_add_u32 s{sFL}, s{sFL}, s79
    s_add_u32 s{sFL}, s{sFL}, {W_F4}
    s_add_u32 s{sFL+1}, s{sFL}, 128
    s_mul_i32 s{sH2}, s77, {4*BLK}
    s_add_u32 s{sH2}, s{sH2}, {W_B}
    v_bfe_u32 v229, v1, 3, 2
    v_mul_u32_u24 v229, {BLK}, v229
    v_lshl_add_u32 v229, v228, 7, v229
    v_lshl_add_u32 v{vH}, v230, 4, v229
    s_add_u32 s79, s79, {W_F3}
    v_and_b32 v229, 15, v1
    v_lshl_add_u32 v229, v229, 2, s79
    v_bfe_u32 v231, v1, 4, 1
    v_lshl_add_u32 v{vF3}, v231, 7, v229
    s_lshl_b32 s79, s78, 7
    s_mul_i32 s81, s{sW}, 28
    s_add_u32 s79, s79, s81
    s_add_u32 s79, s79, {W_F4}
    v_min_u32 v230, 6, v230
    v_lshl_add_u32 v{vF4}, v230, 2, s79
    s_lshr_b32 s79, s{sI}, 2
    s_lshl_b32 s79, s79, 3
    s_and_b32 s81, s{sI}, 3
    s_add_u32 s79, s79, s81
    s_lshl_b32 s79, s79, 2
    s_add_u32 s79, s79, s{sW}
    s_lshl_b32 s79, s79, 2
    s_add_u32 s{sF3}, s79, {W_F3}
    s_lshl_b32 s81, s{sW}, 5
    s_add_u32 s80, s80, s81
    s_mul_i32 s79, s78, {32*896}
    s_add_u32 s79, s79, s80
    v_and_b32 v229, 31, v1
    v_mul_u32_u24 v229, 896, v229
    v_lshl_add_u32 v229, v228, 4, v229
    v_add_u32 v{vO}, s79, v229
    s_lshl_b32 s80, s80, 1
    s_add_u32 s80, s80, {L_MODN+5376}
    v_lshl_add_u32 v{vGB}, v228, 5, s80
    s_lshl_b32 s79, s76, 2
    s_add_u32 s79, s79, s{sW}
    s_mul_i32 s80, s79, 9363
    s_lshr_b32 s80, s80, 16
    s_mul_i32 s80, s80, 1792
    s_lshl_b32 s79, s79, 8
    s_add_u32 s79, s79, s80
    s_mul_i32 s80, s78, {4*BLK}
    s_add_u32 s79, s79, s80
    s_add_u32 s{sX1}, s79, {W_B+1792}
    s_add_u32 s{sX1+1}, s79, {W_B+1792+4*BLK}""")
    for q in range(1, 4):
        a(f"""s_xor_b32 s79, s{sW}, {q}
        s_lshl_b32 s79, s79, 13
        s_add_u32 s{sRR+q-1}, s79, {2048*(q-1)}""")
    k.srd(R_B, S_OUT, 2048 * 896)

class Wd:
    def __init__(self, k): self.a = k.a; self.ids = {}
    def wd_a(self, kk):
        def f():
            if kk >= 4: self.a.wait_lg(self.ids[('t', kk - 4)])
            self.a(f"s_add_u32 m0, s{sST}, {2048*(kk&3)}\ns_add_u32 s{sD}, s{sG+kk//7}, {(kk%7)*16*896}\nbuffer_load_dwordx4 v{vDV}, {RC}, s{sD} offen lds")
        return f
    def wd_b(self, kk):
        def f(): self.ids[('d', kk)] = self.a(f"buffer_load_dwordx4 v{vDV+1}, {RC}, s{sD} offen offset:1024 lds")
        return f
    def wd_t(self, kk, sub, u):
        def f():
            self.a.wait_vm(self.ids[('d', kk)])
            self.ids[('t', kk)] = self.a(f"ds_read_b64_tr_b16 {ar(8*kk+4*sub+2*u,2)}, v{vDT+sub} offset:{2048*(kk&3)+512*u}")
        return f

def pre_items(k):
    k.wd = Wd(k)
    return [f(kk) for kk in range(k.par('pre', 4)) for f in (k.wd.wd_a, k.wd.wd_b)]

def ffn(k, last):
    a = k.a
    wd_a, wd_b, wd_t, ids, PRE = k.wd.wd_a, k.wd.wd_b, k.wd.wd_t, k.wd.ids, k.par('pre', 4)
    a.section = 'd3'
    chk1 = lambda: a(f"v_cmp_ne_u32 vcc, s{sT}, v9")
    a.wait_vm(last)
    k.st([f"buffer_store_dword v{vT}, v{vF}, {WS}, s{sF3} offen"])
    k.stamp('f3')
    a(f"s_cmp_lt_u32 s{sR}, 28\ns_cbranch_scc0 L_idle")
    def idle():
        a.set_state(([], []))
        a(f"""L_idle:
        s_lshl_b32 s70, s{sXC}, 2
        s_add_u32 s70, s70, s{sR}
        s_sub_u32 s70, s70, 28
        s_mul_i32 s70, s70, {2*114688}
        s_mul_i32 s71, s{sW}, 28672
        s_add_u32 s70, s70, s71
        s_add_u32 s70, s70, {W_H}
        v_lshlrev_b32 v2, 7, v1
        s_mov_b32 exec_hi, 0xffffff""")
        if 'noth' not in k.x:
            for n in range(8): a(f"buffer_load_dword v{16+n}, v2, {WS}, s70 offen sc1\ns_add_u32 s70, s70, {7168 if n != 3 else 114688-3*7168}")
        a("s_mov_b32 exec_hi, -1")
        a.wait_all()
        a("s_branch L_g2_done")
    k.ool.append(idle)
    d3l = f"buffer_load_dword v9, v{vF3}, {WS}, 0 offen sc1"
    a(d3l)
    steps = [(p, ks, t) for p in range(2) for ks in range(28) for t in range(4)]
    N = len(steps)
    def aread(n):
        p, ks, t = steps[n]
        r = AR + 4 * (n % NAR)
        if ks == 16: a(f"v_add_u32 v{vTR+t}, 0x10000, v{vTR+t}")
        if ks == 0 and p == 1: a(f"v_subrev_u32 v{vTR+t}, 0x10000, v{vTR+t}")
        for u in range(2):
            a(f"ds_read_b64_tr_b16 {vr(r+2*u,2)}, v{vTR+t} offset:{((ks>>2)&3)*16384+(ks&3)*1024+512*u}")
    PF = 4
    for kk in range(PRE):
        for sub in range(2):
            for u in range(2): wd_t(kk, sub, u)()
    for n in range(PF): aread(n)
    k.poll('d3', lambda: a(d3l), chk1, first_issued=True)
    k.stamp('d3done')
    a.section = 'g1'
    def h2l(p, ks):
        t = f"buffer_load_dwordx4 {h2reg(ks)}, v{vH}, {WS}, s{sH2} offen offset:{256*(ks%7)} sc1"
        if ks % 7 == 6: t += f"\ns_add_u32 s{sH2}, s{sH2}, {3584 if ks < 27 else 4*BLK-3*3584}"
        return t
    def hreg(st, kk):
        if st == 0: return vr(ACA + 4 * kk, 4) if kk < 16 else h2reg(kk - 16)
        if kk < 10: return h2reg(18 + kk)
        if kk < 26: return vr(ACA + 4 * (kk - 10), 4)
        return h2reg(kk - 26)
    def hl(st, kk):
        c = kk % 7
        return f"buffer_load_dwordx4 {hreg(st,kk)}, v{(13,2)[c//4]}, {WS}, s{sHG+kk//7} offen offset:{1024*(c%4)} sc1"
    def epi(p, t):
        d = (ACA, ACB)[p] + 16 * t
        it = []
        for q in range(4):
            it += [f"v_max_f32 v{d+2*q}, 0, v{d+2*q}\nv_max_f32 v{d+2*q+1}, 0, v{d+2*q+1}",
                   f"v_mul_f32 v{d+2*q}, v{d+2*q}, v{d+8+2*q}\nv_mul_f32 v{d+2*q+1}, v{d+2*q+1}, v{d+9+2*q}\nv_cvt_pk_bf16_f32 v{d+q}, v{d+2*q}, v{d+2*q+1}"]
        def st(): ids[('h', p)] = k.st([f"buffer_store_dwordx4 {vr(d,4)}, v13, {WS}, s{sHS+p} offen offset:{1024*t}"])
        return it, st
    def hflag(p):
        def f():
            a.wait_vm(ids[('h', p)])
            k.st([f"buffer_store_dword v{vT}, v{vF}, {WS}, s{sFL+p} offen"])
        return f
    NG = N + 112
    va, vm, tr = Slots(NG), Slots(NG), Slots(NG)
    NPRE = k.par('npre', 6)
    for ks in range(NPRE): a(h2l(0, ks))
    EA, EB = 112 + 3, N + 2
    pos = EA
    for t in range(4):
        it, st = epi(0, t)
        pos = va.seq(pos, it); vm.put(pos, st)
    pea = pos
    pfa = vm.put(pos + k.par('fa', 22), hflag(0))
    f4a = f"buffer_load_dword v9, v{vF4}, {WS}, 0 offen sc1"
    f4b = f"buffer_load_dword v9, v{vF4}, {WS}, 0 offen offset:128 sc1"
    pla = vm.put(pfa + k.par('la', 16), f4a)
    pca = va.put(pla + k.par('ca', 14), late_check(k, 'f4a', f4a, chk1))
    pos = EB
    for t in range(4):
        it, st = epi(1, t)
        pos = va.seq(pos, ["\n".join(it[2*q:2*q+2]) for q in range(4)]); vm.put(pos, st)
    peb = pos
    pfb = vm.put(pos + k.par('fb', 14), hflag(1))
    plb = vm.put(min(pfb + k.par('lb', 12), N + 55), f4b)
    ST = k.par('vst', 2)
    LAG, SL = k.par('lag', 18), k.par('slack', 24)
    q = [(0, 4 * ks, h2l(0, ks)) for ks in range(NPRE, 28)] + [(4 * ks + 4, 112 + 4 * ks, h2l(1, ks)) for ks in range(28)]
    q += [(max(pca + 1, 112 + 4 * (kk - 16) + 4), N + 2 * kk, hl(0, kk)) for kk in range(28)]
    kk = PRE; tdone = {}; pos = 0
    while q or kk < 28:
        wd_ok = kk < 28 and tdone.get(kk - 4, 0) <= pos
        if q and q[0][0] <= pos and (not wd_ok or (q[0][1] - SL <= pos and q[0][1] < N + 2 * kk - LAG)):
            e = q.pop(0); p = vm.put(pos, e[2]); assert p < e[1], ('late', p, e); pos = p + ST
        elif wd_ok:
            pos = vm.put(pos, wd_a(kk)) + ST
            pos = vm.put(pos, wd_b(kk)) + ST
            tdone[kk] = tr.seq(pos - ST + LAG, [wd_t(kk, sub, u) for sub in range(2) for u in range(2)]) + 1
            assert tdone[kk] < N + 2 * kk, ('Wd late', kk, tdone[kk])
            kk += 1
        else: pos += 1
    k.info = dict(pca=pca, endstream=pos, tlast=tdone[27], pfb=pfb, plb=plb)
    G2 = ((144, 216), (ACB, ACB + 16))
    XV = 252
    vm.put(N + 20, f"buffer_load_dwordx4 {vr(XV,4)}, v{vH}, {WS}, s{sX1} offen sc1")
    def quarter(st, q): return G2[st][q >> 1] + 8 * (q & 1)
    def red_w(st): return [f"ds_write_b128 v{vRW}, {vr(quarter(st,q)+4*h,4)} offset:{2048*(q-1)+1024*h}" for q in (2, 3, 1) for h in range(2)]
    def red_r(st): return [f"ds_read_b128 {vr(quarter(st,q)+4*h,4)}, v{vTR+q-1} offset:{1024*h}" for q in (1, 2, 3) for h in range(2)]
    GB, XF = 160, 232
    def fin(st, pk):
        o = quarter(st, 0)
        it = []
        for q in (1, 2, 3):
            r = quarter(st, q)
            if pk: it += [f"v_pk_add_f32 {vr(o+2*e,2)}, {vr(o+2*e,2)}, {vr(r+2*e,2)}" for e in range(4)]
            else: it += [f"v_add_f32 v{o+e}, v{o+e}, v{r+e}" for e in range(8)]
        if pk: it += [f"v_pk_fma_f32 {vr(o+2*e,2)}, {vr(o+2*e,2)}, {vr(GB+2*e,2)}, {vr(XF+2*e,2)}" for e in range(4)]
        else: it += [f"v_fma_f32 v{o+e}, v{o+e}, v{GB+e}, v{XF+e}" for e in range(8)]
        it += [f"v_cvt_pk_bf16_f32 v{o+e}, v{o+2*e}, v{o+2*e+1}" for e in range(4)]
        return it
    unp = [f"v_lshlrev_b32 v{XF+2*e}, 16, v{XV+e}\nv_and_b32 v{XF+2*e+1}, s{sMASK}, v{XV+e}" for e in range(4)]
    ost = lambda st: f"buffer_store_dwordx4 {vr(quarter(st,0),4)}, v{vO}, {RB}, {('0', 's79')[st]} offen"
    va.seq(N + 30, [f"v_add_u32 v{vTR+q}, s{sRR+q}, v13\nv_add_u32 v{vTR+q}, {L_ST}, v{vTR+q}" for q in range(3)] + unp)
    tr.seq(N + 30, [f"ds_read_b128 {vr(GB+4*h,4)}, v{vGB} offset:{16*h}" for h in range(2)])
    va.put(N + 44, "\n".join(f"s_add_u32 s{sHG+g}, s{sHG+g}, {112*1024}" for g in range(4)))
    assert k.info['endstream'] < N + 44, k.info
    k.stamp('g1')
    def run(n):
        vm.run(a, n); tr.run(a, n); va.run(a, n)
    for n, (p, ks, t) in enumerate(steps):
        d = vr((ACA, ACB)[p] + 16 * t, 16)
        a(f"v_mfma_f32_32x32x16_bf16 {d}, {vr(AR+4*(n%NAR),4)}, {h2reg(ks)}, {'0' if ks == 0 else d}")
        if n + PF < N: aread(n + PF)
        run(n)
        if n == 111: k.stamp('g1a')
    k.stamp('g1end')
    a.section = 'g2'
    def mm(st, kk, sub):
        d = vr(G2[st][sub], 16)
        a(f"v_mfma_f32_32x32x16_bf16 {d}, {ar(8*kk+4*sub,4)}, {hreg(st,kk)}, {'0' if kk == 0 else d}")
    for kk in range(28):
        for i_, sub in enumerate((1, 0)):
            mm(0, kk, sub); run(N + 2 * kk + i_)
    k.stamp('d4a')
    k.poll('d4b', lambda: a(f4b), chk1, first_issued=True)
    k.stamp('d4b')
    NP2 = k.par('np2', 8)
    w0 = red_w(0)
    for kk in range(NP2):
        a(hl(1, kk))
        if kk < 6: a(w0[kk])
    k.barrier()
    for ln in red_r(0): a(ln)
    B = N + 56
    vm.seq(B, [hl(1, kk) for kk in range(NP2, 28)], step=2)
    it = fin(0, False)
    pos = va.seq(B + 2, ["\n".join(it[i_:i_+3]) for i_ in range(0, len(it), 3)])
    pos = vm.put(pos + 1, ost(0))
    pos = vm.put(pos + 1, f"buffer_load_dwordx4 {vr(XV,4)}, v{vH}, {WS}, s{sX1+1} offen sc1")
    va.seq(pos + 2, [f"v_subrev_u32 v{vTR+q}, {L_ST}, v{vTR+q}" for q in range(3)] + [f"v_subrev_u32 v{vRW}, {L_ST}, v{vRW}\ns_movk_i32 s79, {32*896}"])
    va.seq(B + 46, unp)
    order = [(kk, sub) for kk in range(25) for sub in (1, 0)] + [(kk, 1) for kk in range(25, 28)] + [(kk, 0) for kk in range(25, 28)]
    for i_, (kk, sub) in enumerate(order):
        mm(1, kk, sub); run(B + i_)
    k.stamp('g2end')
    for ln in red_w(1): a(ln)
    k.barrier()
    for ln in red_r(1): a(ln)
    for ln in fin(1, True): a(ln)
    a(ost(1))
    a("L_g2_done:")
```

```python
import sys, struct, math
sys.path.insert(0, "gen")
from fw import Asm, Ins

NAME = "adaLN_cond__grouped_kv_mqa__glu_gated_reglu__prompt"
def f32(x): return struct.unpack('<I', struct.pack('<f', x))[0]
def vr(b, n=1, k='v'): return f"{k}{b}" if n == 1 else f"{k}[{b}:{b+n-1}]"
def ar(b, n=1): return vr(b, n, 'a')
def sr(b, n=1): return vr(b, n, 's')

W_EPOCH = 0
W_XID = 0x400
W_FWO = 0x1000
W_FNC = 0x1400
W_FQ = 0x4000
W_F3 = 0x6000
W_F4 = 0x8000
W_FK = 0x10000
W_MODC = 0x18000
W_MODN = 0x20000
W_NCP = 0x24000
W_KV = 0x40000
W_KVL = 0x80000
W_B = 0x100000
BLK = 14336
W_WO = 0x480000
W_H = 0x500000
W_STAMP = 0xC00000
W_SIZE = 0x2000000
OOB = 0x7000_0000
L_HT = 114688
L_P0 = L_HT
L_SILU = L_HT + 4096
L_MODL = 143872
L_MODN = 147456
L_NC = 147456
L_NS = 155648
L_WOST = 156160
L_OS = 98304
L_ST = 114688
L_OT = 154624
L_MISC = 162816
LDS_SIZE = 163840
S_X, S_WQ, S_WK, S_WV, S_WO, S_WG, S_WU, S_WD, S_C, S_WM, S_OUT, S_DBG, S_WS = 4, 6, 8, 10, 12, 16, 18, 20, 22, 24, 26, 28, 30
R_WS, R_X, R_A, R_B, R_C = 32, 36, 40, 44, 48
sI, sW, sT, sXC, sR = 52, 53, 54, 55, 56
sT0 = 57
sMASK = 61
sCNT = 62
sFB = 63
sLOC, sE = 2, 3
s0 = 64
S_STAMP = 82
POLL_LIMIT = 20000
WS, RX, RA, RB, RC = (f"s[{r}:{r+3}]" for r in (R_WS, R_X, R_A, R_B, R_C))
(pWV, pXV, pTR, pHW, pHR, pQS, pML, pD1, pXI, pGW, pGA, pNV, pNS, pNA, pNB, pNW, pNT, pC, pC1, pC2, pC3, pC4, pWO, pWT,
 p0V, p0C, p0D, pNO, pT0, pT1, pJ0, pJ1) = range(176, 208)
vT, vF = 241, 8

class K:
    def __init__(self, stamps=False, stop=None, x=(), probe=None):
        self.x = set(x); self.probe = probe
        self.a = Asm()
        self.stamps = stamps
        self.nstamp = 0
        self.stop = stop
        self.stamp_names = []

    def par(self, name, default):
        for x in self.x:
            if x.startswith(name + '='): return int(x.split('=')[1])
        return default

    def stamp(self, name):
        if not self.stamps or name not in self.stamps: return
        assert self.nstamp < 10
        r = S_STAMP + 2 * self.nstamp
        self.a(f"{'s_memtime' if 'cyc' in self.x else 's_memrealtime'} {sr(r,2)}")
        self.nstamp += 1
        self.stamp_names.append(name)

    def srd(self, r, ptr, size):
        self.a(f"""s_mov_b32 s{r}, s{ptr}
        s_mov_b32 s{r+1}, s{ptr+1}
        s_mov_b32 s{r+2}, {size}
        s_mov_b32 s{r+3}, 0x20000""")

    def barrier(self):
        self.a.wait_lg()
        self.a("s_barrier")

    def prologue(self):
        a = self.a
        a.section = 'prologue'
        a(f"""s_cmp_ge_u32 s2, 256
        s_cbranch_scc1 L_end
        s_load_dwordx4 s[28:31], s[0:1], 96
        s_load_dwordx8 s[20:27], s[0:1], 64
        s_load_dwordx16 s[4:19], s[0:1], 0""")
        self.stamp('start')
        a(f"""v_lshrrev_b32 v2, 6, v0
        v_and_b32 v1, 63, v0
        s_and_b32 s{sXC}, s2, 7
        v_readfirstlane_b32 s{sW}, v2
        s_lshr_b32 s{sR}, s2, 3
        s_lshl_b32 s{sI}, s{sXC}, 5
        s_add_u32 s{sI}, s{sI}, s{sR}
        s_mov_b32 s{sMASK}, 0xffff0000
        s_mov_b32 s{sFB}, 0""")

    def p0_setup(self):
        a = self.a
        a(f"""v_lshrrev_b32 v3, 1, v1
        v_and_b32 v4, 1, v1
        v_mul_u32_u24 v3, 5376, v3
        v_lshl_add_u32 v{p0V}, v4, 4, v3
        v_min_u32 v4, 55, v1
        s_and_b32 s68, s{sI}, 3
        s_lshr_b32 s69, s{sI}, 2
        s_mul_i32 s70, s68, 224
        v_lshl_add_u32 v{p0C}, v4, 2, s70
        v_lshlrev_b32 v{pT0}, 7, v1
        s_mul_i32 s64, s68, {112*5376}
        s_lshl_b32 s70, s69, 5
        s_add_u32 s64, s64, s70
        s_movk_i32 s70, 224
        s_cmp_eq_u32 s{sW}, 1
        s_cselect_b32 s70, 196, s70
        s_lshl_b32 s71, s{sW}, 2
        s_lshr_b32 s67, 0x3021, s71
        s_and_b32 s67, s67, 15
        s_cmp_ge_u32 s{sI}, s70
        s_cselect_b32 s67, 0, s67
        s_mov_b32 m0, {L_P0}""")

    def p0_loads(self):
        a = self.a
        a(f"global_load_dword v{p0D}, v{p0C}, s[{S_C}:{S_C+1}]")
        for p in range(4):
            if p == 3: a("s_mov_b32 exec_hi, 0")
            last = a(f"buffer_load_dwordx4 v{p0V}, {RA}, s64 offen lds")
            if p < 3: a(f"s_add_u32 m0, m0, 1024\ns_add_u32 s64, s64, {32*5376}")
        a("s_mov_b32 exec_hi, -1")
        return last

    def w_prefetch(self):
        self.a(f"""s_cmp_lt_u32 s{sI}, 238
        s_cselect_b32 s{R_C}, s{S_WK}, s{S_WV}
        s_cselect_b32 s{R_C+1}, s{S_WK+1}, s{S_WV+1}
        s_movk_i32 s70, 238
        s_cselect_b32 s70, 224, s70
        s_cmp_lt_u32 s{sI}, 224
        s_cselect_b32 s{R_C}, s{S_WQ}, s{R_C}
        s_cselect_b32 s{R_C+1}, s{S_WQ+1}, s{R_C+1}
        s_cselect_b32 s70, 0, s70
        s_mov_b32 s71, 401408
        s_cselect_b32 s{R_C+2}, s71, 25088
        s_mov_b32 s{R_C+3}, 0x20000
        s_sub_u32 s70, s{sI}, s70
        s_mul_i32 s70, s70, 1792
        s_mov_b64 exec, 0x3fff
        buffer_load_dword v{pJ0}, v{pT0}, {RC}, s70 offen
        s_mov_b64 exec, -1""")

    def tagcalc(self):
        self.a(f"""s_and_b32 s70, s{sE}, 0x7f7f7f7f
        s_and_b32 s71, s{sE}, 0x80808080
        s_add_u32 s70, s70, 0x01010101
        s_xor_b32 s{sT}, s70, s71""")

    def silu(self, regs, tmp):
        a = self.a
        for k, r in enumerate(regs): a(f"v_mul_f32 v{tmp+k}, {f32(-math.log2(math.e)):#x}, v{r}")
        for k, r in enumerate(regs): a(f"v_exp_f32 v{tmp+k}, v{tmp+k}")
        for k, r in enumerate(regs): a(f"v_add_f32 v{tmp+k}, 1.0, v{tmp+k}")
        for k, r in enumerate(regs): a(f"v_rcp_f32 v{tmp+k}, v{tmp+k}")
        for k, r in enumerate(regs): a(f"v_mul_f32 v{r}, v{r}, v{tmp+k}")

    def p0_compute(self, last):
        a = self.a
        A0, B0, D = 128, 142, 156
        a(f"""v_lshlrev_b32 v161, 3, v1
        v_lshrrev_b32 v160, 4, v1
        v_lshlrev_b32 v160, 3, v160
        v_lshlrev_b32 v162, 2, v1
        v_add_u32 v161, {L_P0}, v161
        v_add_u32 v160, {L_SILU}, v160
        v_add_u32 v163, {L_SILU}, v162
        s_lshl_b32 s66, s{sI}, 7
        s_add_u32 s66, s66, {W_MODC}
        s_mov_b32 s71, 0xffffff00
        v_lshlrev_b32 v164, 16, v{p0D}
        v_and_b32 v165, s{sMASK}, v{p0D}""")
        self.silu([164, 165], 166)
        a("v_cvt_pk_bf16_f32 v164, v164, v165\nds_write_b32 v163, v164")
        for s in range(7): a(f"ds_read_b64 {vr(A0+2*s,2)}, v160 offset:{32*s}")
        a.wait_vm(last)
        for s in range(7): a(f"ds_read_b64_tr_b16 {vr(B0+2*s,2)}, v161 offset:{512*s}")
        for s in range(7):
            a(f"v_mfma_f32_16x16x16_bf16 {vr(D,4)}, {vr(A0+2*s,2)}, {vr(B0+2*s,2)}, {'0' if s==0 else vr(D,4)}")
        a(f"""s_mov_b64 exec, 0xffff
        v_add_u32 v164, 0x80, v{D}
        v_and_or_b32 v164, v164, s71, v{pNT}
        buffer_store_dword v164, v162, {WS}, s66 offen sc1
        s_mov_b64 exec, -1""")

    def nc_setup(self):
        self.a(f"""s_mul_i32 s70, s{sI}, 9363
        s_lshr_b32 s70, s70, 16
        s_mul_i32 s71, s70, 7
        s_sub_u32 s71, s{sI}, s71
        s_lshl_b32 s72, s71, 7
        v_and_b32 v{pT0}, 31, v1
        v_lshl_add_u32 v{pC1}, v{pT0}, 2, s72
        s_mul_i32 s71, s71, {64*5376}
        s_lshl_b32 s70, s70, 7
        s_add_u32 s70, s70, s71
        s_lshl_b32 s71, s{sW}, 5
        s_add_u32 s70, s70, s71
        s_add_u32 s70, s70, 1792
        s_lshl_b32 s71, s{sI}, 2
        s_add_u32 s71, s71, s{sW}
        s_lshl_b32 s71, s71, 6
        s_add_u32 s71, s71, {W_NCP}
        s_cmp_lt_u32 s{sI}, 196
        s_cselect_b32 s70, s70, {OOB}
        s_cselect_b32 s71, s71, {OOB}
        v_add_u32 v{pNV}, s70, v{p0V}
        v_lshl_add_u32 v{pNS}, v1, 2, s71
        v_mov_b32 v{pNO}, {OOB}
        v_cmp_gt_u32 vcc, 16, v1
        s_lshl_b32 s70, s{sW}, 7
        s_add_u32 s70, s70, {L_NS}
        v_cndmask_b32 v{pNS}, v{pNO}, v{pNS}, vcc
        v_lshl_add_u32 v{pNW}, v{pT0}, 2, s70
        v_lshrrev_b32 v{pT0}, 4, v1
        v_lshl_add_u32 v{pNA}, v{pT0}, 4, s70
        s_lshl_b32 s70, s{sW}, 11
        s_add_u32 s70, s70, {L_NC}
        v_lshl_add_u32 v{pNB}, v{pT0}, 8, s70
        v_and_b32 v{pT0}, 15, v1
        v_lshl_add_u32 v{pNB}, v{pT0}, 3, v{pNB}""")
    def nc_silu(self):
        a = self.a
        a(f"v_lshlrev_b32 v{pC1}, 16, v{pC}\nv_and_b32 v{pC2}, s{sMASK}, v{pC}")
        self.silu([pC1, pC2], pC3)
        a(f"v_cvt_pk_bf16_f32 v{pC1}, v{pC1}, v{pC2}\nds_write_b32 v{pNW}, v{pC1}")
    def nc_loads(self):
        self.a(f"""s_lshl_b32 s70, s{sW}, 11
        s_add_u32 m0, s70, {L_NC}
        s_mov_b32 s70, {32*5376-1024}
        buffer_load_dwordx4 v{pNV}, {RA}, 0 offen lds
        buffer_load_dwordx4 v{pNV}, {RA}, s70 offen offset:1024 lds""")
    def nc_compute(self):
        a = self.a
        A0, B0, D = 128, 136, 112
        for s in range(2):
            a(f"""ds_read_b128 {vr(A0+4*s,4)}, v{pNA} offset:{64*s}
            ds_read_b64_tr_b16 {vr(B0+4*s,2)}, v{pNB} offset:{1024*s}
            ds_read_b64_tr_b16 {vr(B0+4*s+2,2)}, v{pNB} offset:{1024*s+128}""")
        a("s_cmp_eq_u32 s67, 2")
        with a.guard('wo', 's_cbranch_scc0'):
            for e in range(2):
                for u in range(2): a(f"ds_read_b64_tr_b16 {vr(96+4*e+2*u,2)}, v{pWT} offset:{256*u+32*e}")
        for s in range(2):
            a(f"v_mfma_f32_16x16x32_bf16 {vr(D,4)}, {vr(A0+4*s,4)}, {vr(B0+4*s,4)}, {'0' if s==0 else vr(D,4)}")
    def nc_finish(self):
        self.a(f"""v_add_u32 v{pNO}, 0x80, v112
        v_bfi_b32 v{pNO}, v251, v{pNT}, v{pNO}""")

    def wo_setup(self):
        self.srd(R_C, S_WO, 401408)
        self.a(f"""s_mul_i32 s70, s{sI}, 9363
        s_lshr_b32 s70, s70, 17
        s_mul_i32 s71, s70, 14
        s_sub_u32 s71, s{sI}, s71
        s_mul_i32 s72, s71, {32*896}
        s_lshl_b32 s73, s70, 6
        s_add_u32 s72, s72, s73
        s_mul_i32 s70, s70, 28
        s_add_u32 s70, s70, s71
        s_lshl_b32 s70, s70, 10
        s_add_u32 s70, s70, {W_WO}
        v_add_u32 v228, s70, v13
        v_add_u32 v{pWO}, s72, v{pWV}
        v_lshrrev_b32 v{pWT}, 4, v1
        v_bfe_u32 v{pT0}, v1, 2, 2
        v_lshl_add_u32 v{pWT}, v{pWT}, 3, v{pT0}
        v_and_b32 v{pT0}, 3, v1
        v_lshlrev_b32 v{pWT}, 6, v{pWT}
        v_lshl_add_u32 v{pWT}, v{pT0}, 3, v{pWT}
        v_add_u32 v{pWT}, {L_WOST}, v{pWT}""")
    def wo_loads(self):
        self.a(f"""s_mov_b32 m0, {L_WOST}
        s_movk_i32 s70, {16*896-1024}
        buffer_load_dwordx4 v{pWO}, {RC}, 0 offen lds
        buffer_load_dwordx4 v{pWO}, {RC}, s70 offen offset:1024 lds""")

    XR, XH, ACC1 = 16, 48, 112
    def p1_setup(self):
        a = self.a
        a(f"""s_lshr_b32 s77, s{sI}, 2
        s_and_b32 s81, s77, 7
        s_lshl_b32 s77, s77, 2
        s_add_u32 s77, s77, s{sW}
        s_mul_i32 s77, s77, {8*896}
        v_lshlrev_b32 v13, 4, v1
        v_mov_b32 v2, {OOB}
        v_cmp_gt_u32 vcc, 56, v1
        v_add_u32 v{pXV}, s77, v13
        s_movk_i32 s72, 3584
        v_cndmask_b32 v{pXV}, v2, v{pXV}, vcc""")
    def p1_setup2(self):
        a = self.a
        a(f"""s_and_b32 s76, s{sI}, 3
        s_lshl_b32 s76, s76, 2
        s_add_u32 s76, s76, s{sW}
        s_cmp_eq_u32 s76, 15
        s_cselect_b32 s{R_B}, s{S_WV}, s{S_WK}
        s_cselect_b32 s{R_B+1}, s{S_WV+1}, s{S_WK+1}
        s_lshl_b32 s78, s76, 6
        s_cmp_lt_u32 s76, 14
        s_cselect_b32 s{R_B}, s{S_WQ}, s{R_B}
        s_cselect_b32 s{R_B+1}, s{S_WQ+1}, s{R_B+1}
        s_mov_b32 s70, 401408
        s_cselect_b32 s{R_B+2}, s70, 25088
        s_mov_b32 s{R_B+3}, 0x20000
        s_cselect_b32 s78, s78, 0
        s_cselect_b32 s70, 896, 56
        s_lshl_b32 s80, s70, 4
        s_mul_i32 s81, s81, {0 if 'norot' in self.x else 7}
        s_lshr_b32 s81, s81, 1
        s_mul_i32 s79, s81, s80
        s_add_u32 s79, s79, s78
        s_mul_i32 s77, s80, 28
        s_add_u32 s77, s77, s78
        v_lshrrev_b32 v{pWV}, 2, v1
        v_and_b32 v{pT0}, 3, v1
        v_mul_u32_u24 v{pWV}, s70, v{pWV}
        v_lshl_add_u32 v{pWV}, v{pT0}, 4, v{pWV}
        s_mul_i32 s70, s{sW}, 28672
        s_mov_b32 m0, s70""")
    def p1_setup3(self):
        a = self.a
        self.tr_lane(pTR, 64, 8, 32, pT0)
        a(f"""s_mul_i32 s70, s{sW}, 28672
        v_add_u32 v{pTR}, s70, v{pTR}
        s_lshl_b32 s70, s81, 1
        v_subrev_u32 v{pHW}, s70, v1
        v_add_u32 v{pT0}, 56, v{pHW}
        v_min_u32 v{pHW}, v{pHW}, v{pT0}
        s_mul_i32 s71, s{sW}, {8*912}
        s_add_u32 s71, s71, {L_HT}
        v_lshl_add_u32 v{pHW}, v{pHW}, 4, s71
        v_and_b32 v{pT0}, 31, v1
        v_lshrrev_b32 v{pT1}, 5, v1
        v_mul_u32_u24 v{pHR}, 912, v{pT0}
        v_bfe_u32 v{pQS}, v1, 4, 1
        v_mul_u32_u24 v{pQS}, {2*BLK}, v{pQS}
        v_lshl_add_u32 v{pHR}, v{pT1}, 4, v{pHR}
        v_lshl_add_u32 v{pQS}, v{pT1}, 8, v{pQS}
        v_and_b32 v{pT1}, 15, v1
        v_lshl_add_u32 v{pQS}, v{pT1}, 3, v{pQS}
        v_add_u32 v{pHR}, {L_HT}, v{pHR}
        s_lshl_b32 s70, s{sXC}, 7
        s_add_u32 s70, s70, {W_XID}
        v_lshl_add_u32 v{pXI}, v{pT0}, 2, s70
        v_lshlrev_b32 v{pML}, 5, v1
        v_add_u32 v{pML}, {L_MODL}, v{pML}
        v_min_u32 v{pGA}, 223, v0
        v_lshrrev_b32 v{pD1}, 2, v{pGA}
        v_and_b32 v{pT0}, 3, v{pGA}
        v_lshlrev_b32 v{pD1}, 9, v{pD1}
        v_lshl_add_u32 v{pD1}, v{pT0}, 4, v{pD1}
        v_cmp_le_u32 vcc, 112, v{pGA}
        v_add_u32 v{pD1}, {W_MODC}, v{pD1}
        v_lshlrev_b32 v{pGW}, 4, v{pGA}
        v_add_u32 v{pGW}, {L_MODL}, v{pGW}
        v_cndmask_b32 v{pGA}, 0, 1.0, vcc""")

    def x_loads(self):
        a = self.a
        for t in range(8):
            a(f"buffer_load_dwordx4 {vr(self.XR+4*t,4)}, v{pXV}, {RX}, {0 if t<4 else 's72'} offen offset:{(t&3)*896}{'' if 'xdef' in self.x else ' nt'}")

    def w_dma(self):
        a = self.a
        p = len(self.wids)
        if p == self.nw1 and not self.d1_issued:
            self.d1_issued = True
            self.stamp('d1poll')
            self.d1_loads(); return
        if p >= 28: return
        self.wids.append(a(f"buffer_load_dwordx4 v{pWV}, {RB}, s79 offen lds"))
        if p < 27: a(f"s_add_u32 m0, m0, 1024\ns_add_u32 s79, s79, s80\ns_cmp_eq_u32 s79, s77\ns_cselect_b32 s79, s78, s79")

    def reduce8(self, r):
        a = self.a
        for k in range(0, 8, 2): a(f"v_permlane32_swap_b32 v{r+k}, v{r+k+1}")
        for k in range(0, 8, 2): a(f"v_add_f32 v{r+k}, v{r+k}, v{r+k+1}")
        for k in (0, 4): a(f"v_permlane16_swap_b32 v{r+k}, v{r+k+2}")
        for k in (0, 4): a(f"v_add_f32 v{r+k}, v{r+k}, v{r+k+2}")
        for sh in (8, 4, 2, 1):
            for k in (0, 4): a(f"v_add_f32_dpp v{r+k}, v{r+k}, v{r+k} row_ror:{sh} row_mask:0xf bank_mask:0xf")
    def bcast8(self, r, s):
        a = self.a
        for k, base in ((0, 0), (4, 4)):
            for row, t in enumerate((0, 2, 1, 3)):
                a(f"v_readlane_b32 s{s+base+t}, v{r+k}, {16*row}")
    def spair(self, s):
        return sr(s & ~1, 2), s & 1

    def ln1_stats(self):
        a = self.a
        a.section = 'ln1'
        XR, XH = self.XR, self.XH
        T = 112
        SS = 68
        for t in range(8):
            for j in range(4):
                a(f"v_lshlrev_b32 v{XH+8*t+2*j}, 16, v{XR+4*t+j}\nv_and_b32 v{XH+8*t+2*j+1}, s{sMASK}, v{XR+4*t+j}")
            x = XH + 8 * t
            a(f"""v_pk_add_f32 v[120:121], {vr(x,2)}, {vr(x+2,2)}
            v_pk_add_f32 v[122:123], {vr(x+4,2)}, {vr(x+6,2)}
            v_pk_add_f32 v[120:121], v[120:121], v[122:123]
            v_add_f32 v{T+t}, v120, v121""")
            self.w_dma()
        self.reduce8(T)
        self.w_dma()
        a(f"v_mul_f32 v{T}, {f32(-1/448):#x}, v{T}\nv_mul_f32 v{T+4}, {f32(-1/448):#x}, v{T+4}")
        self.bcast8(T, SS)
        a("s_mov_b32 exec_hi, 0xffffff")
        for t in range(8):
            p, o = self.spair(SS + t)
            for j in range(4):
                x = XH + 8 * t + 2 * j
                a(f"v_pk_add_f32 {vr(x,2)}, {vr(x,2)}, {p} op_sel:[0,{o}] op_sel_hi:[1,{o}]")
        a("s_mov_b32 exec_hi, -1")
        for t in range(8):
            x = XH + 8 * t
            self.w_dma()
            a(f"""v_pk_mul_f32 v[120:121], {vr(x,2)}, {vr(x,2)}
            v_pk_fma_f32 v[120:121], {vr(x+2,2)}, {vr(x+2,2)}, v[120:121]
            v_pk_fma_f32 v[120:121], {vr(x+4,2)}, {vr(x+4,2)}, v[120:121]
            v_pk_fma_f32 v[120:121], {vr(x+6,2)}, {vr(x+6,2)}, v[120:121]
            v_add_f32 v{T+t}, v120, v121""")
        self.w_dma()
        self.reduce8(T)
        self.w_dma()
        a(f"""v_mov_b32 v120, {f32(1e-5):#x}
        v_fmac_f32 v120, {f32(1/448):#x}, v{T}
        v_mov_b32 v121, {f32(1e-5):#x}
        v_fmac_f32 v121, {f32(1/448):#x}, v{T+4}
        v_rsq_f32 v{T}, v120
        v_rsq_f32 v{T+4}, v121""")
        self.bcast8(T, SS)
        for t in range(8):
            p, o = self.spair(SS + t)
            for j in range(4):
                x = XH + 8 * t + 2 * j
                a(f"v_pk_mul_f32 {vr(x,2)}, {vr(x,2)}, {p} op_sel:[0,{o}] op_sel_hi:[1,{o}]")
            self.w_dma()
        while len(self.wids) < 28 or not self.d1_issued: self.w_dma()

    def tr_lane(self, dst, rowpitch, halfrows, g1, tmp):
        a = self.a
        a(f"""v_lshrrev_b32 v{dst}, 5, v1
        v_mul_u32_u24 v{dst}, {halfrows}, v{dst}
        v_bfe_u32 v{tmp}, v1, 2, 2
        v_add_u32 v{dst}, v{dst}, v{tmp}
        v_mul_u32_u24 v{dst}, {rowpitch}, v{dst}
        v_bfe_u32 v{tmp}, v1, 4, 1
        v_mul_u32_u24 v{tmp}, {g1}, v{tmp}
        v_add_u32 v{dst}, v{dst}, v{tmp}
        v_and_b32 v{tmp}, 1, v1
        v_lshl_add_u32 v{dst}, v{tmp}, 4, v{dst}
        v_bfe_u32 v{tmp}, v1, 1, 1
        v_lshl_add_u32 v{dst}, v{tmp}, 3, v{dst}""")

    def wread(self, n):
        return [f"ds_read_b64_tr_b16 {ar(4*n+2*u,2)}, v{pTR} offset:{1024*n+256*u}" for u in range(2)]

    def gran_check(self, regs, tmp):
        a = self.a
        for k, r in enumerate(regs): a(f"v_xor_b32 v{r}, s{sT0+(k&3)}, v{r}")
        a(f"v_or_b32 v{tmp}, v{regs[0]}, v{regs[1]}")
        for k in range(2, len(regs), 2): a(f"v_or3_b32 v{tmp}, v{tmp}, v{regs[k]}, v{regs[k+1]}")
        a(f"v_and_b32 v{tmp}, 0xff, v{tmp}\nv_cmp_ne_u32 vcc, 0, v{tmp}")

    def gran_reduce(self, g, addc, addr):
        a = self.a
        a(f"""v_pk_add_f32 {vr(g,2)}, {vr(g,2)}, {vr(g+4,2)}
        v_pk_add_f32 {vr(g+2,2)}, {vr(g+2,2)}, {vr(g+6,2)}
        v_pk_add_f32 {vr(g+8,2)}, {vr(g+8,2)}, {vr(g+12,2)}
        v_pk_add_f32 {vr(g+10,2)}, {vr(g+10,2)}, {vr(g+14,2)}
        v_pk_add_f32 {vr(g,2)}, {vr(g,2)}, {vr(g+8,2)}
        v_pk_add_f32 {vr(g+2,2)}, {vr(g+2,2)}, {vr(g+10,2)}
        v_cvt_pk_bf16_f32 v{g+4}, v{g}, v{g+1}
        v_cvt_pk_bf16_f32 v{g+5}, v{g+2}, v{g+3}
        v_lshlrev_b32 v{g}, 16, v{g+4}
        v_and_b32 v{g+1}, s{sMASK}, v{g+4}
        v_lshlrev_b32 v{g+2}, 16, v{g+5}
        v_and_b32 v{g+3}, s{sMASK}, v{g+5}
        v_add_f32 v{g}, v{g}, v{addc}
        v_add_f32 v{g+1}, v{g+1}, v{addc}
        v_add_f32 v{g+2}, v{g+2}, v{addc}
        v_add_f32 v{g+3}, v{g+3}, v{addc}
        v_cvt_pk_bf16_f32 v{g+4}, v{g}, v{g+1}
        v_cvt_pk_bf16_f32 v{g+5}, v{g+2}, v{g+3}
        v_lshlrev_b32 v{g}, 16, v{g+4}
        v_and_b32 v{g+1}, s{sMASK}, v{g+4}
        v_lshlrev_b32 v{g+2}, 16, v{g+5}
        v_and_b32 v{g+3}, s{sMASK}, v{g+5}
        ds_write_b128 v{addr}, {vr(g,4)}""")

    def poll(self, name, loads, check, first_issued=False, between=None):
        a = self.a
        L = a.label(name)
        a(f"s_mov_b32 s{sCNT}, {POLL_LIMIT}")
        if not first_issued: loads()
        st = None
        if between:
            a.wait_vm()
            between()
            check()
            a(f"s_cbranch_vccz {L}_ok")
            st = a.state()
            loads()
        a(f"{L}:")
        a.wait_vm()
        check()
        a(f"""s_cbranch_vccz {L}_ok
        s_sub_u32 s{sCNT}, s{sCNT}, 1
        s_cbranch_scc1 {L}_ok""")
        if st is None: st = a.state()
        loads()
        a(f"s_branch {L}\n{L}_ok:")
        a.set_state(st)

    def st(self, lines):
        a = self.a
        L = a.label('st')
        for ln in lines:
            i = Ins(ln); a.need(i.rd + i.wr)
        a(f"s_cmp_eq_u32 s{sLOC}, 0\ns_cbranch_scc1 {L}_g")
        for ln in lines: oid = a(ln)
        a(f"{L}_j:")
        def far():
            a.set_state(([], []))
            a(f"{L}_g:\ns_nop 4")
            for ln in lines: a(ln + " sc1")
            a(f"s_branch {L}_j")
        self.ool.append(far)
        return oid

    G1 = 128
    def d1_loads(self):
        a = self.a
        for rg in range(4): a(f"buffer_load_dwordx4 {vr(self.G1+4*rg,4)}, v{pD1}, {WS}, 0 offen offset:{128*rg} sc1")
        self.d1_id = a(f"buffer_load_dword v144, v{pXI}, {WS}, 0 offen sc1")
    def d1(self):
        a = self.a
        a.section = 'd1'
        G = self.G1
        def check():
            a(f"v_xor_b32 v144, s{sT}, v144\nv_cmp_lt_u32 s[70:71], 15, v144")
            self.gran_check(list(range(G, G + 16)), 145)
            a("s_or_b64 vcc, vcc, s[70:71]")
        self.nc_silu()
        for n in range(self.nw1):
            if n % 4 == 0: a.wait_vm(self.wids[min(n + 3, self.nw1 - 1)])
            for ln in self.wread(n): a(ln)
        self.stamp('wread')
        a.wait_vm(self.d1_id)
        check()
        a("s_cbranch_vccnz L_d1_w\nL_d1_ok:")
        def far():
            a.set_state(([], []))
            a("L_d1_w:")
            self.poll('d1', self.d1_loads, check)
            a("s_branch L_d1_ok")
        self.ool.append(far)
        self.gran_reduce(G, pGA, pGW)
        a(f"""s_getreg_b32 s70, hwreg(HW_REG_XCC_ID, 0, 4)
        v_cmp_ne_u32 vcc, s70, v144""")
        if 'not1' not in self.x: a(f"buffer_load_dword v{pJ0}, v7, {WS}, s65 offen sc1")
        self.nc_loads()
        a(f"""s_cmp_eq_u64 vcc, 0
        s_cselect_b32 s{sLOC}, {0 if 'global' in self.x else 1}, 0
        s_cmp_eq_u32 s67, 2""")
        with a.guard('wo', 's_cbranch_scc0'): self.wo_loads()
        self.barrier()
        self.stamp('d1done')

    def p1_main(self):
        a = self.a
        a.section = 'p1'
        XH = self.XH
        SH, SC = 24, 32
        a(f"""ds_read_b128 {vr(SC,4)}, v{pML} offset:1792
        ds_read_b128 {vr(SH,4)}, v{pML}
        ds_read_b128 {vr(SC+4,4)}, v{pML} offset:1808
        ds_read_b128 {vr(SH+4,4)}, v{pML} offset:16
        s_mov_b32 exec_hi, 0xffffff""")
        for t in range(8):
            x = XH + 8 * t
            for j in range(4): a(f"v_pk_fma_f32 {vr(x+2*j,2)}, {vr(x+2*j,2)}, {vr(SC+2*j,2)}, {vr(SH+2*j,2)}")
            for j in range(4): a(f"v_cvt_pk_bf16_f32 v{x+j}, v{x+2*j}, v{x+2*j+1}")
            a(f"ds_write_b128 v{pHW}, {vr(x,4)} offset:{912*t}")
        a("s_mov_b32 exec_hi, -1")
        fill = f"""s_lshr_b32 s72, s{sI}, 2
        s_mul_i32 s70, s72, {4*BLK}
        s_lshl_b32 s73, s76, 10
        s_add_u32 s70, s70, s73
        s_add_u32 s70, s70, {W_B-7168}
        s_cmp_lt_u32 s76, 7
        s_cselect_b32 s73, {BLK+7168}, 0
        s_add_u32 s70, s70, s73
        s_lshl_b32 s71, s72, 12
        s_and_b32 s73, s76, 1
        s_lshl_b32 s73, s73, 11
        s_add_u32 s71, s71, s73
        s_add_u32 s74, s71, {W_KVL}
        s_add_u32 s71, s71, {W_KV}
        s_lshl_b32 s75, s72, 7
        s_lshl_b32 s73, s76, 2
        s_add_u32 s75, s75, s73
        s_add_u32 s75, s75, {W_FQ}""".split('\n')
        import k2
        fill += k2.att_srd(self) + k2.att_late(self)
        self.barrier()
        self.stamp('hbar')
        HF, NH, D = 128, 12, self.ACC1
        L = a.label('p1')
        def mm(swap):
            hf = lambda ks: vr(HF + 4 * (ks % NH), 4)
            for ks in range(8): a(f"ds_read_b128 {hf(ks)}, v{pHR} offset:{32*ks}")
            n = self.nw1
            for ks in range(28):
                A, B = ar(4 * ks, 4), hf(ks)
                if swap: A, B = B, A
                a(f"v_mfma_f32_32x32x16_bf16 {vr(D,16)}, {A}, {B}, {'0' if ks==0 else vr(D,16)}")
                if ks + 8 < 28: a(f"ds_read_b128 {hf(ks+8)}, v{pHR} offset:{32*(ks+8)}")
                while n < 28 and n <= ks + 8:
                    a.wait_vm(self.wids[n])
                    for ln in self.wread(n): a(ln)
                    n += 1
                for ln in fill[len(fill)*ks//28:len(fill)*(ks+1)//28]: a(ln)
        def cvt():
            for j in range(8): a(f"v_cvt_pk_bf16_f32 v{24+j}, v{D+2*j}, v{D+2*j+1}")
        a(f"s_cmp_eq_u32 s76, 15\ns_cbranch_scc1 {L}_v")
        st = a.state()
        mm(False)
        a(f"s_cmp_eq_u32 s76, 14\ns_cbranch_scc1 {L}_k")
        st2 = a.state()
        cvt()
        self.st([f"buffer_store_dwordx2 {vr(24+2*e,2)}, v{pQS}, {WS}, s70 offen offset:{(0,128,512,640)[e]}" for e in range(4)])
        a(f"s_branch {L}_j")
        a(f"{L}_k:"); a.set_state(st2)
        a(f"s_mov_b32 s72, {f32(28**-0.5*math.log2(math.e)):#x}\ns_nop 7\ns_nop 1")
        for j in range(8): a(f"v_pk_mul_f32 {vr(D+2*j,2)}, {vr(D+2*j,2)}, s[72:73] op_sel_hi:[1,0]")
        cvt()
        a(f"""s_mov_b32 exec_lo, 0
        v_mov_b32 v30, 0x3f803f80
        v_mov_b32 v31, 0x3f80
        s_mov_b32 exec_lo, -1
        s_branch {L}_kv
        {L}_v:""")
        a.set_state(st)
        a(f"""v_and_b32 v10, 31, v1
        v_cmp_eq_u32 vcc, 28, v10
        v_mov_b32 v11, 0x3f803f80
        s_nop 0
        v_cndmask_b32 v11, 0, v11, vcc""")
        mm(True)
        cvt()
        a("s_mov_b32 exec_lo, 0xf0000000\ns_mov_b32 exec_hi, 0xf0000000")
        for j in range(8): a(f"v_mov_b32 v{24+j}, v11")
        a(f"""s_mov_b64 exec, -1
        {L}_kv:""")
        last = self.st([f"buffer_store_dwordx4 v[24:27], v13, {WS}, s74 offen",
                        f"buffer_store_dwordx4 v[28:31], v13, {WS}, s74 offen offset:1024"])
        a(f"""buffer_store_dwordx4 v[24:27], v13, {WS}, s71 offen sc1
        buffer_store_dwordx4 v[28:31], v13, {WS}, s71 offen offset:1024 sc1""")
        a(f"{L}_j:")
        self.stamp('p1mm')
        self.e1 = k2.att_early(self)[1]
        n = self.par('e1a', 70)
        for ln in self.e1[:n]: a(ln)
        self.e1 = self.e1[n:]
        a.wait_vm(last)
        a(f"s_cmp_ge_u32 s76, 14\ns_cbranch_scc1 {L}_f")
        a.raw("s_waitcnt vmcnt(0)")
        a(f"{L}_f:")
        self.stamp('p1st')
        self.st([f"buffer_store_dword v{vT}, v{vF}, {WS}, s75 offen"])
        self.stamp('f2')

    def flag(self, soff, wave=0):
        a = self.a
        def body():
            a(f"""v_mov_b32 v9, s{sT}
            s_mov_b64 exec, 1
            buffer_store_dword v9, off, s[{R_WS}:{R_WS+3}], {soff} sc1
            s_mov_b64 exec, -1""")
        if wave is None: body(); return
        a(f"s_cmp_eq_u32 s{sW}, {wave}")
        with a.guard(a.label('flag'), 's_cbranch_scc0'): body()

    def start_phase(self):
        a = self.a
        import k2
        self.ool = []
        self.wids = []
        self.nw1 = self.par('nw1', 20); self.d1_issued = False
        self.prologue()
        self.p0_setup()
        self.p1_setup()
        a.need(['s30'])
        self.stamp('karg')
        self.srd(R_A, S_WM, 448 * 5376)
        a("s_cmp_eq_u32 s67, 1")
        with a.guard('p0c', 's_cbranch_scc0'): lc = self.p0_loads()
        a(f"s_load_dword s{sE}, s[{S_WS}:{S_WS+1}], {W_EPOCH}")
        if 'nowpf' not in self.x:
            a(f"s_cmp_eq_u32 s{sW}, 1")
            with a.guard('wpf', 's_cbranch_scc0'): self.w_prefetch()
        self.srd(R_X, S_X, 2048 * 896)
        a("s_barrier")
        self.stamp('bar0')
        self.x_loads()
        self.srd(R_WS, S_WS, W_SIZE)
        self.p1_setup2()
        self.p1_setup3()
        self.nc_setup()
        self.wo_setup()
        a(f"""s_mul_i32 s65, s{sI}, {BLK}
        s_mul_i32 s70, s{sW}, 3584
        s_add_u32 s65, s65, s70
        s_add_u32 s65, s65, {W_B}
        s_lshl_b32 s70, s{sXC}, 15
        s_mul_i32 s71, s{sR}, 3584
        s_add_u32 s70, s70, s71
        s_add_u32 s70, s70, {W_KVL}
        s_cmp_lt_u32 s{sR}, 10
        s_cselect_b32 s70, s70, {OOB}
        s_cmp_eq_u32 s{sW}, 3
        s_cselect_b32 s70, {OOB}, s70
        s_cmp_lt_u32 s{sW}, 2
        s_cselect_b32 s65, s65, s70""")
        self.tagcalc()
        a(f"""s_and_b32 s{sT0}, s{sT}, 0xff
        s_bfe_u32 s{sT0+1}, s{sT}, 0x80008
        s_bfe_u32 s{sT0+2}, s{sT}, 0x80010
        s_lshr_b32 s{sT0+3}, s{sT}, 24
        v_and_b32 v{pNT}, 3, v1
        v_lshlrev_b32 v{pNT}, 3, v{pNT}
        v_lshrrev_b32 v{pNT}, v{pNT}, s{sT}
        v_and_b32 v{pNT}, 0xff, v{pNT}""")
        self.stamp('set1')
        a("s_cmp_eq_u32 s67, 1")
        a.section = 'p0c'
        with a.guard('p0c', 's_cbranch_scc0'): self.p0_compute(lc)
        self.stamp('p0')
        a(f"s_cmp_eq_u32 s{sW}, 2")
        with a.guard('xid', 's_cbranch_scc0'):
            a(f"""s_getreg_b32 s70, hwreg(HW_REG_XCC_ID, 0, 4)
            s_xor_b32 s70, s{sT}, s70
            s_lshl_b32 s71, s{sI}, 2
            s_add_u32 s71, s71, {W_XID}
            v_mov_b32 v9, s70
            s_mov_b64 exec, 1
            buffer_store_dword v9, off, {WS}, s71 sc1
            s_mov_b64 exec, -1""")
            self.pretouch()
        a(f"global_load_dword v{pC}, v{pC1}, s[{S_C}:{S_C+1}]")
        e0 = k2.att_early(self)[0]
        n0 = self.par('nw0', 6)
        for p in range(n0):
            self.w_dma()
            for ln in e0[len(e0)*p//n0:len(e0)*(p+1)//n0]: a(ln)
        self.stamp('set2')
        self.ln1_stats()
        self.stamp('ln1')
        self.d1()
        self.p1_main()

    def pretouch(self):
        a = self.a
        if 'nopre' in self.x: return
        a(f"""v_lshrrev_b32 v{pT0}, 3, v1
        v_and_b32 v{pT1}, 7, v1
        v_min_u32 v{pT0}, 2, v{pT0}
        v_lshlrev_b32 v{pT0}, 13, v{pT0}
        v_lshl_add_u32 v{pT0}, v{pT1}, 7, v{pT0}
        s_lshl_b32 s70, s{sXC}, 10
        s_add_u32 s70, s70, {W_FQ}
        buffer_load_dword v{pJ1}, v{pT0}, {WS}, s70 offen sc1""")

    def epoch_update(self):
        a = self.a
        a(f"s_cmp_eq_u32 s{sI}, 255\ns_cbranch_scc0 L_fin\ns_cmp_eq_u32 s{sW}, 0\ns_cbranch_scc0 L_fin")
        a(f"s_mov_b32 s70, {W_EPOCH}")
        self.flag('s70', None)
        a("L_fin:")

    def finish(self):
        a = self.a
        if self.probe:
            self.stamp('end')
            j = self.stamp_names.index(self.probe)
            a.force_wait("s_waitcnt lgkmcnt(0)")
            a(f"""s_cmp_eq_u32 s{sI}, 100
            s_cbranch_scc0 L_end
            s_add_u32 s70, s{S_STAMP+2*j}, 6000
            L_probe:
            s_memrealtime s[72:73]
            s_waitcnt lgkmcnt(0)
            s_sub_u32 s71, s72, s70
            s_cmp_lt_i32 s71, 0
            s_cbranch_scc1 L_probe""")
        elif self.stamps:
            self.stamp('end')
            a.force_wait("s_waitcnt lgkmcnt(0)")
            for k in range(self.nstamp): a(f"v_writelane_b32 v2, s{S_STAMP+2*k}, {k}")
            a(f"""s_lshl_b32 s70, s{sI}, 2
            s_add_u32 s70, s70, s{sW}
            s_lshl_b32 s70, s70, 6
            s_add_u32 s70, s70, {W_STAMP}
            v_lshlrev_b32 v3, 2, v1
            s_mov_b64 exec, 0xffff
            buffer_store_dword v2, v3, s[{R_WS}:{R_WS+3}], s70 offen
            s_mov_b64 exec, -1""")
        a("L_end:\ns_endpgm")
        for f in getattr(self, 'ool', []): f()

    def build(self):
        import k2
        self.start_phase()
        if self.stop != 'p1':
            k2.rest(self)
        self.epoch_update()
        self.finish()
        return self.module()

    def module(self):
        hdr = open(f"cdna_kernels/{NAME}.s.ref").read().split("; @launch")[0]
        kn = NAME + "_kernel"
        return hdr + f"""; @launch grid=(256,1,1) block=(256,1,1) lds={LDS_SIZE}
.amdgcn_target "amdgcn-amd-amdhsa--gfx950"
.text
.globl {kn}
.p2align 8
.type {kn},@function
{kn}:
{self.a.text()}.section .rodata,"a"
.p2align 6
.amdhsa_kernel {kn}
  .amdhsa_next_free_vgpr 512
  .amdhsa_next_free_sgpr 102
  .amdhsa_accum_offset 256
  .amdhsa_group_segment_fixed_size 0
  .amdhsa_kernarg_size 112
  .amdhsa_user_sgpr_count 2
  .amdhsa_user_sgpr_kernarg_segment_ptr 1
  .amdhsa_system_sgpr_workgroup_id_x 1
.end_amdhsa_kernel
"""

if __name__ == "__main__":
    import argparse
    ap = argparse.ArgumentParser()
    ap.add_argument("-o", default="out.s")
    ap.add_argument("--stamps", default=None)
    ap.add_argument("--stop", default=None)
    ap.add_argument("-x", default="")
    ap.add_argument("--probe", default=None)
    ap.add_argument("--nops", action="store_true")
    g = ap.parse_args()
    if g.probe: g.stamps = g.probe
    k = K(stamps=(['start', 'end'] + g.stamps.split(',')) if g.stamps else None, stop=g.stop, x=g.x.split(','), probe=g.probe)
    txt = k.build()
    if g.stamps: txt += "; STAMPS " + " ".join(k.stamp_names) + "\n"
    open(g.o, "w").write(txt)
    if g.nops:
        for n in k.a.nops: print(n)
    print(getattr(k, 'info', ''))
    print("instructions:", sum(1 for i in k.a.out if i.op), "nop states:", sum(n[1] for n in k.a.nops))
```

```python
import sys, struct, math
sys.path.insert(0, "gen")
from fw import Asm, Ins

NAME = "adaLN_cond__grouped_kv_mqa__glu_gated_reglu__prompt"
def f32(x): return struct.unpack('<I', struct.pack('<f', x))[0]
def vr(b, n=1, k='v'): return f"{k}{b}" if n == 1 else f"{k}[{b}:{b+n-1}]"
def ar(b, n=1): return vr(b, n, 'a')
def sr(b, n=1): return vr(b, n, 's')

W_EPOCH = 0
W_XID = 0x400
W_FWO = 0x1000
W_FNC = 0x1400
W_FQ = 0x4000
W_F3 = 0x6000
W_F4 = 0x8000
W_FK = 0x10000
W_MODC = 0x18000
W_MODN = 0x20000
W_NCP = 0x24000
W_KV = 0x40000
W_KVL = 0x80000
W_B = 0x100000
BLK = 14336
W_WO = 0x480000
W_H = 0x500000
W_STAMP = 0xC00000
W_SIZE = 0x2000000
OOB = 0x7000_0000
L_HT = 114688
L_P0 = L_HT
L_SILU = L_HT + 7168
L_MODL = 143872
L_MODN = 147456
L_NC = 147456
L_NS = 155648
L_WOST = 156160
L_OS = 98304
L_ST = 114688
L_OT = 154624
L_MISC = 162816
LDS_SIZE = 163840
S_X, S_WQ, S_WK, S_WV, S_WO, S_WG, S_WU, S_WD, S_C, S_WM, S_OUT, S_DBG, S_WS = 4, 6, 8, 10, 12, 16, 18, 20, 22, 24, 26, 28, 30
R_WS, R_X, R_A, R_B, R_C = 32, 36, 40, 44, 48
sI, sW, sT, sXC, sR = 52, 53, 54, 55, 56
sT0 = 57
sMASK = 61
sCNT = 62
sFB = 63
sLOC, sE = 2, 3
s0 = 64
S_STAMP = 82
POLL_LIMIT = 20000
WS, RX, RA, RB, RC = (f"s[{r}:{r+3}]" for r in (R_WS, R_X, R_A, R_B, R_C))
(pWV, pXV, pTR, pHW, pHR, pQS, pML, pD1, pXI, pGW, pGA, pNV, pNS, pNA, pNB, pNW, pNT, pC, pC1, pC2, pC3, pC4, pWO, pWT,
 p0V, p0C, p0D, pNO, pT0, pT1, pJ0, pJ1) = range(176, 208)
pW1 = 208
vT, vF = 241, 8

class K:
    def __init__(self, stamps=False, stop=None, x=(), probe=None):
        self.x = set(x); self.probe = probe
        self.a = Asm()
        self.stamps = stamps
        self.nstamp = 0
        self.stop = stop
        self.stamp_names = []

    def par(self, name, default):
        for x in self.x:
            if x.startswith(name + '='): return int(x.split('=')[1])
        return default

    def stamp(self, name):
        if not self.stamps or name not in self.stamps: return
        assert self.nstamp < 10
        r = S_STAMP + 2 * self.nstamp
        self.a(f"{'s_memtime' if 'cyc' in self.x else 's_memrealtime'} {sr(r,2)}")
        self.nstamp += 1
        self.stamp_names.append(name)

    def srd(self, r, ptr, size):
        self.a(f"""s_mov_b32 s{r}, s{ptr}
        s_mov_b32 s{r+1}, s{ptr+1}
        s_mov_b32 s{r+2}, {size}
        s_mov_b32 s{r+3}, 0x20000""")

    def barrier(self):
        self.a.wait_lg()
        self.a("s_barrier")

    def prologue(self):
        a = self.a
        a.section = 'prologue'
        a(f"""s_cmp_ge_u32 s2, 256
        s_cbranch_scc1 L_end
        s_load_dwordx4 s[28:31], s[0:1], 96
        s_load_dwordx8 s[20:27], s[0:1], 64
        s_load_dwordx16 s[4:19], s[0:1], 0""")
        self.stamp('start')
        a(f"""v_lshrrev_b32 v2, 6, v0
        v_and_b32 v1, 63, v0
        s_and_b32 s{sXC}, s2, 7
        v_readfirstlane_b32 s{sW}, v2
        s_lshr_b32 s{sR}, s2, 3
        s_lshl_b32 s{sI}, s{sXC}, 5
        s_add_u32 s{sI}, s{sI}, s{sR}
        s_mov_b32 s{sMASK}, 0xffff0000
        s_mov_b32 s{sFB}, 0""")

    def p0_setup(self):
        a = self.a
        a(f"""v_lshrrev_b32 v3, 2, v1
        v_and_b32 v4, 3, v1
        v_mul_u32_u24 v3, 5376, v3
        v_lshl_add_u32 v{p0V}, v4, 4, v3
        v_min_u32 v4, 55, v1
        s_and_b32 s66, s{sI}, {255 if 'notwin' in self.x else 127}
        s_and_b32 s68, s{sI}, 3
        s_lshr_b32 s69, s66, 2
        s_mul_i32 s70, s68, 224
        v_lshl_add_u32 v{p0C}, v4, 2, s70
        v_lshlrev_b32 v{pT0}, 7, v1
        s_mul_i32 s64, s68, {112*5376}
        s_lshl_b32 s70, s69, 6
        s_add_u32 s64, s64, s70
        s_lshl_b32 s71, s{sW}, 3
        s_lshr_b32 s70, 0xe000c470, s71
        s_and_b32 s70, s70, 0xff
        s_lshr_b32 s67, 0x03000201, s71
        s_and_b32 s67, s67, 15
        s_cmp_eq_u32 s{sW}, 0
        s_cselect_b32 s71, s66, s{sI}
        s_cmp_ge_u32 s71, s70
        s_cselect_b32 s67, 0, s67
        s_mov_b32 m0, {L_P0}""")

    def p0_loads(self):
        a = self.a
        a(f"global_load_dword v{p0D}, v{p0C}, s[{S_C}:{S_C+1}]")
        for p in range(7):
            if p == 4: a(f"s_mov_b32 m0, {L_P0+4096}")
            last = a(f"buffer_load_dwordx4 v{p0V}, {RA}, s64 offen offset:{1024*(p&3)} lds")
            if p < 6: a(f"s_add_u32 s64, s64, {16*5376-1024+(4096 if p == 3 else 0)}")
        return last

    def w_prefetch(self):
        self.a(f"""s_cmp_lt_u32 s{sI}, 238
        s_cselect_b32 s{R_C}, s{S_WK}, s{S_WV}
        s_cselect_b32 s{R_C+1}, s{S_WK+1}, s{S_WV+1}
        s_movk_i32 s70, 238
        s_cselect_b32 s70, 224, s70
        s_cmp_lt_u32 s{sI}, 224
        s_cselect_b32 s{R_C}, s{S_WQ}, s{R_C}
        s_cselect_b32 s{R_C+1}, s{S_WQ+1}, s{R_C+1}
        s_cselect_b32 s70, 0, s70
        s_mov_b32 s71, 401408
        s_cselect_b32 s{R_C+2}, s71, 25088
        s_mov_b32 s{R_C+3}, 0x20000
        s_sub_u32 s70, s{sI}, s70
        s_mul_i32 s70, s70, 1792
        s_mov_b64 exec, 0x3fff
        buffer_load_dword v{pJ0}, v{pT0}, {RC}, s70 offen
        s_mov_b64 exec, -1""")

    def tagcalc(self):
        self.a(f"""s_and_b32 s70, s{sE}, 0x7f7f7f7f
        s_and_b32 s71, s{sE}, 0x80808080
        s_add_u32 s70, s70, 0x01010101
        s_xor_b32 s{sT}, s70, s71""")

    def silu(self, regs, tmp):
        a = self.a
        for k, r in enumerate(regs): a(f"v_mul_f32 v{tmp+k}, {f32(-math.log2(math.e)):#x}, v{r}")
        for k, r in enumerate(regs): a(f"v_exp_f32 v{tmp+k}, v{tmp+k}")
        for k, r in enumerate(regs): a(f"v_add_f32 v{tmp+k}, 1.0, v{tmp+k}")
        for k, r in enumerate(regs): a(f"v_rcp_f32 v{tmp+k}, v{tmp+k}")
        for k, r in enumerate(regs): a(f"v_mul_f32 v{r}, v{r}, v{tmp+k}")

    def p0_compute(self, last):
        a = self.a
        A0, B0, D = 48, 64, 96
        a(f"""v_lshrrev_b32 v161, 2, v1
        v_and_b32 v162, 3, v1
        v_lshlrev_b32 v161, 6, v161
        v_lshl_add_u32 v161, v162, 3, v161
        v_lshrrev_b32 v160, 4, v1
        v_lshlrev_b32 v160, 3, v160
        v_lshlrev_b32 v162, 2, v1
        v_add_u32 v161, {L_P0}, v161
        v_add_u32 v160, {L_SILU}, v160
        v_add_u32 v163, {L_SILU}, v162
        s_lshl_b32 s66, s66, 7
        s_add_u32 s66, s66, {W_MODC}
        s_mov_b32 s71, 0xffffff00
        v_cmp_gt_u32 vcc, 16, v1
        v_lshlrev_b32 v164, 16, v{p0D}
        v_and_b32 v165, s{sMASK}, v{p0D}""")
        self.silu([164, 165], 166)
        a("v_cvt_pk_bf16_f32 v164, v164, v165\nds_write_b32 v163, v164")
        for s in range(7): a(f"ds_read_b64 {vr(A0+2*s,2)}, v160 offset:{32*s}")
        a.wait_vm(last)
        for s in range(7):
            for h in range(2): a(f"ds_read_b64_tr_b16 {vr(B0+4*s+2*h,2)}, v161 offset:{1024*s+32*h}")
        for s in range(7):
            for h in range(2):
                a(f"v_mfma_f32_16x16x16_bf16 {vr(D+4*h,4)}, {vr(A0+2*s,2)}, {vr(B0+4*s+2*h,2)}, {'0' if s==0 else vr(D+4*h,4)}")
        a(f"""s_mov_b32 exec_hi, 0
        v_cndmask_b32 v164, v{D+4}, v{D}, vcc
        v_add_u32 v164, 0x80, v164
        v_and_or_b32 v164, v164, s71, v{pNT}
        buffer_store_dword v164, v162, {WS}, s66 offen sc1
        s_mov_b32 exec_hi, -1""")

    def nc_setup(self):
        self.a(f"""s_mul_i32 s70, s{sI}, 9363
        s_lshr_b32 s70, s70, 16
        s_mul_i32 s71, s70, 7
        s_sub_u32 s71, s{sI}, s71
        s_lshl_b32 s72, s71, 7
        v_and_b32 v{pT0}, 31, v1
        v_lshl_add_u32 v{pC1}, v{pT0}, 2, s72
        s_mul_i32 s71, s71, {64*5376}
        s_lshl_b32 s70, s70, 7
        s_add_u32 s70, s70, s71
        s_lshl_b32 s71, s{sW}, 5
        s_add_u32 s70, s70, s71
        s_add_u32 s70, s70, 1792
        s_lshl_b32 s71, s{sI}, 2
        s_add_u32 s71, s71, s{sW}
        s_lshl_b32 s71, s71, 6
        s_add_u32 s71, s71, {W_NCP}
        s_cmp_lt_u32 s{sI}, 196
        s_cselect_b32 s70, s70, {OOB}
        s_cselect_b32 s71, s71, {OOB}
        v_lshrrev_b32 v{pNV}, 1, v1
        v_mul_u32_u24 v{pNV}, {5376-32}, v{pNV}
        v_add3_u32 v{pNV}, v{pNV}, s70, v13
        v_lshl_add_u32 v{pNS}, v1, 2, s71
        v_mov_b32 v{pNO}, {OOB}
        v_cmp_gt_u32 vcc, 16, v1
        s_lshl_b32 s70, s{sW}, 7
        s_add_u32 s70, s70, {L_NS}
        v_cndmask_b32 v{pNS}, v{pNO}, v{pNS}, vcc
        v_lshl_add_u32 v{pNW}, v{pT0}, 2, s70
        v_lshrrev_b32 v{pT0}, 4, v1
        v_lshl_add_u32 v{pNA}, v{pT0}, 4, s70
        s_lshl_b32 s70, s{sW}, 11
        s_add_u32 s70, s70, {L_NC}
        v_lshl_add_u32 v{pNB}, v{pT0}, 8, s70
        v_and_b32 v{pT0}, 15, v1
        v_lshl_add_u32 v{pNB}, v{pT0}, 3, v{pNB}""")
    def nc_silu(self):
        a = self.a
        a(f"v_lshlrev_b32 v{pC1}, 16, v{pC}\nv_and_b32 v{pC2}, s{sMASK}, v{pC}")
        self.silu([pC1, pC2], pC3)
        a(f"v_cvt_pk_bf16_f32 v{pC1}, v{pC1}, v{pC2}\nds_write_b32 v{pNW}, v{pC1}")
    def nc_loads(self):
        self.a(f"""s_lshl_b32 s70, s{sW}, 11
        s_add_u32 m0, s70, {L_NC}
        s_mov_b32 s70, {32*5376-1024}
        buffer_load_dwordx4 v{pNV}, {RA}, 0 offen lds
        buffer_load_dwordx4 v{pNV}, {RA}, s70 offen offset:1024 lds""")
    def nc_compute(self):
        a = self.a
        A0, B0, D = 128, 136, 112
        for s in range(2):
            a(f"""ds_read_b128 {vr(A0+4*s,4)}, v{pNA} offset:{64*s}
            ds_read_b64_tr_b16 {vr(B0+4*s,2)}, v{pNB} offset:{1024*s}
            ds_read_b64_tr_b16 {vr(B0+4*s+2,2)}, v{pNB} offset:{1024*s+128}""")
        a("s_cmp_eq_u32 s67, 2")
        with a.guard('wo', 's_cbranch_scc0'):
            for e in range(2):
                for u in range(2): a(f"ds_read_b64_tr_b16 {vr(96+4*e+2*u,2)}, v{pWT} offset:{256*u+32*e}")
        for s in range(2):
            a(f"v_mfma_f32_16x16x32_bf16 {vr(D,4)}, {vr(A0+4*s,4)}, {vr(B0+4*s,4)}, {'0' if s==0 else vr(D,4)}")
    def nc_finish(self):
        self.a(f"""v_add_u32 v{pNO}, 0x80, v112
        v_bfi_b32 v{pNO}, v251, v{pNT}, v{pNO}""")

    def wo_setup(self):
        self.srd(R_C, S_WO, 401408)
        self.a(f"""s_mul_i32 s70, s{sI}, 9363
        s_lshr_b32 s70, s70, 17
        s_mul_i32 s71, s70, 14
        s_sub_u32 s71, s{sI}, s71
        s_mul_i32 s72, s71, {32*896}
        s_lshl_b32 s73, s70, 6
        s_add_u32 s72, s72, s73
        s_mul_i32 s70, s70, 28
        s_add_u32 s70, s70, s71
        s_lshl_b32 s70, s70, 10
        s_add_u32 s70, s70, {W_WO}
        v_add_u32 v228, s70, v13
        v_lshrrev_b32 v{pWO}, 2, v1
        v_mul_u32_u24 v{pWO}, 832, v{pWO}
        v_add3_u32 v{pWO}, v{pWO}, s72, v13
        v_lshrrev_b32 v{pWT}, 4, v1
        v_bfe_u32 v{pT0}, v1, 2, 2
        v_lshl_add_u32 v{pWT}, v{pWT}, 3, v{pT0}
        v_and_b32 v{pT0}, 3, v1
        v_lshlrev_b32 v{pWT}, 6, v{pWT}
        v_lshl_add_u32 v{pWT}, v{pT0}, 3, v{pWT}
        v_add_u32 v{pWT}, {L_WOST}, v{pWT}""")
    def wo_loads(self):
        self.a(f"""s_mov_b32 m0, {L_WOST}
        s_movk_i32 s70, {16*896-1024}
        buffer_load_dwordx4 v{pWO}, {RC}, 0 offen lds
        buffer_load_dwordx4 v{pWO}, {RC}, s70 offen offset:1024 lds""")

    XR, XH, ACC1 = 16, 48, 112
    def p1_setup(self):
        a = self.a
        a(f"""s_lshr_b32 s77, s{sI}, 2
        s_and_b32 s81, s77, 7
        s_lshl_b32 s77, s77, 2
        s_add_u32 s77, s77, s{sW}
        s_mul_i32 s77, s77, {8*896}
        v_lshlrev_b32 v13, 4, v1
        v_mov_b32 v2, {OOB}
        v_cmp_gt_u32 vcc, 56, v1
        v_add_u32 v{pXV}, s77, v13
        s_movk_i32 s72, 3584
        v_cndmask_b32 v{pXV}, v2, v{pXV}, vcc""")
    def p1_setup2(self):
        a = self.a
        a(f"""s_and_b32 s76, s{sI}, 3
        s_lshl_b32 s76, s76, 2
        s_add_u32 s76, s76, s{sW}
        s_cmp_eq_u32 s76, 15
        s_cselect_b32 s{R_B}, s{S_WV}, s{S_WK}
        s_cselect_b32 s{R_B+1}, s{S_WV+1}, s{S_WK+1}
        s_lshr_b32 s78, s76, 1
        s_lshl_b32 s78, s78, 7
        s_and_b32 s73, s{sW}, 1
        s_mul_i32 s71, s73, {8*896}
        s_add_u32 s78, s78, s71
        s_cmp_lt_u32 s76, 14
        s_cselect_b32 s{R_B}, s{S_WQ}, s{R_B}
        s_cselect_b32 s{R_B+1}, s{S_WQ+1}, s{R_B+1}
        s_mov_b32 s70, {401408+384}
        s_cselect_b32 s{R_B+2}, s70, {25088+384}
        s_mov_b32 s{R_B+3}, 0x20000
        s_cselect_b32 s78, s78, 0
        s_cselect_b32 s70, 896, 56
        s_cselect_b64 vcc, -1, 0
        s_sub_u32 s{R_B}, s{R_B}, 384
        s_subb_u32 s{R_B+1}, s{R_B+1}, 0
        s_lshl_b32 s80, s70, 6
        s_mul_i32 s81, s81, {0 if 'norot' in self.x else 7}
        s_lshr_b32 s81, s81, 3
        s_mul_i32 s79, s81, s80
        s_add_u32 s79, s79, s78
        s_mul_i32 s77, s80, 7
        s_add_u32 s77, s77, s78
        v_lshrrev_b32 v{pWV}, 3, v1
        v_lshrrev_b32 v{pT0}, 2, v1
        v_and_b32 v{pT1}, 4, v{pT0}
        v_xor_b32 v{pT1}, v{pT1}, v1
        v_and_b32 v{pT1}, 7, v{pT1}
        v_mul_u32_u24 v{pWV}, 896, v{pWV}
        v_lshl_add_u32 v{pWV}, v{pT1}, 4, v{pWV}
        v_and_b32 v{pT0}, 3, v{pT0}
        v_bfe_u32 v{pT1}, v1, 4, 1
        v_lshl_add_u32 v{pTR}, v{pT1}, 3, v{pT0}
        v_lshrrev_b32 v{pHW}, 5, v1
        v_lshl_add_u32 v{pTR}, v{pHW}, 2, v{pTR}
        v_mul_u32_u24 v{pTR}, 56, v{pTR}
        v_and_b32 v{pHR}, 3, v1
        v_lshl_add_u32 v{pTR}, v{pHR}, 4, v{pTR}
        v_cndmask_b32 v{pWV}, v{pTR}, v{pWV}, vcc
        s_lshl_b32 s70, s70, 4
        s_sub_u32 s70, s70, 1024
        v_add_u32 v{pWV}, 384, v{pWV}
        v_add_u32 v{pW1}, s70, v{pWV}
        v_add_u32 v{pW1+1}, s70, v{pW1}
        v_add_u32 v{pW1+2}, s70, v{pW1+1}
        v_mul_u32_u24 v{pTR}, 224, v{pHW}
        v_add_u32 v{pTR}, v{pTR}, v{pT0}
        v_lshrrev_b32 v{pHR}, 1, v{pT0}
        v_xor_b32 v{pHR}, s73, v{pHR}
        v_lshl_add_u32 v{pTR}, v{pTR}, 1, v{pHR}
        v_lshl_add_u32 v{pHW}, v{pHW}, 2, v{pT0}
        s_mul_i32 s73, s73, 448
        v_add_u32 v{pHW}, s73, v{pHW}
        v_cndmask_b32 v{pTR}, v{pHW}, v{pTR}, vcc
        v_lshl_add_u32 v{pTR}, v{pTR}, 1, v{pT1}
        v_and_b32 v{pT0}, 1, v1
        v_lshl_add_u32 v{pTR}, v{pTR}, 1, v{pT0}
        v_bfe_u32 v{pT0}, v1, 1, 1
        v_lshl_add_u32 v{pTR}, v{pTR}, 1, v{pT0}
        s_lshr_b32 s70, s{sW}, 1
        s_mul_i32 s70, s70, 57344
        v_lshl_add_u32 v{pTR}, v{pTR}, 3, s70
        s_mul_i32 m0, s{sW}, 28672""")
    def p1_setup3(self):
        a = self.a
        a(f"""s_lshl_b32 s70, s81, 3
        v_subrev_u32 v{pHW}, s70, v1
        v_add_u32 v{pT0}, 56, v{pHW}
        v_min_u32 v{pHW}, v{pHW}, v{pT0}
        v_cmp_gt_u32 vcc, 56, v1
        s_mul_i32 s71, s{sW}, {8*912}
        s_add_u32 s71, s71, {L_HT}
        v_cndmask_b32 v{pHW}, 56, v{pHW}, vcc
        v_lshl_add_u32 v{pHW}, v{pHW}, 4, s71
        v_and_b32 v{pT0}, 31, v1
        v_lshrrev_b32 v{pT1}, 5, v1
        v_mul_u32_u24 v{pHR}, 912, v{pT0}
        v_bfe_u32 v{pQS}, v1, 4, 1
        v_mul_u32_u24 v{pQS}, {2*BLK}, v{pQS}
        v_lshl_add_u32 v{pHR}, v{pT1}, 4, v{pHR}
        v_lshl_add_u32 v{pQS}, v{pT1}, 8, v{pQS}
        v_and_b32 v{pT1}, 15, v1
        v_lshl_add_u32 v{pQS}, v{pT1}, 3, v{pQS}
        v_add_u32 v{pHR}, {L_HT}, v{pHR}
        s_lshl_b32 s70, s{sXC}, 7
        s_add_u32 s70, s70, {W_XID}
        v_lshl_add_u32 v{pXI}, v{pT0}, 2, s70
        v_lshlrev_b32 v{pML}, 5, v1
        v_add_u32 v{pML}, {L_MODL}, v{pML}
        v_min_u32 v{pGA}, 223, v0
        v_lshrrev_b32 v{pD1}, 3, v{pGA}
        v_and_b32 v{pT0}, 7, v{pGA}
        v_lshlrev_b32 v{pD1}, 9, v{pD1}
        v_lshl_add_u32 v{pD1}, v{pT0}, 4, v{pD1}
        v_cmp_le_u32 vcc, 112, v{pGA}
        v_add_u32 v{pD1}, {W_MODC}, v{pD1}
        v_lshlrev_b32 v{pGW}, 4, v{pGA}
        v_add_u32 v{pGW}, {L_MODL}, v{pGW}
        v_cndmask_b32 v{pGA}, 0, 1.0, vcc""")

    def x_loads(self):
        a = self.a
        for t in range(8):
            a(f"buffer_load_dwordx4 {vr(self.XR+4*t,4)}, v{pXV}, {RX}, {0 if t<4 else 's72'} offen offset:{(t&3)*896}{'' if 'xdef' in self.x else ' nt'}")

    def w_dma(self):
        a = self.a
        p = len(self.wids)
        if p == self.nw1 and not self.d1_issued:
            self.d1_issued = True
            self.stamp('d1poll')
            self.d1_loads(); return
        if p >= 28: return
        self.wids.append(a(f"buffer_load_dwordx4 v{pW1+(p&3)-1 if p&3 else pWV}, {RB}, s79 offen offset:{1024*(p&3)} lds"))
        if p < 27 and p & 3 == 3: a(f"s_add_u32 m0, m0, 4096\ns_add_u32 s79, s79, s80\ns_cmp_eq_u32 s79, s77\ns_cselect_b32 s79, s78, s79")

    def reduce8(self, r):
        a = self.a
        for k in range(0, 8, 2): a(f"v_permlane32_swap_b32 v{r+k}, v{r+k+1}")
        for k in range(0, 8, 2): a(f"v_add_f32 v{r+k}, v{r+k}, v{r+k+1}")
        for k in (0, 4): a(f"v_permlane16_swap_b32 v{r+k}, v{r+k+2}")
        for k in (0, 4): a(f"v_add_f32 v{r+k}, v{r+k}, v{r+k+2}")
        for sh in (8, 4, 2, 1):
            for k in (0, 4): a(f"v_add_f32_dpp v{r+k}, v{r+k}, v{r+k} row_ror:{sh} row_mask:0xf bank_mask:0xf")
    def bcast8(self, r, s):
        a = self.a
        for k, base in ((0, 0), (4, 4)):
            for row, t in enumerate((0, 2, 1, 3)):
                a(f"v_readlane_b32 s{s+base+t}, v{r+k}, {16*row}")
    def spair(self, s):
        return sr(s & ~1, 2), s & 1

    def ln1_stats(self):
        a = self.a
        a.section = 'ln1'
        XR, XH = self.XR, self.XH
        T = 112
        SS = 68
        for t in range(8):
            for j in range(4):
                a(f"v_lshlrev_b32 v{XH+8*t+2*j}, 16, v{XR+4*t+j}\nv_and_b32 v{XH+8*t+2*j+1}, s{sMASK}, v{XR+4*t+j}")
            x = XH + 8 * t
            a(f"""v_pk_add_f32 v[120:121], {vr(x,2)}, {vr(x+2,2)}
            v_pk_add_f32 v[122:123], {vr(x+4,2)}, {vr(x+6,2)}
            v_pk_add_f32 v[120:121], v[120:121], v[122:123]
            v_add_f32 v{T+t}, v120, v121""")
            if t in (0, 7): self.stamp(f'x{t}')
            self.w_dma()
        self.reduce8(T)
        self.w_dma()
        a(f"v_mul_f32 v{T}, {f32(-1/448):#x}, v{T}\nv_mul_f32 v{T+4}, {f32(-1/448):#x}, v{T+4}")
        self.bcast8(T, SS)
        a("s_mov_b32 exec_hi, 0xffffff")
        for t in range(8):
            p, o = self.spair(SS + t)
            for j in range(4):
                x = XH + 8 * t + 2 * j
                a(f"v_pk_add_f32 {vr(x,2)}, {vr(x,2)}, {p} op_sel:[0,{o}] op_sel_hi:[1,{o}]")
        a("s_mov_b32 exec_hi, -1")
        self.stamp('sub')
        for t in range(8):
            x = XH + 8 * t
            self.w_dma()
            a(f"""v_pk_mul_f32 v[120:121], {vr(x,2)}, {vr(x,2)}
            v_pk_fma_f32 v[120:121], {vr(x+2,2)}, {vr(x+2,2)}, v[120:121]
            v_pk_fma_f32 v[120:121], {vr(x+4,2)}, {vr(x+4,2)}, v[120:121]
            v_pk_fma_f32 v[120:121], {vr(x+6,2)}, {vr(x+6,2)}, v[120:121]
            v_add_f32 v{T+t}, v120, v121""")
        self.w_dma()
        self.reduce8(T)
        self.w_dma()
        a(f"""v_mov_b32 v120, {f32(1e-5):#x}
        v_fmac_f32 v120, {f32(1/448):#x}, v{T}
        v_mov_b32 v121, {f32(1e-5):#x}
        v_fmac_f32 v121, {f32(1/448):#x}, v{T+4}
        v_rsq_f32 v{T}, v120
        v_rsq_f32 v{T+4}, v121""")
        self.bcast8(T, SS)
        for t in range(8):
            p, o = self.spair(SS + t)
            for j in range(4):
                x = XH + 8 * t + 2 * j
                a(f"v_pk_mul_f32 {vr(x,2)}, {vr(x,2)}, {p} op_sel:[0,{o}] op_sel_hi:[1,{o}]")
            self.w_dma()
        while len(self.wids) < 28 or not self.d1_issued: self.w_dma()

    def tr_lane(self, dst, rowpitch, halfrows, g1, tmp):
        a = self.a
        a(f"""v_lshrrev_b32 v{dst}, 5, v1
        v_mul_u32_u24 v{dst}, {halfrows}, v{dst}
        v_bfe_u32 v{tmp}, v1, 2, 2
        v_add_u32 v{dst}, v{dst}, v{tmp}
        v_mul_u32_u24 v{dst}, {rowpitch}, v{dst}
        v_bfe_u32 v{tmp}, v1, 4, 1
        v_mul_u32_u24 v{tmp}, {g1}, v{tmp}
        v_add_u32 v{dst}, v{dst}, v{tmp}
        v_and_b32 v{tmp}, 1, v1
        v_lshl_add_u32 v{dst}, v{tmp}, 4, v{dst}
        v_bfe_u32 v{tmp}, v1, 1, 1
        v_lshl_add_u32 v{dst}, v{tmp}, 3, v{dst}""")

    def wread(self, n):
        return [f"ds_read_b64_tr_b16 {ar(4*n+2*u,2)}, v{pTR} offset:{1024*n+512*u}" for u in range(2)]

    def gran_check(self, regs, tmp):
        a = self.a
        for k, r in enumerate(regs): a(f"v_xor_b32 v{r}, s{sT0+(k&3)}, v{r}")
        a(f"v_or_b32 v{tmp}, v{regs[0]}, v{regs[1]}")
        for k in range(2, len(regs), 2): a(f"v_or3_b32 v{tmp}, v{tmp}, v{regs[k]}, v{regs[k+1]}")
        a(f"v_and_b32 v{tmp}, 0xff, v{tmp}\nv_cmp_ne_u32 vcc, 0, v{tmp}")

    def gran_reduce(self, g, addc, addr):
        a = self.a
        a(f"""v_pk_add_f32 {vr(g,2)}, {vr(g,2)}, {vr(g+4,2)}
        v_pk_add_f32 {vr(g+2,2)}, {vr(g+2,2)}, {vr(g+6,2)}
        v_pk_add_f32 {vr(g+8,2)}, {vr(g+8,2)}, {vr(g+12,2)}
        v_pk_add_f32 {vr(g+10,2)}, {vr(g+10,2)}, {vr(g+14,2)}
        v_pk_add_f32 {vr(g,2)}, {vr(g,2)}, {vr(g+8,2)}
        v_pk_add_f32 {vr(g+2,2)}, {vr(g+2,2)}, {vr(g+10,2)}
        v_cvt_pk_bf16_f32 v{g+4}, v{g}, v{g+1}
        v_cvt_pk_bf16_f32 v{g+5}, v{g+2}, v{g+3}
        v_lshlrev_b32 v{g}, 16, v{g+4}
        v_and_b32 v{g+1}, s{sMASK}, v{g+4}
        v_lshlrev_b32 v{g+2}, 16, v{g+5}
        v_and_b32 v{g+3}, s{sMASK}, v{g+5}
        v_add_f32 v{g}, v{g}, v{addc}
        v_add_f32 v{g+1}, v{g+1}, v{addc}
        v_add_f32 v{g+2}, v{g+2}, v{addc}
        v_add_f32 v{g+3}, v{g+3}, v{addc}
        v_cvt_pk_bf16_f32 v{g+4}, v{g}, v{g+1}
        v_cvt_pk_bf16_f32 v{g+5}, v{g+2}, v{g+3}
        v_lshlrev_b32 v{g}, 16, v{g+4}
        v_and_b32 v{g+1}, s{sMASK}, v{g+4}
        v_lshlrev_b32 v{g+2}, 16, v{g+5}
        v_and_b32 v{g+3}, s{sMASK}, v{g+5}
        ds_write_b128 v{addr}, {vr(g,4)}""")

    def poll(self, name, loads, check, first_issued=False, between=None):
        a = self.a
        L = a.label(name)
        a(f"s_mov_b32 s{sCNT}, {POLL_LIMIT}")
        if not first_issued: loads()
        st = None
        if between:
            a.wait_vm()
            between()
            check()
            a(f"s_cbranch_vccz {L}_ok")
            st = a.state()
            loads()
        a(f"{L}:")
        a.wait_vm()
        check()
        a(f"""s_cbranch_vccz {L}_ok
        s_sub_u32 s{sCNT}, s{sCNT}, 1
        s_cbranch_scc1 {L}_ok""")
        if st is None: st = a.state()
        loads()
        a(f"s_branch {L}\n{L}_ok:")
        a.set_state(st)

    def st(self, lines):
        a = self.a
        L = a.label('st')
        for ln in lines:
            i = Ins(ln); a.need(i.rd + i.wr)
        a(f"s_cmp_eq_u32 s{sLOC}, 0\ns_cbranch_scc1 {L}_g")
        for ln in lines: oid = a(ln)
        a(f"{L}_j:")
        def far():
            a.set_state(([], []))
            a(f"{L}_g:\ns_nop 4")
            for ln in lines: a(ln + " sc1")
            a(f"s_branch {L}_j")
        self.ool.append(far)
        return oid

    G1 = 128
    def d1_loads(self):
        a = self.a
        for rg in range(4): a(f"buffer_load_dwordx4 {vr(self.G1+4*rg,4)}, v{pD1}, {WS}, 0 offen offset:{128*rg} sc1")
        self.d1_id = a(f"buffer_load_dword v144, v{pXI}, {WS}, 0 offen sc1")
    def d1(self):
        a = self.a
        a.section = 'd1'
        G = self.G1
        def check():
            a(f"v_xor_b32 v144, s{sT}, v144\nv_cmp_lt_u32 s[70:71], 15, v144")
            self.gran_check(list(range(G, G + 16)), 145)
            a("s_or_b64 vcc, vcc, s[70:71]")
        self.nc_silu()
        self.stamp('wread')
        a.wait_vm(self.d1_id)
        check()
        self.stamp('d1chk')
        a("s_cbranch_vccnz L_d1_w\nL_d1_ok:")
        def far():
            a.set_state(([], []))
            a("L_d1_w:")
            self.poll('d1', self.d1_loads, check)
            a("s_branch L_d1_ok")
        self.ool.append(far)
        self.gran_reduce(G, pGA, pGW)
        a(f"""s_getreg_b32 s70, hwreg(HW_REG_XCC_ID, 0, 4)
        v_cmp_ne_u32 vcc, s70, v144""")
        a(f"""s_cmp_eq_u64 vcc, 0
        s_cselect_b32 s{sLOC}, {0 if 'global' in self.x else 1}, 0""")
        a.wait_vm(self.wids[self.nwb - 1])
        self.barrier()
        self.stamp('d1done')

    def late_loads(self, n):
        a = self.a
        if n == 0: self.nc_loads()
        if n == 1:
            a("s_cmp_eq_u32 s67, 2")
            with a.guard('wo', 's_cbranch_scc0'): self.wo_loads()

    def p1_main(self):
        a = self.a
        a.section = 'p1'
        XH = self.XH
        SH, SC = 24, 32
        a(f"""ds_read_b128 {vr(SC,4)}, v{pML} offset:1792
        ds_read_b128 {vr(SH,4)}, v{pML}
        ds_read_b128 {vr(SC+4,4)}, v{pML} offset:1808
        ds_read_b128 {vr(SH+4,4)}, v{pML} offset:16""")
        wr = [ln for n in range(self.nwb) for ln in self.wread(n)]
        for ln in wr[:8]: a(ln)
        wr = wr[8:]
        if 'not1' not in self.x: a(f"buffer_load_dword v{pJ0}, v7, {WS}, s65 offen sc1")
        for t in range(8):
            x = XH + 8 * t
            w = wr[len(wr)*t//8:len(wr)*(t+1)//8]
            va = [f"v_pk_fma_f32 {vr(x+2*j,2)}, {vr(x+2*j,2)}, {vr(SC+2*j,2)}, {vr(SH+2*j,2)}" for j in range(4)]
            va += [f"v_cvt_pk_bf16_f32 v{x+j}, v{x+2*j}, v{x+2*j+1}" for j in range(4)]
            for j, ln in enumerate(va):
                a(ln)
                if j < len(w): a(w[j])
            a(f"ds_write_b128 v{pHW}, {vr(x,4)} offset:{912*t}")
        a.wait_vm(self.wids[27])
        fill = f"""s_lshr_b32 s72, s{sI}, 2
        s_mul_i32 s70, s72, {4*BLK}
        s_lshl_b32 s73, s76, 10
        s_add_u32 s70, s70, s73
        s_add_u32 s70, s70, {W_B-7168}
        s_cmp_lt_u32 s76, 7
        s_cselect_b32 s73, {BLK+7168}, 0
        s_add_u32 s70, s70, s73
        s_lshl_b32 s71, s72, 12
        s_and_b32 s73, s76, 1
        s_lshl_b32 s73, s73, 11
        s_add_u32 s71, s71, s73
        s_add_u32 s74, s71, {W_KVL}
        s_add_u32 s71, s71, {W_KV}
        s_lshl_b32 s75, s72, 7
        s_lshl_b32 s73, s76, 2
        s_add_u32 s75, s75, s73
        s_add_u32 s75, s75, {W_FQ}""".split('\n')
        import k2
        fill += k2.att_srd(self) + k2.att_late(self)
        self.barrier()
        self.stamp('hbar')
        HF, NH, D = 128, 12, self.ACC1
        L = a.label('p1')
        def mm(swap):
            hf = lambda ks: vr(HF + 4 * (ks % NH), 4)
            for ks in range(8): a(f"ds_read_b128 {hf(ks)}, v{pHR} offset:{32*ks}")
            n = self.nwb
            for ks in range(28):
                A, B = ar(4 * ks, 4), hf(ks)
                if swap: A, B = B, A
                a(f"v_mfma_f32_32x32x16_bf16 {vr(D,16)}, {A}, {B}, {'0' if ks==0 else vr(D,16)}")
                if ks + 8 < 28: a(f"ds_read_b128 {hf(ks+8)}, v{pHR} offset:{32*(ks+8)}")
                while n < 28 and n <= ks + 8:
                    for ln in self.wread(n): a(ln)
                    n += 1
                if ks < 2: self.late_loads(ks)
                else:
                    for ln in fill[len(fill)*(ks-2)//26:len(fill)*(ks-1)//26]: a(ln)
        def cvt():
            for j in range(8): a(f"v_cvt_pk_bf16_f32 v{24+j}, v{D+2*j}, v{D+2*j+1}")
        a(f"s_cmp_eq_u32 s76, 15\ns_cbranch_scc1 {L}_v")
        st = a.state()
        mm(False)
        a(f"s_cmp_eq_u32 s76, 14\ns_cbranch_scc1 {L}_k")
        st2 = a.state()
        cvt()
        self.st([f"buffer_store_dwordx2 {vr(24+2*e,2)}, v{pQS}, {WS}, s70 offen offset:{(0,128,512,640)[e]}" for e in range(4)])
        a(f"s_branch {L}_j")
        a(f"{L}_k:"); a.set_state(st2)
        a(f"s_mov_b32 s72, {f32(28**-0.5*math.log2(math.e)):#x}\ns_nop 7\ns_nop 1")
        for j in range(8): a(f"v_pk_mul_f32 {vr(D+2*j,2)}, {vr(D+2*j,2)}, s[72:73] op_sel_hi:[1,0]")
        cvt()
        a(f"""s_mov_b32 exec_lo, 0
        v_mov_b32 v30, 0x3f803f80
        v_mov_b32 v31, 0x3f80
        s_mov_b32 exec_lo, -1
        s_branch {L}_kv
        {L}_v:""")
        a.set_state(st)
        a(f"""v_and_b32 v10, 31, v1
        v_cmp_eq_u32 vcc, 28, v10
        v_mov_b32 v11, 0x3f803f80
        s_nop 0
        v_cndmask_b32 v11, 0, v11, vcc""")
        mm(True)
        cvt()
        a("s_mov_b32 exec_lo, 0xf0000000\ns_mov_b32 exec_hi, 0xf0000000")
        for j in range(8): a(f"v_mov_b32 v{24+j}, v11")
        a(f"""s_mov_b64 exec, -1
        {L}_kv:""")
        last = self.st([f"buffer_store_dwordx4 v[24:27], v13, {WS}, s74 offen",
                        f"buffer_store_dwordx4 v[28:31], v13, {WS}, s74 offen offset:1024"])
        a(f"""buffer_store_dwordx4 v[24:27], v13, {WS}, s71 offen sc1
        buffer_store_dwordx4 v[28:31], v13, {WS}, s71 offen offset:1024 sc1""")
        a(f"{L}_j:")
        self.stamp('p1mm')
        self.e1 = k2.att_early(self)[1]
        n = self.par('e1a', 70)
        for ln in self.e1[:n]: a(ln)
        self.e1 = self.e1[n:]
        a.wait_vm(last)
        a(f"s_cmp_ge_u32 s76, 14\ns_cbranch_scc1 {L}_f")
        a.raw("s_waitcnt vmcnt(0)")
        a(f"{L}_f:")
        self.stamp('p1st')
        self.st([f"buffer_store_dword v{vT}, v{vF}, {WS}, s75 offen"])
        self.stamp('f2')

    def flag(self, soff, wave=0):
        a = self.a
        def body():
            a(f"""v_mov_b32 v9, s{sT}
            s_mov_b64 exec, 1
            buffer_store_dword v9, off, s[{R_WS}:{R_WS+3}], {soff} sc1
            s_mov_b64 exec, -1""")
        if wave is None: body(); return
        a(f"s_cmp_eq_u32 s{sW}, {wave}")
        with a.guard(a.label('flag'), 's_cbranch_scc0'): body()

    def start_phase(self):
        a = self.a
        import k2
        self.ool = []
        self.wids = []
        self.nw1 = self.par('nw1', 20); self.nwb = self.par('nwb', self.nw1); self.d1_issued = False
        self.prologue()
        self.p0_setup()
        self.p1_setup()
        a.need(['s30'])
        self.stamp('karg')
        self.srd(R_A, S_WM, 448 * 5376)
        a("s_cmp_eq_u32 s67, 1")
        with a.guard('p0c', 's_cbranch_scc0'): lc = self.p0_loads()
        a(f"s_load_dword s{sE}, s[{S_WS}:{S_WS+1}], {W_EPOCH}")
        if 'nowpf' not in self.x:
            a(f"s_cmp_eq_u32 s{sW}, 1")
            with a.guard('wpf', 's_cbranch_scc0'): self.w_prefetch()
        self.srd(R_X, S_X, 2048 * 896)
        a("s_barrier")
        self.stamp('bar0')
        self.x_loads()
        self.srd(R_WS, S_WS, W_SIZE)
        self.p1_setup2()
        self.p1_setup3()
        self.nc_setup()
        self.wo_setup()
        a(f"""s_mul_i32 s65, s{sI}, {BLK}
        s_mul_i32 s70, s{sW}, 3584
        s_add_u32 s65, s65, s70
        s_add_u32 s65, s65, {W_B}
        s_lshl_b32 s70, s{sXC}, 15
        s_mul_i32 s71, s{sR}, 3584
        s_add_u32 s70, s70, s71
        s_add_u32 s70, s70, {W_KVL}
        s_cmp_lt_u32 s{sR}, 10
        s_cselect_b32 s70, s70, {OOB}
        s_cmp_eq_u32 s{sW}, 3
        s_cselect_b32 s70, {OOB}, s70
        s_cmp_lt_u32 s{sW}, 2
        s_cselect_b32 s65, s65, s70""")
        self.tagcalc()
        a(f"""s_and_b32 s{sT0}, s{sT}, 0xff
        s_bfe_u32 s{sT0+1}, s{sT}, 0x80008
        s_bfe_u32 s{sT0+2}, s{sT}, 0x80010
        s_lshr_b32 s{sT0+3}, s{sT}, 24
        v_and_b32 v{pNT}, 3, v1
        v_lshlrev_b32 v{pNT}, 3, v{pNT}
        v_lshrrev_b32 v{pNT}, v{pNT}, s{sT}
        v_and_b32 v{pNT}, 0xff, v{pNT}""")
        self.stamp('set1')
        a("s_cmp_eq_u32 s67, 1")
        a.section = 'p0c'
        with a.guard('p0c', 's_cbranch_scc0'): self.p0_compute(lc)
        self.stamp('p0')
        a(f"s_cmp_eq_u32 s{sW}, 2")
        with a.guard('xid', 's_cbranch_scc0'):
            a(f"""s_getreg_b32 s70, hwreg(HW_REG_XCC_ID, 0, 4)
            s_xor_b32 s70, s{sT}, s70
            s_lshl_b32 s71, s{sI}, 2
            s_add_u32 s71, s71, {W_XID}
            v_mov_b32 v9, s70
            s_mov_b64 exec, 1
            buffer_store_dword v9, off, {WS}, s71 sc1
            s_mov_b64 exec, -1""")
            self.pretouch()
        a(f"global_load_dword v{pC}, v{pC1}, s[{S_C}:{S_C+1}]")
        e0 = k2.att_early(self)[0]
        n0 = self.par('nw0', 6)
        for p in range(n0):
            self.w_dma()
            for ln in e0[len(e0)*p//n0:len(e0)*(p+1)//n0]: a(ln)
        self.stamp('set2')
        if 0 <= self.par('px', -1) < 8:
            a(f"s_add_u32 s70, s{sR}, s{sW}\ns_cmp_eq_u32 s70, 0")
            with a.guard('px', 's_cbranch_scc0'):
                a(f"""s_getreg_b32 s70, hwreg(HW_REG_XCC_ID, 0, 4)
                s_lshl_b32 s70, s70, 7
                s_add_u32 s70, s70, {W_STAMP}
                v_mov_b32 v9, s{S_STAMP}
                buffer_store_dword v9, v{vF}, {WS}, s70 offen sc1""")
        self.ln1_stats()
        self.stamp('ln1')
        self.d1()
        self.p1_main()

    def pretouch(self):
        a = self.a
        if 'nopre' in self.x: return
        a(f"""v_lshrrev_b32 v{pT0}, 3, v1
        v_and_b32 v{pT1}, 7, v1
        v_min_u32 v{pT0}, 2, v{pT0}
        v_lshlrev_b32 v{pT0}, 13, v{pT0}
        v_lshl_add_u32 v{pT0}, v{pT1}, 7, v{pT0}
        s_lshl_b32 s70, s{sXC}, 10
        s_add_u32 s70, s70, {W_FQ}
        buffer_load_dword v{pJ1}, v{pT0}, {WS}, s70 offen sc1""")

    def epoch_update(self):
        a = self.a
        a(f"s_cmp_eq_u32 s{sI}, 255\ns_cbranch_scc0 L_fin\ns_cmp_eq_u32 s{sW}, 0\ns_cbranch_scc0 L_fin")
        a(f"s_mov_b32 s70, {W_EPOCH}")
        self.flag('s70', None)
        a("L_fin:")

    def finish(self):
        a = self.a
        if self.probe:
            self.stamp('end')
            j = self.stamp_names.index(self.probe)
            a.force_wait("s_waitcnt lgkmcnt(0)")
            a(f"""s_cmp_eq_u32 s{sI}, {self.par("pi",100)}
            s_cbranch_scc0 L_end
            s_add_u32 s70, s{S_STAMP+2*j}, 6000""")
            px = self.par('px', -1)
            if px == 8:
                a(f"s_getreg_b32 s71, hwreg(HW_REG_XCC_ID, 0, 4)\ns_sub_u32 s71, s71, s{sXC}\ns_and_b32 s71, s71, 7\ns_mul_i32 s71, s71, 500\ns_add_u32 s70, s70, s71")
            elif px >= 0:
                a(f"v_lshlrev_b32 v2, 7, v1\ns_mov_b32 s71, {W_STAMP}\nbuffer_load_dword v3, v2, {WS}, s71 offen sc1")
                for q in range(8): a(f"v_readlane_b32 s{72+q}, v3, {q}")
                a(f"s_mov_b32 s71, s72")
                for q in range(1, 8): a(f"s_min_u32 s71, s71, s{72+q}")
                a(f"s_sub_u32 s71, s{72+px}, s71\ns_min_u32 s71, s71, 300\ns_mul_i32 s71, s71, 20\ns_add_u32 s70, s70, s71")
            a(f"""L_probe:
            s_memrealtime s[72:73]
            s_waitcnt lgkmcnt(0)
            s_sub_u32 s71, s72, s70
            s_cmp_lt_i32 s71, 0
            s_cbranch_scc1 L_probe""")
        elif self.stamps:
            self.stamp('end')
            a.force_wait("s_waitcnt lgkmcnt(0)")
            for k in range(self.nstamp): a(f"v_writelane_b32 v2, s{S_STAMP+2*k}, {k}")
            a(f"""s_lshl_b32 s70, s{sI}, 2
            s_add_u32 s70, s70, s{sW}
            s_lshl_b32 s70, s70, 6
            s_add_u32 s70, s70, {W_STAMP}
            v_lshlrev_b32 v3, 2, v1
            s_mov_b64 exec, 0xffff
            buffer_store_dword v2, v3, s[{R_WS}:{R_WS+3}], s70 offen
            s_mov_b64 exec, -1""")
        a("L_end:\ns_endpgm")
        for f in getattr(self, 'ool', []): f()

    def build(self):
        import k2
        self.start_phase()
        if self.stop != 'p1':
            k2.rest(self)
        self.epoch_update()
        self.finish()
        return self.module()

    def module(self):
        hdr = open(f"cdna_kernels/{NAME}.s.ref").read().split("; @launch")[0]
        kn = NAME + "_kernel"
        return hdr + f"""; @launch grid=(256,1,1) block=(256,1,1) lds={LDS_SIZE}
.amdgcn_target "amdgcn-amd-amdhsa--gfx950"
.text
.globl {kn}
.p2align 8
.type {kn},@function
{kn}:
{self.a.text()}.section .rodata,"a"
.p2align 6
.amdhsa_kernel {kn}
  .amdhsa_next_free_vgpr 512
  .amdhsa_next_free_sgpr 102
  .amdhsa_accum_offset 256
  .amdhsa_group_segment_fixed_size 0
  .amdhsa_kernarg_size 112
  .amdhsa_user_sgpr_count 2
  .amdhsa_user_sgpr_kernarg_segment_ptr 1
  .amdhsa_system_sgpr_workgroup_id_x 1
.end_amdhsa_kernel
"""

if __name__ == "__main__":
    import argparse
    ap = argparse.ArgumentParser()
    ap.add_argument("-o", default="out.s")
    ap.add_argument("--stamps", default=None)
    ap.add_argument("--stop", default=None)
    ap.add_argument("-x", default="")
    ap.add_argument("--probe", default=None)
    ap.add_argument("--nops", action="store_true")
    g = ap.parse_args()
    if g.probe: g.stamps = g.probe
    k = K(stamps=(['start', 'end'] + g.stamps.split(',')) if g.stamps else None, stop=g.stop, x=g.x.split(','), probe=g.probe)
    txt = k.build()
    if g.stamps: txt += "; STAMPS " + " ".join(k.stamp_names) + "\n"
    open(g.o, "w").write(txt)
    if g.nops:
        for n in k.a.nops: print(n)
    print(getattr(k, 'info', ''))
    print("instructions:", sum(1 for i in k.a.out if i.op), "nop states:", sum(n[1] for n in k.a.nops))
```

```python
import re
from k import *


def isize(i):
    if not i.op: return 0
    lit = 0
    for o in i.ops:
        if re.fullmatch(r'-?(0x[0-9a-fA-F]+|\d+)', o):
            v = int(o, 0)
            if not (-16 <= v <= 64): lit = 4
    if i.kind in ('mfma', 'vmem', 'ds', 'smem'): return 8
    if i.kind in ('nop', 'wait', 'ctl'): return 4
    if i.kind == 'salu': return 4 + lit
    if i.op.endswith('_e64') or i.op.startswith(('v_cvt_pk_', 'v_pk_', 'v_fma_', 'v_max3', 'v_or3', 'v_lshl_add', 'v_bfe', 'v_and_or', 'v_readlane', 'v_writelane', 'v_accvgpr')) or i.dpp or i.sdwa: return 8
    return 4 + lit

class Slots:
    def __init__(self, n):
        self.n = n; self.s = [[] for _ in range(n)]
    def put(self, pos, item, cap=1):
        while pos < self.n and len(self.s[pos]) >= cap: pos += 1
        assert pos < self.n, "out of slots"
        self.s[pos].append(item); return pos
    def seq(self, pos, items, step=1, cap=1):
        for it in items:
            pos = self.put(pos, it, cap) + step
        return pos
    def spread(self, p0, p1, items):
        free = [p for p in range(p0, p1) if not self.s[p]]
        assert len(free) >= len(items), (len(free), len(items))
        pos = p0
        for n, it in enumerate(items):
            pos = free[n * len(free) // len(items)]
            self.s[pos].append(it)
        return pos + 1
    def run(self, a, pos):
        for it in self.s[pos]:
            if callable(it): it()
            else: a(it)

class Sched:
    def __init__(self, n, slot, svc, depth):
        self.n, self.slot, self.svc, self.depth = n, slot, svc, depth
        self.streams = []; self.ev = {}; self.s = [[] for _ in range(n)]; self.log = [''] * n
    def add(self, items): self.streams.append(list(items))
    @staticmethod
    def it(x, c=0, e=0, d=10**6, ev=None, after=None, gap=1, tag='.'):
        return dict(x=x, c=c, e=e, d=d, ev=ev, after=after or [], gap=gap, tag=tag)
    def even(self, xs, e, d, c=1, tag='.', after=None):
        r = []
        for n, x in enumerate(xs):
            cc = c
            if isinstance(x, tuple): x, cc = x
            r.append(self.it(x, cc, e, e + (n + 1) * (d - e) // len(xs), tag=tag if cc else tag.lower(), after=after if n == 0 else None))
        return r
    def solve(self):
        last = [-9] * len(self.streams); free = 0; self.late = []
        for p in range(self.n):
            now = p * self.slot
            def cands():
                r = []
                for q, st in enumerate(self.streams):
                    if not st: continue
                    h = st[0]
                    if h['e'] > p or p < last[q] + h['gap']: continue
                    if any(v not in self.ev or p < self.ev[v] + g for v, g in h['after']): continue
                    r.append((h['d'], q))
                return sorted(r)
            def place(q):
                nonlocal free
                h = self.streams[q].pop(0); last[q] = p
                self.s[p].append(h['x']); self.log[p] += h['tag']
                if h['ev']: self.ev[h['ev']] = p
                if h['c']: free = max(free, now) + h['c'] * self.svc
                if p > h['d']: self.late.append((h['tag'], h['d'], p))
            while True:
                due = [q for d, q in cands() if d <= p and (not self.s[p] or not self.streams[q][0]['c'] or self.streams[q][0]['e'] == d)]
                if not due: break
                place(due[0])
            if self.s[p]: continue
            c = cands()
            vm = [q for d, q in c if self.streams[q][0]['c']]; ot = [q for d, q in c if not self.streams[q][0]['c']]
            if vm and free - now <= self.depth and not (ot and self.streams[ot[0]][0]['d'] < self.streams[vm[0]][0]['d']): place(vm[0])
            elif ot: place(ot[0])
        assert not any(self.streams), [(h['tag'], h['e'], h['d'], h['after']) for st in self.streams for h in st[:1]]
    def run(self, a, pos):
        for it in self.s[pos]:
            if callable(it): it()
            else: a(it)

SB, PB, QB, OB = 16, 48, 64, 144
NRING = 8
KVS = [4, 5] + [6, 7] * 7
sTODO, sRDY, sPK, vKO = 8, 9, 10, 15
def kreg(j, part): return ar(16 * (j % NRING) + 4 * part, 4)
def wo_reg(jj, ks):
    n = jj * 7 + ks
    if n < 32: return ar(128 + 4 * n, 4)
    if n < 37: return vr(208 + 4 * (n - 32), 4)
    if n < 47: return vr(96 + 4 * (n - 37), 4)
    return vr(PB + 4 * (n - 47), 4)
(vWS, vD2, vFK, vWOF, vQ, vNC2, vNC2T, vOW, vOR, _, _, vXS, vX, _t, vOTW, vOTR, vOWNW, vXR, vOWNR, vMOD, vH2, vSTW, vSTR, vFF) = range(228, 252)
assert _t == vT
vWD, vPF, vMN = 3, 7, 12
sQ, sFKS, sFWO, sFNC, sC14, sOWN, sWD, sPFW, sPFD, sPFO, sXB, sMN, sNA = 44, 12, 13, 30, 31, 64, 66, 68, 69, 77, 78, 79, 80
XRAW = (136, 140)
vFN, vFL = 254, 255
sXO = 3
WOS = list(range(70, 77))

def att_srd(k):
    return f"""s_mov_b32 s{R_C}, s{S_WD}
    s_mov_b32 s{R_C+1}, s{S_WD+1}
    s_mov_b32 s{R_C+2}, {1792*896}
    s_bitcmp1_b32 s{sW}, 0
    s_cselect_b32 s{R_A}, s{S_WU}, s{S_WG}
    s_cselect_b32 s{R_A+1}, s{S_WU+1}, s{S_WG+1}
    s_mov_b32 s{R_A+2}, {448*3584}""".split('\n')

def att_early(k):
    t0 = f"""v_mov_b32 v{vT}, s{sT}
    v_mov_b32 v14, {OOB}
    v_mov_b32 v{vFF}, 0xff
    v_mov_b32 v{vF}, v14
    v_writelane_b32 v{vF}, 0, 0
    v_cmp_gt_u32 vcc, 28, v1
    v_lshlrev_b32 v10, 7, v1
    v_and_b32 v252, 7, v1
    v_cndmask_b32 v{vPF}, v14, v10, vcc
    v_lshrrev_b32 v253, 3, v1
    v_and_b32 v254, 15, v1
    v_lshrrev_b32 v255, 4, v1
    s_lshr_b32 s70, s{sI}, 2
    s_and_b32 s71, s{sI}, 1
    s_lshl_b32 s72, s70, 7
    s_mul_i32 s73, s71, 28
    s_add_u32 s72, s72, s73
    s_add_u32 s72, s72, {W_FQ}
    v_min_u32 v10, 6, v252
    v_lshl_add_u32 v{vD2}, v10, 2, s72
    s_lshl_b32 s72, s{sXC}, 3
    s_add_u32 s72, s72, s{sW}
    s_lshl_b32 s73, s72, 12
    s_add_u32 s{KVS[0]}, s73, {W_KVL}
    s_add_u32 s{KVS[1]}, s73, {W_KVL+0x4000}
    s_lshl_b32 s72, s72, 7
    s_add_u32 s72, s72, {W_FQ+56}
    v_and_b32 v10, 1, v1
    v_lshl_add_u32 v10, v10, 2, s72
    v_bfe_u32 v11, v1, 1, 1
    v_cmp_eq_u32 vcc, 1, v255
    v_lshl_add_u32 v10, v11, 9, v10
    s_xor_b32 s72, s{sI}, 1
    s_mul_i32 s72, s72, {BLK}
    v_cndmask_b32 v{vD2}, v{vD2}, v10, vcc
    s_add_u32 s72, s72, {W_B}
    v_and_b32 v10, 1, v255
    v_mul_u32_u24 v10, 896, v10
    v_lshrrev_b32 v11, 5, v1
    v_cmp_gt_u32 vcc, 32, v1
    v_lshl_add_u32 v10, v11, 8, v10
    v_lshl_add_u32 v10, v254, 3, v10
    v_add_u32 v{vQ}, s72, v10
    v_cndmask_b32 v15, v14, v{vQ}, vcc""".split('\n')
    t = f"""v_add_u32 v2, 4096, v13
    ; key tile order: two tiles of the own group, then the others starting at a workgroup-dependent one
    v_add_u32 v10, s{sR}, v254
    v_mul_u32_u24 v11, 4682, v10
    v_lshrrev_b32 v11, 16, v11
    v_mul_u32_u24 v11, 14, v11
    v_sub_u32 v10, v10, v11
    s_lshl_b32 s72, s{sXC}, 1
    s_add_u32 s72, s72, 2
    v_add_u32 v10, s72, v10
    v_and_b32 v10, 15, v10
    s_lshl_b32 s72, s{sW}, 8
    s_add_u32 s72, s72, {W_FK}
    v_lshl_add_u32 v10, v10, 10, s72
    v_lshrrev_b32 v11, 5, v1
    v_lshl_add_u32 v{vFK}, v11, 7, v10
    ;;
    s_and_b32 s73, s{sI}, 1
    s_mul_i32 s72, s{sW}, 7
    s_mul_i32 s73, s73, 896
    s_add_u32 s73, s73, {W_FWO}
    v_min_u32 v10, 6, v253
    v_min_u32 v11, 6, v252
    v_add_u32 v10, s72, v10
    v_lshrrev_b32 v10, 2, v10
    v_mul_u32_u24 v10, 14, v10
    v_add_u32 v10, v10, v11
    v_lshl_add_u32 v{vWOF}, v10, 7, s73
    ;;
    v_and_b32 v10, 1, v255
    v_mul_u32_u24 v10, 56, v10
    v_lshrrev_b32 v11, 5, v1
    v_lshl_add_u32 v10, v11, 4, v10
    s_mul_i32 s72, s{sW}, 112
    s_add_u32 s72, s72, {L_OT}
    v_mul_u32_u24 v11, 480, v254
    v_add3_u32 v{vOTW}, v10, v11, s72
    v_lshl_add_u32 v11, v255, 4, v11
    v_add_u32 v{vOTR}, {L_OT}, v11
    ;;
    s_lshr_b32 s72, s{sI}, 3
    s_mul_i32 s72, s72, 3584
    s_and_b32 s73, s{sI}, 7
    s_lshl_b32 s73, s73, 6
    s_add_u32 s72, s72, s73
    s_and_b32 s73, s{sI}, 1
    s_lshl_b32 s73, s73, 5
    s_add_u32 s72, s72, s73
    s_add_u32 s72, s72, {W_NCP-4*3584}
    s_cmp_eq_u32 s67, 3
    s_cselect_b32 s72, s72, {OOB}
    v_lshl_add_u32 v10, v253, 9, s72
    v_lshl_add_u32 v10, v252, 2, v10
    v_and_b32 v11, 3, v1
    v_lshlrev_b32 v11, 3, v11
    v_lshrrev_b32 v11, v11, s{sT}
    v_cmp_gt_u32 vcc, 56, v1
    v_and_b32 v11, 0xff, v11
    s_nop 0
    v_cndmask_b32 v{vNC2}, v14, v10, vcc
    v_cndmask_b32 v{vNC2T}, 0, v11, vcc
    ;;
    v_cmp_gt_u32 vcc, 56, v1
    s_mul_i32 s72, s{sI}, {8*896}
    s_mul_i32 s73, s{sW}, 224
    s_and_b32 s71, s{sI}, 1
    s_add_u32 s72, s72, s73
    v_mul_u32_u24 v10, 896, v252
    v_lshl_add_u32 v10, v253, 5, v10
    v_add_u32 v10, s72, v10
    v_cndmask_b32 v{vX}, v14, v10, vcc
    s_lshl_b32 s73, s73, 1
    s_add_u32 s73, s73, {L_MODN}
    v_lshl_add_u32 v{vMOD}, v253, 6, s73
    s_lshl_b32 s74, s{sW}, 13
    s_add_u32 s74, s74, {L_ST+4096}
    v_lshlrev_b32 v10, 4, v252
    v_lshl_add_u32 v11, v253, 8, v10
    v_cndmask_b32 v{vH2}, v14, v11, vcc
    v_lshl_add_u32 v11, v253, 9, v10
    v_cndmask_b32 v{vXR}, v14, v11, vcc
    v_add_u32 v{vOWNR}, s74, v11
    v_and_b32 v11, 1, v253
    v_cmp_eq_u32 vcc, s71, v11
    v_lshl_add_u32 v11, v255, 7, v10
    v_add_u32 v{vOWNW}, s74, v11
    v_cndmask_b32 v{vXS}, v11, v14, vcc
    ;;
    v_lshlrev_b32 v10, 5, v252
    v_add_u32 v{vSTR}, {L_MISC+64}, v10
    s_lshl_b32 s72, s{sW}, 3
    v_add_u32 v{vSTW}, s72, v{vSTR}
    s_mul_i32 s72, s{sW}, 12288
    s_add_u32 s72, s72, {L_OS}
    v_add_u32 v{vOW}, s72, v13
    ;;""".split('\n')
    for s in range(3):
        t += f"""s_add_u32 s72, s{sW}, {3-s}
        s_and_b32 s72, s72, 3
        s_mul_i32 s72, s72, 12288
        s_add_u32 s72, s72, {L_OS+4096*s}
        v_add_u32 v{vOR+s}, s72, v13""".split('\n')
    t += f""";;
    s_and_b32 s72, s{sW}, 1
    s_lshl_b32 s72, s72, 2
    v_and_b32 v10, 2, v253
    v_xor_b32 v10, v10, v252
    v_xor_b32 v10, s72, v10
    v_mul_u32_u24 v11, 3584, v253
    v_lshl_add_u32 v{vWD}, v10, 4, v11
    v_add_u32 v{vWD+1}, {16*3584-1024}, v{vWD}
    v_add_u32 v{vWD+2}, {2*(16*3584-1024)}, v{vWD}
    v_add_u32 v{vWD+3}, {3*(16*3584-1024)}, v{vWD}
    ;;
    v_cmp_gt_u32 vcc, 8, v1
    s_lshl_b32 s72, s{sI}, 5
    s_add_u32 s72, s72, {W_MODN-32*32}
    s_cmp_eq_u32 s67, 3
    s_cselect_b32 s72, s72, {OOB}
    v_lshl_add_u32 v10, v1, 2, s72
    v_cndmask_b32 v{vMN}, v14, v10, vcc
    v_cmp_gt_u32 vcc, 56, v1
    s_mul_i32 s72, s{sW}, {56*32}
    s_add_u32 s72, s72, {W_FNC+32*32}
    s_lshl_b32 s73, s{sW}, 8
    s_add_u32 s73, s73, {W_FNC-56*32}
    v_mov_b32 v10, s72
    v_mov_b32 v11, s73
    v_cndmask_b32 v10, v11, v10, vcc
    v_cmp_gt_u32 vcc, 32, v1
    v_lshl_add_u32 v{vFN}, v1, 5, v10
    v_lshlrev_b32 v10, 2, v1
    v_cndmask_b32 v{vFL}, v14, v10, vcc""".split('\n')
    return t0, "\n".join(t).split(';;')

def att_late(k):
    t = []
    for s in range(4):
        t += [f"s_add_u32 s81, s{sW}, {1+s}", "s_and_b32 s81, s81, 3", f"s_mul_i32 s{sQ+s}, s81, 1792"]
    t += f"""s_lshr_b32 s81, s{sI}, 2
    s_lshl_b32 s81, s81, 1
    s_add_u32 s81, s81, s{sW}
    s_lshl_b32 s81, s81, 7
    s_add_u32 s{sFKS}, s81, {W_FK-2*128}
    s_and_b32 s81, s{sI}, 3
    s_lshl_b32 s81, s81, 2
    s_add_u32 s81, s81, s{sW}
    s_cmp_ge_u32 s81, 14
    s_cselect_b32 s{sFKS}, s{sFKS}, {OOB}
    s_lshl_b32 s81, s{sI}, 5
    s_add_u32 s{sFNC}, s81, {W_FNC}
    s_lshl_b32 s81, s{sI}, 2
    s_cmp_eq_u32 s{sW}, 3
    s_cselect_b32 s{sFNC}, s{sFNC}, {OOB}
    s_add_u32 s81, s81, s{sW}
    s_xor_b32 s{sXB}, s81, 4
    s_mul_i32 s{sXB}, s{sXB}, 3584
    s_add_u32 s{sXB}, s{sXB}, {W_B}
    s_mul_i32 s{sXO}, s81, 3584
    s_add_u32 s{sXO}, s{sXO}, {W_B}
    s_lshr_b32 s{sPFW}, s81, 1
    s_mul_i32 s{sPFW}, s{sPFW}, 3584
    s_bitcmp1_b32 s{sW}, 0
    s_cselect_b32 s{sPFD}, {OOB}, s{sPFW}
    s_and_b32 s81, s81, 127
    s_mul_i32 s{sPFO}, s81, 3584
    s_add_u32 s{sPFO}, s{sPFO}, {W_WO}
    s_movk_i32 s{sC14}, 14336
    s_mov_b32 s{sOWN}, 0x00ff00ff
    s_bitcmp1_b32 s{sI}, 0
    s_cselect_b32 s{sOWN}, 0xff00ff00, s{sOWN}
    s_mov_b32 s{sOWN+1}, s{sOWN}
    s_lshr_b32 s81, s{sW}, 1
    s_mul_i32 s81, s81, {8*3584}
    s_lshl_b32 s{sWD}, s{sR}, 7
    s_add_u32 s{sWD}, s{sWD}, s81
    s_cmp_lt_u32 s{sR}, 28
    s_cselect_b32 s{sWD}, s{sWD}, {OOB}
    s_cselect_b32 s{sPFO}, s{sPFO}, {OOB}
    s_mul_i32 s{sMN}, s{sW}, 1792
    s_sub_u32 s81, s{sI}, {112+32}
    s_cmp_lt_u32 s81, 56
    s_cselect_b32 s{sNA}, 1.0, 0""".split('\n')
    return t

def main_setup(k):
    a = k.a
    a(f"""s_mul_i32 s{WOS[0]}, s{sW}, {7*14336}
    s_and_b32 s81, s{sI}, 1
    s_mul_i32 s81, s81, 7168
    s_add_u32 s{WOS[0]}, s{WOS[0]}, s81
    s_add_u32 s{WOS[0]}, s{WOS[0]}, {W_WO}""")
    for jj in range(1, 7): a(f"s_add_u32 s{WOS[jj]}, s{WOS[jj-1]}, s{sC14}")
    a(f"s_lshl_b32 m0, s{sW}, 12\nv_lshlrev_b32 v{vKO}, 4, v{vFK}")

def chk4(a, r):
    a(f"""v_xor_b32 v{r}, s{sT}, v{r}
    v_xor_b32 v{r+1}, s{sT}, v{r+1}
    v_xor_b32 v{r+2}, s{sT}, v{r+2}
    v_or3_b32 v{r}, v{r}, v{r+1}, v{r+2}
    v_xor_b32 v{r+3}, s{sT}, v{r+3}
    v_or_b32 v{r}, v{r}, v{r+3}
    v_cmp_ne_u32 vcc, 0, v{r}""")

def late_check(k, name, load, check):
    a = k.a
    def item():
        check()
        a(f"s_cbranch_vccnz L_{name}_w\nL_{name}_ok:")
    def far():
        a.set_state(([], []))
        a(f"L_{name}_w:")
        k.poll(name, load if callable(load) else (lambda: a(load)), check)
        a(f"s_branch L_{name}_ok")
    k.ool.append(far)
    return item

def wdma(q): return f"buffer_load_dwordx4 v{vWD+q}, {RA}, s{sWD} offen offset:{1024*q} lds"
WSTEP = f"s_add_u32 m0, m0, 16384\ns_add_u32 s{sWD}, s{sWD}, {64*3584}"

def attention(k):
    a = k.a
    a.section = 'att_pre'
    chk1 = lambda: a(f"v_cmp_ne_u32 vcc, s{sT}, v9")
    d2l = f"buffer_load_dword v9, v{vD2}, {WS}, 0 offen sc1"
    k.stamp('d2poll')
    a(d2l)
    for ln in k.e1: a(ln)
    a("s_barrier")
    k.stamp('d2bar')
    fks = f"buffer_store_dword v{vT}, v{vF if 'fk1' in k.x else vFL}, {WS}, s{sFKS} offen sc1"
    k.poll('d2a', lambda: a(d2l), chk1, first_issued=True, between=(lambda: a(fks)) if 'nofkb' not in k.x else None)
    k.stamp('d2done')
    k.stampcnt('d2n')
    def kvload(j, part, sreg=None, sc=' sc1'):
        return f"buffer_load_dwordx4 {kreg(j,part)}, v13, {WS}, s{KVS[j] if sreg is None else sreg} offen offset:{1024*part}{sc}"
    def qload(s): return [f"buffer_load_dwordx2 {vr(QB+8*s+2*e,2)}, v{vQ if e < 3 else 15}, {WS}, s{sQ+s} offen offset:{(0,128,512,640)[e]}" for e in range(4)]
    k0 = [kvload(0, p, sc='') for p in range(4)]
    l0 = qload(0)[:2] + k0[:1] + qload(0)[2:] + k0[1:2] + qload(1) + qload(2) + k0[2:] + qload(3)
    FKQ = k.par('fkq', 0)
    if FKQ: k.st(l0[:FKQ])
    if 'nofkb' in k.x: a(fks)
    if FKQ < 20: k.st(l0[FKQ:])
    k.stamp('qi')
    k.nc_compute()
    main_setup(k)
    k.nc_finish()
    ids = {}
    NT = k.par('nt', 6)
    U = [(j, s) for j in range(16 - NT) for s in range(4)] + [(j, s) for s in range(4) for j in range(16 - NT, 16)]
    def QK(u, h):
        j, s = U[u]; d = vr(SB + 16 * (u & 1), 16)
        a(f"v_mfma_f32_32x32x16_bf16 {d}, {kreg(j,h)}, {vr(QB+8*s+4*h,4)}, {d if h else '0'}")
    def PV(u, h):
        j, s = U[u]; d = vr(OB + 16 * s, 16)
        a(f"v_mfma_f32_32x32x16_bf16 {d}, {kreg(j,2+h)}, {vr(PB+8*(u&1)+4*h,4)}, {'0' if (j == 0 and h == 0) else d}")
    QK(0, 0); QK(0, 1)
    a.need([f"v{r}" for r in range(QB + 8, QB + 16)])
    a("s_nop 10\n.p2align 3\nL_att_main:")
    sl = Sched(256, k.par('slot', 52), k.par('svc', 72), k.par('depth', 60)); it = sl.it
    P = lambda u, g=0: 4 * u + g
    at = lambda x, p, c=0, **kw: it(x, c, p, p, gap=0, **kw)
    near = lambda x, p, c=0, **kw: it(x, c, p, p + 2, **kw)
    FKP, FKC = k.par('fkp', 1), k.par('fkc', 3)
    first = {}
    for u, (j, s) in enumerate(U): first.setdefault(j, u)
    lastu = {j: u for u, (j, s) in enumerate(U)}
    lasts = {s: u for u, (j, s) in enumerate(U)}
    fkl = f"buffer_load_dword v9, v{vFK}, {WS}, 0 offen sc1"
    def wost(): ids['wo'] = a(f"buffer_store_dwordx4 v[96:99], v{vWS}, {WS}, 0 offen sc1")
    sl.add([at(kvload(1, p), p, 1, tag='K') for p in range(4)] +
           [at(f"buffer_store_dword v{pNO}, v{pNS}, {WS}, 0 offen sc1", 4, .2, tag='N'), at(wost, 5, .5, tag='O')])
    w = [(P(s - 2, 3), [f"v{r}" for r in range(QB + 8 * s, QB + 8 * s + 8)]) for s in (2, 3)]
    w += [(P(first[j] - 2, 3), [f"a{x}" for x in range(16*(j%NRING), 16*(j%NRING) + (8 if j < 4 else 16))]) for j in range(1, 16)]
    w += [(P(first[j] + 1, 1), [f"a{x}" for x in range(16*(j%NRING) + 8, 16*(j%NRING) + 16)]) for j in range(4)]
    sl.add([at(lambda r=r: a.need(r), p, tag='w') for p, r in sorted(w)])
    RF = [2, 2 + k.par('r1', 2), 2 + k.par('r2', 5), 16]
    def refresh(j):
        m = (1 << (RF[RF.index(j) + 1] - 2)) - (1 << (j - 2))
        return late_check(k, f'fk{j}', fkl, lambda: a(f"v_cmp_ne_u32 vcc, s{sT}, v9\ns_or_b32 vcc_lo, vcc_lo, vcc_hi\ns_and_b64 vcc, vcc, {m}"))
    pick = lambda j: f"v_readlane_b32 s{KVS[j]}, v{vKO}, {j-2}"
    KD, PS = k.par('kd', 24), k.par('ps', 7)
    def st3(): k.stamp('fk2')
    kv = [at(fkl, P(FKP, 2), .5, tag='F'), at(pick(2), P(FKC) - 1, tag='p'), at(refresh(2), P(FKC), tag='r'), at(st3, P(FKC), tag=''),
          at(kvload(2, 0) + "\n" + kvload(2, 1), P(FKC), 2, tag='KK'), at(kvload(2, 2), P(FKC, 1), 1, tag='K'), at(kvload(2, 3), P(FKC, 2), 1, tag='K', ev='k2')]
    for j in range(3, 16):
        d = min(P(first[j] - 2, 3) - KD, P(first[15] - 2, 3) - KD - 6 * (15 - j))
        e = min(P(FKC) + PS * (j - 2), d - 6)
        kv.append(it(pick(j), 0, 0, d - 6, tag='p'))
        if j == 3 and j not in RF: kv.append(it(fkl, .5, 0, d - 5, tag='F', ev=f'f{RF[1]}'))
        if j in RF:
            kv.append(it(refresh(j), 0, e, d - 5, tag='r', after=[(f'f{j}', k.par('fl', 14))]))
            nx = RF[RF.index(j) + 1]
            if nx < 16: kv.append(it(fkl, .5, 0, d - 4, tag='F', ev=f'f{nx}'))
        kv += [it(kvload(j, p), 1, max(e, P(lastu[j - NRING] + 2) if j >= NRING else 0), d - 3 + p, tag='K') for p in range(4)]
    sl.add(kv)
    def owr(s, q): return f"ds_write_b128 v{vOW}, {vr(OB+16*s+4*q,4)} offset:{4096*s+1024*q}"
    def obar():
        a.wait_vm(ids['mn']); k.barrier()
    pe = P(lasts[2] + 2, 1)
    sl.add([it(owr(s, q), 0, P(lasts[s] + 2, 1), P(lasts[s] + 2, 1) + (3 * q + 3 if s < 2 else q), tag='l') for s in range(3) for q in range(4)] +
           [at(obar, pe + 6, tag='b', after=[('mn', 1)])] +
           [at(f"ds_read_b128 {vr(OB+16*s+4*q,4)}, v{vOR+s} offset:{1024*q}", pe + 7 + 4 * s + q, tag='l') for s in range(3) for q in range(4)])
    ncl = f"buffer_load_dword v10, v{vNC2}, {WS}, 0 offen sc1"
    def ncchk(): a(f"v_xor_b32 v10, v10, v{vNC2T}\nv_and_b32 v11, 0xff, v10\nv_cmp_ne_u32 vcc, 0, v11")
    nclc = late_check(k, 'nc2', ncl, ncchk)
    def nc2():
        a.need(['v10'])
        a("s_cmp_eq_u32 s67, 3")
        with a.guard('nc2', 's_cbranch_scc0'):
            nclc()
            a(f"""v_add_f32_dpp v10, v10, v10 row_ror:8 row_mask:0xf bank_mask:0xf
            v_mov_b32 v11, v10
            v_permlane16_swap_b32 v10, v11
            v_add_f32 v10, v10, v11
            v_mov_b32 v11, v10
            v_permlane32_swap_b32 v10, v11
            v_add_f32 v10, v10, v11
            v_cvt_pk_bf16_f32 v10, 0, v10
            v_add_f32 v10, s{sNA}, v10
            v_cvt_pk_bf16_f32 v10, 0, v10""")
        ids['nc'] = a(f"buffer_store_dword v10, v{vMN}, {WS}, 0 offen sc1")
    N1, N2, N3, N4, N5 = (k.par(n, d) for n, d in (('n1', 16), ('n2', 22), ('n3', 30), ('n4', 42), ('n5', 47)))
    def fnc():
        a.wait_vm(ids['nc'])
        a(f"buffer_store_dword v{vT}, v{vF}, {WS}, s{sFNC} offen sc1")
    fncl = f"buffer_load_dword v9, v{vFN}, {WS}, 0 offen sc1"
    def mn2(): ids['mn'] = a(f"s_mov_b32 exec_hi, 0xffff\nbuffer_load_dwordx4 v13, {WS}, s{sMN} offen offset:1024 sc1 lds\ns_mov_b32 exec_hi, -1")
    sl.add([near(ncl, P(N1), .5, tag='N'), near(nc2, P(N2), .1, tag='N'), near(fnc, P(N3), .1, tag='N', after=[('jbar', 1)]), near(fncl, P(N4), 2, tag='N'),
            near(late_check(k, 'fnc', fncl, chk1), P(N5), tag='c', ev='fnc'),
            near(f"s_add_u32 m0, s{sMN}, {L_MODN}\ns_add_u32 s{sMN}, s{sMN}, {W_MODN}", P(N5, 1), tag='n', after=[('dma', 1)]),
            near(f"buffer_load_dwordx4 v13, {WS}, s{sMN} offen sc1 lds", P(N5, 2), 1, tag='N'), near(mn2, P(N5, 4), 1, tag='N', ev='mn')])
    sl.add([near(f"buffer_load_dwordx4 {vr(XRAW[q],4)}, v{vX}, {RX}, 0 offen offset:{16*q}", k.par('x1', 8) + q, 2, tag='X') for q in range(2)])
    def junk(h):
        l = [f"buffer_store_dwordx4 v[252:255], v{vXR}, {WS}, s{sXB} offen offset:{128*q}" for q in (2 * h, 2 * h + 1)]
        if 'jsc' not in k.x: ids['junk'] = k.st(l)
        else: ids['junk'] = a(l[0] + " sc1\n" + l[1] + " sc1")
    def jbar(): a.wait_vm(ids['junk']); a("s_barrier")
    J1 = k.par('j1', 6)
    def bar1():
        a.wait_vm(ids['wo'])
        a(f"s_barrier\nbuffer_store_dword v{vT}, v{vFL}, {WS}, s{sFWO} offen sc1\nv_not_b32 v252, s{sT}")
    J2 = k.par('j2', 20)
    sl.add([near(bar1, P(J1), tag='b'), near(lambda: junk(0), P(J2, 1), 2, tag='J'), near(lambda: junk(1), P(J2, 4), 2, tag='J'),
            near(jbar, P(N3 - 1), tag='b', ev='jbar')])
    W1, W2, W3, W4 = (k.par(n, d) for n, d in (('w1', 14), ('w2', 19), ('w3', 21), ('w4', 58)))
    wofl = f"buffer_load_dword v{vQ}, v{vWOF}, {WS}, 0 offen sc1"
    def wol(jj, ks): return f"buffer_load_dwordx4 {wo_reg(jj,ks)}, v{(13,2)[ks//4]}, {WS}, s{WOS[jj]} offen offset:{(ks%4)*1024} sc1"
    wo = [near(wofl, P(W1), 2, tag='O'), near(late_check(k, 'wofl', wofl, lambda: a(f"v_cmp_ne_u32 vcc, s{sT}, v{vQ}")), P(W2), tag='c')]
    if 'nopfo' not in k.x: wo.append(near(f"buffer_load_dword v{vD2}, v{vPF}, {WS}, s{sPFO} offen sc1", P(W2, 1), 3.5, tag='P'))
    if 'nowo' not in k.x:
        k.wo_late = [wol(6, 5), wol(6, 6)]
        wl = sl.even([wol(jj, ks) for jj in range(7) for ks in range(7)][:47], P(W4) - 80, P(W4), tag='O')
        for h in wl: h['e'] = P(W3)
        wo += wl
    sl.add(wo)
    F1, F2, F3, F4 = (k.par(n, d) for n, d in (('f1', 13), ('f2', 22), ('f3', 46), ('f4', 59)))
    if 'nopf' not in k.x:
        sl.add([near(f"buffer_load_dword v14, v{vPF}, {RA}, s{sPFW} offen", k.par('f1s', P(F1)), k.par('pc', 40) / 2, tag='P')] * ('pfa' not in k.x) + [near(f"buffer_load_dword v14, v{vPF}, {RC}, s{sPFD} offen", P(F4), 1.75, tag='P')])
    if 'not2' not in k.x: sl.add([near(f"buffer_load_dword v{vQ}, v{vPF}, {WS}, s{sXO} offen sc1{' nt' if 't2nt' in k.x else ''}", P(k.par('t2', 40)), 3.5, tag='P')])
    dma = []
    for g in range(6): dma += [wdma(q) for q in range(4)] * ('nodma' not in k.x) + [(WSTEP, 0)]
    dma = sl.even(dma, P(F2), P(F3), tag='W'); dma[-1]['ev'] = 'dma'
    sl.add(dma)
    sl.solve()
    k.sched = " ".join("".join(x or '-' for x in sl.log[4*u:4*u+4]) if all(len(x) < 2 for x in sl.log[4*u:4*u+4]) else "|".join(sl.log[4*u:4*u+4]) for u in range(64)) + f"\nlate {sl.late}"
    a.section = 'att'
    k.stamp('att')
    for u in range(64):
        S, Pc = SB + 16 * (u & 1), PB + 8 * (u & 1)
        if u % 16 == 0 and u: k.stamp(f'u{u}')
        if u in (1, 2, 3, 4, 5, 6, 7, 8, 10, 12, 14, 20, 24, 28, 36, 40, 44, 52, 56, 60): k.stamp(f'u{u}')
        for g in range(4):
            n0 = len(a.out)
            if g < 2 and u < 63: QK(u + 1, g)
            if g >= 2 and u > 0: PV(u - 1, g - 2)
            sl.run(a, P(u, g))
            odd = sum(isize(i) for i in a.out[n0:]) % 8
            for e in range(4):
                r = S + 4 * g + e
                a(f"v_exp_f32{'_e64' if (odd and e == 1) else ''} v{r}, v{r}")
            a(f"v_cvt_pk_bf16_f32 v{Pc+2*g}, v{S+4*g}, v{S+4*g+1}\nv_cvt_pk_bf16_f32 v{Pc+2*g+1}, v{S+4*g+2}, v{S+4*g+3}")
    a.section = 'att_post'
    PV(63, 0)
    for q in range(8): a(f"v_add_f32 v{OB+q}, v{OB+q}, v{OB+16+q}")
    PV(63, 1)
    for ln in getattr(k, 'wo_late', []): a(ln)
    for q in range(8, 16): a(f"v_add_f32 v{OB+q}, v{OB+q}, v{OB+16+q}")
    for q in range(8): a(f"v_pk_add_f32 {vr(OB+2*q,2)}, {vr(OB+2*q,2)}, {vr(OB+32+2*q,2)}")
    k.stamp('attend')
    k.ool.append(lambda: truemax(k, kvload, qload, QK))

def truemax(k, kvload, qload, QK):
    a = k.a
    a.set_state(([], []))
    a.section = 'truemax'
    M = PB
    a(f"L_truemax:\ns_mov_b32 s{sFB}, 1\ns_waitcnt vmcnt(0) lgkmcnt(0)\ns_nop 7")
    for ln in sum(att_early(k), []) + att_late(k): a(ln)
    for s in range(4): a(f"v_mov_b32 v{M+s}, 0xff800000")
    a(f"s_lshl_b32 s70, s{sW}, 12\ns_add_u32 s70, s70, {W_KV}\nL_tm_loop:")
    a(kvload(0, 0, 70)); a(kvload(0, 1, 70))
    for s in range(4):
        d = OB + 16 * s
        a(f"""v_mfma_f32_32x32x16_bf16 {vr(d,16)}, {kreg(0,0)}, {vr(QB+8*s,4)}, 0
        v_mfma_f32_32x32x16_bf16 {vr(d,16)}, {kreg(0,1)}, {vr(QB+8*s+4,4)}, {vr(d,16)}""")
    for s in range(4):
        d = OB + 16 * s
        for r in range(0, 16, 2): a(f"v_max3_f32 v{M+s}, v{M+s}, v{d+r}, v{d+r+1}")
    a(f"s_add_u32 s70, s70, 0x4000\ns_cmp_lt_u32 s70, {W_KV+0x40000}\ns_cbranch_scc1 L_tm_loop")
    a(f"""v_and_b32 v10, 31, v1
    v_lshlrev_b32 v10, 4, v10
    s_lshl_b32 s71, s{sW}, 2
    s_barrier""")
    for s in range(4):
        a(f"""v_mov_b32 v{M+4}, v{M+s}
        v_permlane32_swap_b32 v{M+4}, v{M+s}
        v_max_f32 v{M+s}, v{M+s}, v{M+4}
        s_add_u32 s70, s{sW}, {1+s}
        s_and_b32 s70, s70, 3
        s_lshl_b32 s70, s70, 9
        s_add_u32 s70, s70, {L_OT}
        v_add_u32 v{M+8+s}, s70, v10
        v_add_u32 v11, s71, v{M+8+s}
        ds_write_b32 v11, v{M+s}""")
    k.barrier()
    for s in range(4): a(f"ds_read_b128 {vr(OB+4*s,4)}, v{M+8+s}")
    a("s_mov_b32 exec_lo, 0")
    for s in range(4):
        d = OB + 4 * s
        a(f"""v_max3_f32 v{d}, v{d}, v{d+1}, v{d+2}
        v_max_f32 v{d}, v{d}, v{d+3}
        v_and_b32 v{d+1}, s{sMASK}, v{d}
        v_sub_f32 v{d}, v{d}, v{d+1}
        v_and_b32 v{d+2}, s{sMASK}, v{d}
        v_sub_f32 v{d}, v{d}, v{d+2}
        v_cvt_pk_bf16_f32 v{QB+8*s+6}, -v{d+1}, -v{d+2}
        v_cvt_pk_bf16_f32 v{QB+8*s+7}, -v{d}, 0""")
    a("s_mov_b32 exec_lo, -1")
    for part in range(4): a(kvload(0, part))
    a(f"v_mov_b32 v{pNS}, {OOB}\nv_mov_b32 v{vWS}, {OOB}")
    main_setup(k)
    a.wait_all()
    QK(0, 0); QK(0, 1)
    a("s_nop 15\ns_branch L_att_main")

def outproj(k):
    import k3
    a = k.a
    a.section = 'ored'
    O = OB
    for q in (6, 0, 1, 2, 3, 4, 5): a(f"v_pk_add_f32 {vr(O+2*q,2)}, {vr(O+2*q,2)}, {vr(OB+48+2*q,2)}")
    a(f"""v_mov_b32 v16, v{O+12}
    v_mov_b32 v17, v{O+12}
    v_pk_add_f32 {vr(O+14,2)}, {vr(O+14,2)}, {vr(OB+62,2)}
    v_mov_b32 v18, 0
    v_permlane32_swap_b32 v16, v17
    s_mov_b32 s68, {f32(2.0**-90):#x}
    s_mov_b32 s69, {f32(2.0**110):#x}
    v_rcp_f32 v16, v17
    v_cmp_nle_f32 s[80:81], s68, v17
    v_cmp_nge_f32 vcc, s69, v17
    v_mov_b32 v19, 0""")
    for q in range(8): a(f"v_pk_mul_f32 {vr(O+2*q,2)}, {vr(O+2*q,2)}, v[16:17] op_sel_hi:[1,0]")
    a("s_or_b64 s[80:81], s[80:81], vcc")
    for q in range(8):
        a(f"v_cvt_pk_bf16_f32 v{20+q}, v{O+2*q}, v{O+2*q+1}")
        if q in (1, 3, 5): a(f"ds_write_b64 v{vOTW}, {vr(19+q,2)} offset:{(0,0,0,8,0,32)[q]}")
    a(f"""s_mov_b32 exec_hi, 0
    ds_write_b64 v{vOTW}, v[26:27] offset:40
    s_mov_b32 exec_hi, -1""")
    for q in range(8): a(f"v_pk_fma_f32 v[18:19], {vr(O+2*q,2)}, 0, v[18:19] op_sel_hi:[1,0,1]")
    a(f"""v_cmp_u_f32 vcc, v18, v19
    s_lshl_b32 s68, s{sW}, 2
    s_add_u32 s68, s68, {L_MISC}
    v_mov_b32 v18, s68
    s_or_b64 s[80:81], s[80:81], vcc
    s_cselect_b32 s69, 1, 0
    v_mov_b32 v19, s69
    ds_write_b32 v18, v19
    v_mov_b32 v18, {L_MISC}
    s_lshl_b32 s68, s{sW}, 12
    s_add_u32 m0, s68, {6*16384}""")
    k.barrier()
    a.section = 'oproj'
    k.stamp('otile')
    BF, ACC, TG = OB, 16, 172
    a("ds_read_b128 v[44:47], v18")
    for ks in range(7): a(f"ds_read_b128 {vr(BF+4*ks,4)}, v{vOTR} offset:{64*ks}")
    for q in range(4): a(wdma(q))
    a(f"""v_or3_b32 v44, v44, v45, v46
    v_or_b32 v44, v44, v47
    s_nop 0
    v_readfirstlane_b32 s68, v44
    s_andn2_b32 s68, s68, s{sFB}
    s_cbranch_scc1 L_truemax""")
    def send(jjs):
        it = []
        for jj in jjs:
            it += [f"v_bfi_b32 v{TG+4*jj+e}, v{vFF}, s{sT0+e}, v{ACC+4*jj+e}" for e in range(4)]
        it.append(lambda: k.st([f"buffer_store_dwordx4 {vr(TG+4*jj,4)}, v{vXS}, {WS}, s{sXB} offen offset:{512*jj}" for jj in jjs]))
        it.append(f"s_mov_b64 exec, s[{sOWN}:{sOWN+1}]\n" + "\n".join(f"ds_write_b128 v{vOWNW}, {vr(ACC+4*jj,4)} offset:{512*jj}" for jj in jjs) + "\ns_mov_b64 exec, -1")
        return it
    pend = []
    for grp in ((0, 1, 2), (3, 4), (5, 6)):
        n = 0
        for ks in range(7):
            for jj in grp:
                d = vr(ACC + 4 * jj, 4)
                a(f"v_mfma_f32_16x16x32_bf16 {d}, {wo_reg(jj,ks)}, {vr(BF+4*ks,4)}, {'0' if ks == 0 else d}")
                n += 1
                for _ in range(2):
                    if n > 5 and pend:
                        it = pend.pop(0)
                        it() if callable(it) else a(it)
        for it in pend: it() if callable(it) else a(it)
        pend = send(grp)
    XF, GA, CB, SBv, OWN, RC_ = 72, 96, 112, 128, 48, 208
    for q in range(4): a(f"v_lshlrev_b32 v{XF+2*q}, 16, v{XRAW[0]+q}\nv_and_b32 v{XF+2*q+1}, s{sMASK}, v{XRAW[0]+q}")
    for it in pend: it() if callable(it) else a(it)
    k.stamp('oproj')
    a.section = 'ln2'
    a("s_mov_b32 exec_hi, 0xffffff")
    def xl():
        for q in range(4): a(f"buffer_load_dwordx4 {vr(RC_+4*q,4)}, v{vXR}, {WS}, s{sXO} offen offset:{128*q} sc1")
    xl()
    for q in range(4): a(f"ds_read_b128 {vr(OWN+4*q,4)}, v{vOWNR} offset:{128*q}\nds_read_b128 {vr(GA+4*q,4)}, v{vMOD} offset:{16*q}")
    for q in range(4, 8): a(f"v_lshlrev_b32 v{XF+2*q}, 16, v{XRAW[1]+q-4}\nv_and_b32 v{XF+2*q+1}, s{sMASK}, v{XRAW[1]+q-4}")
    for q in range(8): a(f"v_pk_fma_f32 {vr(XF+2*q,2)}, {vr(OWN+2*q,2)}, {vr(GA+2*q,2)}, {vr(XF+2*q,2)}")
    for q in range(4): a(f"ds_read_b128 {vr(CB+4*q,4)}, v{vMOD} offset:{3584+16*q}\nds_read_b128 {vr(SBv+4*q,4)}, v{vMOD} offset:{1792+16*q}")
    a(f"s_mov_b32 exec_hi, -1\nv_mov_b32 v44, 0\nv_mov_b32 v49, 0")
    k3.setup(k)
    a("s_mov_b32 exec_hi, 0xffffff")
    k.stamp('xpoll')
    k.poll('xc', xl, lambda: k.gran_check(list(range(RC_, RC_ + 16)), 9), first_issued=True)
    k.stamp('xdone')
    pre = k3.pre_items(k)
    def pp(n=1):
        for _ in range(n):
            if pre: pre.pop(0)()
    a("s_mov_b32 exec_hi, -1")
    pp(2)
    a("s_mov_b32 exec_hi, 0xffffff")
    for q in range(8): a(f"v_pk_fma_f32 {vr(XF+2*q,2)}, {vr(RC_+2*q,2)}, {vr(GA+2*q,2)}, {vr(XF+2*q,2)}")
    a(f"v_pk_add_f32 v[50:51], {vr(XF,2)}, {vr(XF+2,2)}\nv_pk_add_f32 v[46:47], {vr(XF+4,2)}, {vr(XF+6,2)}")
    for q in range(4, 8): a(f"v_pk_add_f32 {vr((50,46)[q&1],2)}, {vr((50,46)[q&1],2)}, {vr(XF+2*q,2)}")
    a("v_pk_add_f32 v[50:51], v[50:51], v[46:47]\nv_add_f32 v44, v50, v51\ns_mov_b32 exec_hi, -1")
    X1 = 16
    cv = [f"v_cvt_pk_bf16_f32 v{X1+q}, v{XF+2*q}, v{XF+2*q+1}" for q in range(8)]
    def xg(r, f):
        f = list(f) + [''] * 8
        a(f"""{f[0]}
        {f[1]}
        v_add_f32_dpp v{r}, v{r}, v{r} row_ror:8 row_mask:0xf bank_mask:0xf
        v_mov_b32 v{r+1}, v{r}
        {f[2]}
        {f[3]}
        v_permlane16_swap_b32 v{r}, v{r+1}
        v_add_f32 v{r}, v{r}, v{r+1}
        v_mov_b32 v{r+1}, v{r}
        {f[4]}
        {f[5]}
        v_permlane32_swap_b32 v{r}, v{r+1}
        v_add_f32 v{r}, v{r}, v{r+1}
        {f[6]}
        {f[7]}""")
    pp(); xg(44, cv); pp()
    a(f"v_mul_f32 v48, {f32(1/112):#x}, v44\ns_mov_b32 exec_hi, 0xffffff")
    k.st([f"buffer_store_dwordx4 {vr(X1+4*q,4)}, v{vH2}, {WS}, s{sXO} offen offset:{1792+128*q}" for q in range(2)])
    for q in range(8): a(f"v_pk_add_f32 {vr(XF+2*q,2)}, {vr(XF+2*q,2)}, v[48:49] op_sel_hi:[1,0] neg_lo:[0,1] neg_hi:[0,1]")
    a(f"v_pk_mul_f32 v[44:45], {vr(XF,2)}, {vr(XF,2)}\nv_pk_mul_f32 v[46:47], {vr(XF+2,2)}, {vr(XF+2,2)}")
    for q in range(2, 8): a(f"v_pk_fma_f32 {vr(44+2*(q&1),2)}, {vr(XF+2*q,2)}, {vr(XF+2*q,2)}, {vr(44+2*(q&1),2)}")
    a("v_pk_add_f32 v[44:45], v[44:45], v[46:47]\nv_add_f32 v49, v44, v45\ns_mov_b32 exec_hi, -1")
    pp()
    xg(49, [f"v_pk_mul_f32 {vr(XF+2*q,2)}, {vr(XF+2*q,2)}, {vr(CB+2*q,2)}" for q in range(6)])
    a(f"ds_write_b64 v{vSTW}, v[48:49]")
    for q in range(6, 8): a(f"v_pk_mul_f32 {vr(XF+2*q,2)}, {vr(XF+2*q,2)}, {vr(CB+2*q,2)}")
    pp(3)
    k.barrier()
    k.stamp('lnbar')
    a(f"""ds_read_b128 v[52:55], v{vSTR}
    ds_read_b128 v[56:59], v{vSTR} offset:16
    v_mov_b32 v60, {f32(1e-5):#x}
    v_pk_add_f32 v[44:45], v[52:53], v[54:55]
    v_pk_add_f32 v[46:47], v[56:57], v[58:59]
    v_pk_add_f32 v[44:45], v[44:45], v[46:47]
    v_fma_f32 v52, v44, -0.25, v52
    v_fma_f32 v54, v44, -0.25, v54
    v_fma_f32 v56, v44, -0.25, v56
    v_fma_f32 v58, v44, -0.25, v58
    v_fmac_f32 v60, {f32(1/448):#x}, v45
    v_mul_f32 v46, v52, v52
    v_fmac_f32 v46, v54, v54
    v_fmac_f32 v46, v56, v56
    v_fmac_f32 v46, v58, v58
    v_fmac_f32 v60, 0.25, v46
    v_rsq_f32 v46, v60
    v_fma_f32 v48, v44, -0.25, v48""".replace("-0.25", "s69").replace("v_mov_b32 v60", f"s_mov_b32 s69, {f32(-0.25):#x}\nv_mov_b32 v60").replace("0.25", f"{f32(0.25):#x}"))
    H2 = 24
    for h in range(2):
        for q in range(4 * h, 4 * h + 4): a(f"v_pk_fma_f32 {vr(XF+2*q,2)}, {vr(CB+2*q,2)}, v[48:49], {vr(XF+2*q,2)} op_sel_hi:[1,0,1]")
        for q in range(4 * h, 4 * h + 4): a(f"v_pk_fma_f32 {vr(XF+2*q,2)}, {vr(XF+2*q,2)}, v[46:47], {vr(SBv+2*q,2)} op_sel_hi:[1,0,1]")
        for q in range(4 * h, 4 * h + 4): a(f"v_cvt_pk_bf16_f32 v{H2+q}, v{XF+2*q}, v{XF+2*q+1}")
    last = k.st([f"buffer_store_dwordx4 {vr(H2+4*h,4)}, v{vH2}, {WS}, s{sXO} offen offset:{128*h}" for h in range(2)])
    k.stamp('h2st')
    return last

def rest(k):
    import k3
    attention(k)
    last = outproj(k)
    if k.stop == 'att':
        k.a.wait_all()
    else:
        k3.ffn(k, last)
```

```python
import sys, struct, math
sys.path.insert(0, "gen")
from fw import Asm, Ins

NAME = "adaLN_cond__grouped_kv_mqa__glu_gated_reglu__prompt"
def f32(x): return struct.unpack('<I', struct.pack('<f', x))[0]
def vr(b, n=1, k='v'): return f"{k}{b}" if n == 1 else f"{k}[{b}:{b+n-1}]"
def ar(b, n=1): return vr(b, n, 'a')
def sr(b, n=1): return vr(b, n, 's')

W_EPOCH = 0
W_XID = 0x400
W_FWO = 0x8000
W_FNC = 0xC000
W_FK = 0x4000
W_FQ = 0x10000
W_F3 = 0x12000
W_F4 = 0x14000
W_MODC = 0x18000
W_MODN = 0x20000
W_NCP = 0x24000
W_KV = 0x40000
W_KVL = 0x80000
W_B = 0x100000
BLK = 14336
W_WO = 0x480000
W_H = 0x500000
W_STAMP = 0xC00000
W_SIZE = 0x2000000
OOB = 0x7000_0000
L_HT = 114688
L_P0 = L_HT
L_SILU = L_HT + 7168
L_MODL = 143872
L_MODN = 147456
L_NC = 147456
L_NS = 155648
L_WOST = 156160
L_OS = 98304
L_ST = 114688
L_OT = 154624
L_MISC = 162816
LDS_SIZE = 163840
S_X, S_WQ, S_WK, S_WV, S_WO, S_WG, S_WU, S_WD, S_C, S_WM, S_OUT, S_DBG, S_WS = 4, 6, 8, 10, 12, 16, 18, 20, 22, 24, 26, 28, 30
R_WS, R_X, R_A, R_B, R_C = 32, 36, 40, 44, 48
sI, sW, sT, sXC, sR = 52, 53, 54, 55, 56
sT0 = 57
sMASK = 61
sCNT = 62
sFB = 63
sLOC, sE = 2, 3
s0 = 64
S_STAMP = 82
POLL_LIMIT = 20000
WS, RX, RA, RB, RC = (f"s[{r}:{r+3}]" for r in (R_WS, R_X, R_A, R_B, R_C))
(pWV, pXV, pTR, pHW, pHR, pQS, pML, pD1, pXI, pGW, pGA, pNV, pNS, pNA, pNB, pNW, pNT, pC, pC1, pC2, pC3, pC4, pWO, pWT,
 p0V, p0C, p0D, pNO, pT0, pT1, pJ0, pJ1) = range(176, 208)
pW1 = 208
vT, vF = 241, 8

class K:
    def __init__(self, stamps=False, stop=None, x=(), probe=None):
        self.x = set(x); self.probe = probe
        self.a = Asm()
        self.stamps = stamps
        self.nstamp = 0
        self.stop = stop
        self.stamp_names = []

    def par(self, name, default):
        for x in self.x:
            if x.startswith(name + '='): return int(x.split('=')[1])
        return default

    def stamp(self, name):
        if not self.stamps or name not in self.stamps: return
        assert self.nstamp < 10
        r = S_STAMP + 2 * self.nstamp
        self.a(f"{'s_memtime' if 'cyc' in self.x else 's_memrealtime'} {sr(r,2)}")
        self.nstamp += 1
        self.stamp_names.append(name)

    def stampcnt(self, name):
        if not self.stamps or name not in self.stamps: return
        r = S_STAMP + 2 * self.nstamp
        self.a(f"s_sub_u32 s{r}, {POLL_LIMIT}, s{sCNT}\ns_mul_i32 s{r}, s{r}, 100\ns_add_u32 s{r}, s{r}, s{S_STAMP}")
        self.nstamp += 1
        self.stamp_names.append(name)

    def srd(self, r, ptr, size):
        self.a(f"""s_mov_b32 s{r}, s{ptr}
        s_mov_b32 s{r+1}, s{ptr+1}
        s_mov_b32 s{r+2}, {size}
        s_mov_b32 s{r+3}, 0x20000""")

    def barrier(self):
        self.a.wait_lg()
        self.a("s_barrier")

    def prologue(self):
        a = self.a
        a.section = 'prologue'
        a(f"""s_cmp_ge_u32 s2, 256
        s_cbranch_scc1 L_end
        s_load_dwordx4 s[28:31], s[0:1], 96
        s_load_dwordx8 s[20:27], s[0:1], 64
        s_load_dwordx16 s[4:19], s[0:1], 0""")
        self.stamp('start')
        a(f"""v_lshrrev_b32 v2, 6, v0
        v_and_b32 v1, 63, v0
        s_and_b32 s{sXC}, s2, 7
        v_readfirstlane_b32 s{sW}, v2
        s_lshr_b32 s{sR}, s2, 3
        s_lshl_b32 s{sI}, s{sXC}, 5
        s_add_u32 s{sI}, s{sI}, s{sR}
        s_mov_b32 s{sMASK}, 0xffff0000
        s_mov_b32 s{sFB}, 0""")

    def p0_setup(self):
        a = self.a
        a(f"""v_lshrrev_b32 v3, 2, v1
        v_and_b32 v4, 3, v1
        v_mul_u32_u24 v3, 5376, v3
        v_lshl_add_u32 v{p0V}, v4, 4, v3
        v_min_u32 v4, 55, v1
        s_sub_u32 s65, s{sI}, 32
        s_lshr_b32 s66, s65, 1
        s_bitcmp1_b32 s{sI}, 0
        s_cselect_b32 s66, 255, s66
        {{JOB}}
        s_mul_i32 s70, s68, 224
        v_lshl_add_u32 v{p0C}, v4, 2, s70
        s_mul_i32 s64, s68, {112*5376}
        s_lshl_b32 s70, s69, 6
        s_add_u32 s64, s64, s70
        s_cmp_lt_u32 s66, 112
        s_cselect_b32 s67, 1, 0
        s_cmp_lt_u32 s65, 224
        s_cselect_b32 s70, 0x3000, 0
        s_or_b32 s67, s67, s70
        s_lshl_b32 s71, s{sW}, 2
        s_lshr_b32 s67, s67, s71
        s_and_b32 s67, s67, 15
        s_mov_b32 m0, {L_P0}""".replace('{JOB}', "s_and_b32 s68, s66, 3\ns_lshr_b32 s69, s66, 2" if 'nojq' in self.x else
            "s_min_u32 s66, s66, 255\ns_mul_i32 s68, s66, 2341\ns_lshr_b32 s68, s68, 16\ns_mul_i32 s69, s68, 28\ns_sub_u32 s69, s66, s69"))
        if 'nojq' not in self.x: a("s_lshl_b32 s66, s69, 2\ns_add_u32 s66, s66, s68")

    def p0_loads(self):
        a = self.a
        cl = f"global_load_dword v{p0D}, v{p0C}, s[{S_C}:{S_C+1}]"
        if 'clast' not in self.x: a(cl)
        for p in range(7):
            if p == 4: a(f"s_mov_b32 m0, {L_P0+4096}")
            last = a(f"buffer_load_dwordx4 v{p0V}, {RA}, s64 offen offset:{1024*(p&3)}{'' if 'p0def' in self.x else ' nt'} lds")
            if p < 6: a(f"s_add_u32 s64, s64, {16*5376-1024+(4096 if p == 3 else 0)}")
        if 'mt' in self.x: a(f"s_lshl_b32 s70, s66, 7\ns_add_u32 s70, s70, {W_MODC}\nv_mov_b32 v161, s70\nglobal_load_dword v160, v161, s[{S_WS}:{S_WS+1}]")
        return last

    def w_prefetch(self):
        self.a(f"""s_cmp_lt_u32 s{sI}, 238
        s_cselect_b32 s{R_C}, s{S_WK}, s{S_WV}
        s_cselect_b32 s{R_C+1}, s{S_WK+1}, s{S_WV+1}
        s_movk_i32 s70, 238
        s_cselect_b32 s70, 224, s70
        s_cmp_lt_u32 s{sI}, 224
        s_cselect_b32 s{R_C}, s{S_WQ}, s{R_C}
        s_cselect_b32 s{R_C+1}, s{S_WQ+1}, s{R_C+1}
        s_cselect_b32 s70, 0, s70
        s_mov_b32 s71, 401408
        s_cselect_b32 s{R_C+2}, s71, 25088
        s_mov_b32 s{R_C+3}, 0x20000
        s_sub_u32 s70, s{sI}, s70
        s_mul_i32 s70, s70, 1792
        v_lshlrev_b32 v{pT0}, 7, v1
        s_cmp_eq_u32 s{sW}, 1
        s_cselect_b32 s70, s70, {OOB}
        s_mov_b64 exec, 0x3fff
        buffer_load_dword v{pJ0}, v{pT0}, {RC}, s70 offen
        s_mov_b64 exec, -1""")

    def tagcalc(self):
        self.a(f"""s_and_b32 s70, s{sE}, 0x7f7f7f7f
        s_and_b32 s71, s{sE}, 0x80808080
        s_add_u32 s70, s70, 0x01010101
        s_xor_b32 s{sT}, s70, s71""")

    def silu(self, regs, tmp):
        a = self.a
        for k, r in enumerate(regs): a(f"v_mul_f32 v{tmp+k}, {f32(-math.log2(math.e)):#x}, v{r}")
        for k, r in enumerate(regs): a(f"v_exp_f32 v{tmp+k}, v{tmp+k}")
        for k, r in enumerate(regs): a(f"v_add_f32 v{tmp+k}, 1.0, v{tmp+k}")
        for k, r in enumerate(regs): a(f"v_rcp_f32 v{tmp+k}, v{tmp+k}")
        for k, r in enumerate(regs): a(f"v_mul_f32 v{r}, v{r}, v{tmp+k}")

    def p0_silu(self):
        a = self.a
        a(f"""v_lshrrev_b32 v161, 2, v1
        v_and_b32 v163, 3, v1
        v_lshlrev_b32 v161, 6, v161
        v_lshl_add_u32 v161, v163, 3, v161
        v_lshrrev_b32 v160, 4, v1
        v_lshlrev_b32 v160, 3, v160
        v_lshlrev_b32 v163, 2, v1
        s_lshl_b32 s66, s66, 7
        s_add_u32 s66, s66, {W_MODC}
        s_mov_b32 exec_hi, 0
        v_add_u32 v162, s66, v163
        s_mov_b32 exec_hi, -1
        v_add_u32 v161, {L_P0}, v161
        v_add_u32 v160, {L_SILU}, v160
        v_add_u32 v163, {L_SILU}, v163
        v_lshlrev_b32 v164, 16, v{p0D}
        v_and_b32 v165, s{sMASK}, v{p0D}""")
        self.silu([164, 165], 166)
        a("v_cvt_pk_bf16_f32 v164, v164, v165\nds_write_b32 v163, v164")
        for s in range(7): a(f"ds_read_b64 {vr(48+2*s,2)}, v160 offset:{32*s}")
    def p0_compute(self, last):
        a = self.a
        A0, B0, D = 48, 64, 96
        a("s_mov_b32 s71, 0xffffff00\nv_cmp_gt_u32 vcc, 16, v1")
        a.wait_vm(last)
        for s in range(7):
            for h in range(2): a(f"ds_read_b64_tr_b16 {vr(B0+4*s+2*h,2)}, v161 offset:{1024*s+32*h}")
        for s in range(7):
            for h in range(2):
                a(f"v_mfma_f32_16x16x16_bf16 {vr(D+4*h,4)}, {vr(A0+2*s,2)}, {vr(B0+4*s+2*h,2)}, {'0' if s==0 else vr(D+4*h,4)}")
        a(f"""v_cndmask_b32 v164, v{D+4}, v{D}, vcc
        v_add_u32 v164, 0x80, v164
        v_and_or_b32 v164, v164, s71, v{pNT}""")

    def nc_setup(self):
        self.a(f"""s_sub_u32 s73, s{sI}, 32
        s_min_u32 s73, s73, 196
        s_mul_i32 s70, s73, 9363
        s_lshr_b32 s70, s70, 16
        s_mul_i32 s71, s70, 7
        s_sub_u32 s71, s73, s71
        s_lshl_b32 s72, s71, 7
        v_and_b32 v{pT0}, 31, v1
        v_lshl_add_u32 v{pC1}, v{pT0}, 2, s72
        s_mul_i32 s71, s71, {64*5376}
        s_lshl_b32 s70, s70, 7
        s_add_u32 s70, s70, s71
        s_mul_i32 s71, s{sW}, {16*5376}
        s_add_u32 s70, s70, s71
        s_add_u32 s70, s70, 1792
        s_lshl_b32 s71, s73, 2
        s_add_u32 s71, s71, s{sW}
        s_lshl_b32 s71, s71, 7
        s_add_u32 s71, s71, {W_NCP}
        s_cmp_lt_u32 s73, 196
        s_cselect_b32 s70, s70, {OOB}
        s_cselect_b32 s71, s71, {OOB}
        v_lshrrev_b32 v{pNV}, 3, v1
        v_mul_u32_u24 v{pNV}, {5376-128}, v{pNV}
        v_add3_u32 v{pNV}, v{pNV}, s70, v13
        v_lshl_add_u32 v{pNS}, v1, 2, s71
        v_mov_b32 v{pNO}, {OOB}
        v_cmp_gt_u32 vcc, 32, v1
        s_lshl_b32 s70, s{sW}, 7
        s_add_u32 s70, s70, {L_NS}
        v_cndmask_b32 v{pNS}, v{pNO}, v{pNS}, vcc
        v_lshl_add_u32 v{pNW}, v{pT0}, 2, s70
        v_lshrrev_b32 v{pT0}, 4, v1
        v_lshl_add_u32 v{pNA}, v{pT0}, 4, s70
        s_lshl_b32 s70, s{sW}, 5
        s_add_u32 s70, s70, {L_NC}
        v_lshl_add_u32 v{pNB}, v{pT0}, 10, s70
        v_bfe_u32 v{pT0}, v1, 2, 2
        v_lshl_add_u32 v{pNB}, v{pT0}, 7, v{pNB}
        v_and_b32 v{pT0}, 3, v1
        v_lshl_add_u32 v{pNB}, v{pT0}, 3, v{pNB}""")
    def nc_silu(self):
        a = self.a
        a(f"v_lshlrev_b32 v{pC1}, 16, v{pC}\nv_and_b32 v{pC2}, s{sMASK}, v{pC}")
        self.silu([pC1, pC2], pC3)
        a(f"v_cvt_pk_bf16_f32 v{pC1}, v{pC1}, v{pC2}\nds_write_b32 v{pNW}, v{pC1}")
    def nc_loads(self):
        self.a(f"""s_lshl_b32 s70, s{sW}, 11
        s_add_u32 m0, s70, {L_NC}
        s_mov_b32 s70, {8*5376-1024}
        buffer_load_dwordx4 v{pNV}, {RA}, 0 offen nt lds
        buffer_load_dwordx4 v{pNV}, {RA}, s70 offen offset:1024 nt lds""")
    def nc_compute(self):
        a = self.a
        A0, B0, D = 128, 136, 112
        for s in range(2):
            a(f"""ds_read_b128 {vr(A0+4*s,4)}, v{pNA} offset:{64*s}
            ds_read_b64_tr_b16 {vr(B0+4*s,2)}, v{pNB} offset:{4096*s}
            ds_read_b64_tr_b16 {vr(B0+4*s+2,2)}, v{pNB} offset:{4096*s+512}""")
        for u in range(2): a(f"ds_read_b64_tr_b16 {vr(96+2*u,2)}, v{pNB} offset:{L_WOST-L_NC+512*u}")
        for s in range(2):
            a(f"v_mfma_f32_16x16x32_bf16 {vr(D,4)}, {vr(A0+4*s,4)}, {vr(B0+4*s,4)}, {'0' if s==0 else vr(D,4)}")
    def nc_finish(self):
        self.a(f"""v_add_u32 v{pNO}, 0x80, v112
        v_bfi_b32 v{pNO}, v251, v{pNT}, v{pNO}""")

    def wo_setup(self):
        self.srd(R_C, S_WO, 401408)
        self.a(f"""s_sub_u32 s73, s{sI}, 33
        s_lshr_b32 s73, s73, 1
        s_bitcmp0_b32 s{sI}, 0
        s_cselect_b32 s73, 98, s73
        s_min_u32 s73, s73, 98
        s_mul_i32 s70, s73, 9363
        s_lshr_b32 s70, s70, 17
        s_mul_i32 s71, s70, 14
        s_sub_u32 s71, s73, s71
        s_lshl_b32 s72, s71, 2
        s_add_u32 s72, s72, s{sW}
        s_mul_i32 s72, s72, {8*896}
        s_lshl_b32 s13, s70, 7
        s_add_u32 s72, s72, s13
        s_lshl_b32 s70, s70, 2
        s_add_u32 s70, s70, s{sW}
        s_mul_i32 s70, s70, 14
        s_add_u32 s70, s70, s71
        s_lshl_b32 s13, s73, 7
        s_add_u32 s13, s13, {W_FWO}
        s_cmp_eq_u32 s{sW}, 0
        s_cselect_b32 s13, s13, {OOB}
        s_lshl_b32 s70, s70, 10
        s_add_u32 s70, s70, {W_WO}
        s_cmp_lt_u32 s73, 98
        s_cselect_b32 s13, s13, {OOB}
        s_cselect_b32 s70, s70, {OOB}
        s_cselect_b32 s72, s72, {OOB}
        v_lshrrev_b32 v{pWO}, 3, v1
        v_add_u32 v228, s70, v13
        v_mul_u32_u24 v{pWO}, {896-128}, v{pWO}
        v_add3_u32 v{pWO}, v{pWO}, s72, v13""")
    def wo_loads(self):
        self.a(f"""s_lshl_b32 s70, s{sW}, 10
        s_add_u32 m0, s70, {L_WOST}
        s_nop 0
        buffer_load_dwordx4 v{pWO}, {RC}, 0 offen nt lds""")

    XR, XH, ACC1 = 16, 48, 112
    def p1_setup(self):
        a = self.a
        a(f"""s_lshr_b32 s77, s{sI}, 2
        s_and_b32 s81, s77, 7
        s_lshl_b32 s77, s77, 2
        s_add_u32 s77, s77, s{sW}
        s_mul_i32 s77, s77, {8*896}
        v_lshlrev_b32 v13, 4, v1
        v_mov_b32 v2, {OOB}
        v_cmp_gt_u32 vcc, 56, v1
        v_add_u32 v{pXV}, s77, v13
        s_movk_i32 s72, 3584
        v_cndmask_b32 v{pXV}, v2, v{pXV}, vcc""")
    def p1_srd(self):
        self.a(f"""s_cmp_eq_u32 s76, 15
        s_cselect_b32 s{R_B}, s{S_WV}, s{S_WK}
        s_cselect_b32 s{R_B+1}, s{S_WV+1}, s{S_WK+1}
        s_cmp_lt_u32 s76, 14
        s_cselect_b32 s{R_B}, s{S_WQ}, s{R_B}
        s_cselect_b32 s{R_B+1}, s{S_WQ+1}, s{R_B+1}
        s_sub_u32 s{R_B}, s{R_B}, 384
        s_subb_u32 s{R_B+1}, s{R_B+1}, 0
        s_mul_i32 m0, s{sW}, 28672""")
    def p1_setup2(self):
        a = self.a
        a(f"""s_and_b32 s76, s{sI}, 3
        s_lshl_b32 s76, s76, 2
        s_add_u32 s76, s76, s{sW}
        s_lshr_b32 s78, s76, 1
        s_lshl_b32 s78, s78, 7
        s_and_b32 s73, s{sW}, 1
        s_mul_i32 s71, s73, {8*896}
        s_add_u32 s78, s78, s71
        s_cmp_lt_u32 s76, 14
        s_mov_b32 s70, {401408+384}
        s_cselect_b32 s{R_B+2}, s70, {25088+384}
        s_mov_b32 s{R_B+3}, 0x20000
        s_cselect_b32 s78, s78, 0
        s_cselect_b32 s70, 896, 56
        s_cselect_b64 vcc, -1, 0
        s_lshl_b32 s80, s70, 6
        s_mul_i32 s81, s81, {0 if 'norot' in self.x else 7}
        s_lshr_b32 s81, s81, 3
        s_mul_i32 s79, s81, s80
        s_add_u32 s79, s79, s78
        s_mul_i32 s77, s80, 7
        s_add_u32 s77, s77, s78
        ; wq: two waves share full lines, 8 rows x 128 bytes per piece, line halves swapped in rows 2,3,6,7
        v_lshrrev_b32 v{pWV}, 3, v1
        v_lshrrev_b32 v{pT0}, 2, v1
        v_and_b32 v{pT1}, 4, v{pT0}
        v_xor_b32 v{pT1}, v{pT1}, v1
        v_and_b32 v{pT1}, 7, v{pT1}
        v_mul_u32_u24 v{pWV}, 896, v{pWV}
        v_lshl_add_u32 v{pWV}, v{pT1}, 4, v{pWV}
        ; wk / wv: 16 rows x 64 bytes per piece, row bits 2 and 3 swapped
        v_and_b32 v{pT0}, 3, v{pT0}
        v_bfe_u32 v{pT1}, v1, 4, 1
        v_lshl_add_u32 v{pTR}, v{pT1}, 3, v{pT0}
        v_lshrrev_b32 v{pHW}, 5, v1
        v_lshl_add_u32 v{pTR}, v{pHW}, 2, v{pTR}
        v_mul_u32_u24 v{pTR}, 56, v{pTR}
        v_and_b32 v{pHR}, 3, v1
        v_lshl_add_u32 v{pTR}, v{pHR}, 4, v{pTR}
        v_cndmask_b32 v{pWV}, v{pTR}, v{pWV}, vcc
        s_lshl_b32 s70, s70, 4
        s_sub_u32 s70, s70, 1024
        v_add_u32 v{pWV}, 384, v{pWV}
        v_add_u32 v{pW1}, s70, v{pWV}
        v_add_u32 v{pW1+1}, s70, v{pW1}
        v_add_u32 v{pW1+2}, s70, v{pW1+1}
        v_mul_u32_u24 v{pTR}, 224, v{pHW}
        v_add_u32 v{pTR}, v{pTR}, v{pT0}
        v_lshrrev_b32 v{pHR}, 1, v{pT0}
        v_xor_b32 v{pHR}, s73, v{pHR}
        v_lshl_add_u32 v{pTR}, v{pTR}, 1, v{pHR}
        v_lshl_add_u32 v{pHW}, v{pHW}, 2, v{pT0}
        s_mul_i32 s73, s73, 448
        v_add_u32 v{pHW}, s73, v{pHW}
        v_cndmask_b32 v{pTR}, v{pHW}, v{pTR}, vcc
        v_lshl_add_u32 v{pTR}, v{pTR}, 1, v{pT1}
        v_and_b32 v{pT0}, 1, v1
        v_lshl_add_u32 v{pTR}, v{pTR}, 1, v{pT0}
        v_bfe_u32 v{pT0}, v1, 1, 1
        v_lshl_add_u32 v{pTR}, v{pTR}, 1, v{pT0}
        s_lshr_b32 s70, s{sW}, 1
        s_mul_i32 s70, s70, 57344
        v_lshl_add_u32 v{pTR}, v{pTR}, 3, s70""")
    def p1_setup3(self):
        a = self.a
        a(f"""s_lshl_b32 s70, s81, 3
        v_subrev_u32 v{pHW}, s70, v1
        v_add_u32 v{pT0}, 56, v{pHW}
        v_min_u32 v{pHW}, v{pHW}, v{pT0}
        v_cmp_gt_u32 vcc, 56, v1
        s_mul_i32 s71, s{sW}, {8*912}
        s_add_u32 s71, s71, {L_HT}
        v_cndmask_b32 v{pHW}, 56, v{pHW}, vcc
        v_lshl_add_u32 v{pHW}, v{pHW}, 4, s71
        v_and_b32 v{pT0}, 31, v1
        v_lshrrev_b32 v{pT1}, 5, v1
        v_mul_u32_u24 v{pHR}, 912, v{pT0}
        v_bfe_u32 v{pQS}, v1, 4, 1
        v_mul_u32_u24 v{pQS}, {2*BLK}, v{pQS}
        v_lshl_add_u32 v{pHR}, v{pT1}, 4, v{pHR}
        v_lshl_add_u32 v{pQS}, v{pT1}, 8, v{pQS}
        v_and_b32 v{pT1}, 15, v1
        v_lshl_add_u32 v{pQS}, v{pT1}, 3, v{pQS}
        v_add_u32 v{pHR}, {L_HT}, v{pHR}
        s_lshl_b32 s70, s{sXC}, 7
        s_add_u32 s70, s70, {W_XID}
        v_lshl_add_u32 v{pXI}, v{pT0}, 2, s70
        v_lshlrev_b32 v{pML}, 5, v1
        v_add_u32 v{pML}, {L_MODL}, v{pML}
        v_min_u32 v{pGA}, 223, v0
        v_lshrrev_b32 v{pD1}, 3, v{pGA}
        v_and_b32 v{pT0}, 7, v{pGA}
        v_lshlrev_b32 v{pD1}, 9, v{pD1}
        v_lshl_add_u32 v{pD1}, v{pT0}, 4, v{pD1}
        v_cmp_le_u32 vcc, 112, v{pGA}
        v_add_u32 v{pD1}, {W_MODC}, v{pD1}
        v_lshlrev_b32 v{pGW}, 4, v{pGA}
        v_add_u32 v{pGW}, {L_MODL}, v{pGW}
        v_cndmask_b32 v{pGA}, 0, 1.0, vcc""")

    def x_loads(self):
        a = self.a
        for t in range(8):
            a(f"buffer_load_dwordx4 {vr(self.XR+4*t,4)}, v{pXV}, {RX}, {0 if t<4 else 's72'} offen offset:{(t&3)*896}{'' if 'xdef' in self.x else ' nt'}")

    def w_dma(self, upto=28):
        a = self.a
        p = len(self.wids)
        if p >= upto: return
        self.wids.append(a(f"buffer_load_dwordx4 v{pW1+(p&3)-1 if p&3 else pWV}, {RB}, s79 offen offset:{1024*(p&3)} lds"))
        if p < 27 and p & 3 == 3: a(f"s_add_u32 m0, m0, 4096\ns_add_u32 s79, s79, s80\ns_cmp_eq_u32 s79, s77\ns_cselect_b32 s79, s78, s79")

    def reduce8(self, r):
        a = self.a
        for k in range(0, 8, 2): a(f"v_permlane32_swap_b32 v{r+k}, v{r+k+1}")
        for k in range(0, 8, 2): a(f"v_add_f32 v{r+k}, v{r+k}, v{r+k+1}")
        for k in (0, 4): a(f"v_permlane16_swap_b32 v{r+k}, v{r+k+2}")
        for k in (0, 4): a(f"v_add_f32 v{r+k}, v{r+k}, v{r+k+2}")
        for sh in (8, 4, 2, 1):
            for k in (0, 4): a(f"v_add_f32_dpp v{r+k}, v{r+k}, v{r+k} row_ror:{sh} row_mask:0xf bank_mask:0xf")
    def bcast8(self, r, s):
        a = self.a
        for k, base in ((0, 0), (4, 4)):
            for row, t in enumerate((0, 2, 1, 3)):
                a(f"v_readlane_b32 s{s+base+t}, v{r+k}, {16*row}")
    def spair(self, s):
        return sr(s & ~1, 2), s & 1

    def ln1_stats(self):
        a = self.a
        a.section = 'ln1'
        XR, XH = self.XR, self.XH
        T = 112
        SS = 68
        N1 = self.nw1
        for t in range(8):
            x = XH + 8 * t
            for j in range(4):
                a(f"v_lshlrev_b32 v{x+2*j}, 16, v{XR+4*t+j}\nv_and_b32 v{x+2*j+1}, s{sMASK}, v{XR+4*t+j}")
                if j == 2: a(f"v_pk_add_f32 v[120:121], {vr(x,2)}, {vr(x+2,2)}")
                if j == 0 and t: a(f"v_pk_add_f32 v[120:121], v[120:121], v[122:123]")
                if j == 1 and t: a(f"v_add_f32 v{T+t-1}, v120, v121")
            if t >= self.par('ws', 0): self.w_dma(N1)
            a(f"v_pk_add_f32 v[122:123], {vr(x+4,2)}, {vr(x+6,2)}")
            if t in (0, 7): self.stamp(f'x{t}')
        a(f"v_pk_add_f32 v[120:121], v[120:121], v[122:123]\nv_add_f32 v{T+7}, v120, v121")
        self.w_dma(8)
        self.reduce8(T)
        self.w_dma(8)
        a(f"v_mul_f32 v{T}, {f32(-1/448):#x}, v{T}\nv_mul_f32 v{T+4}, {f32(-1/448):#x}, v{T+4}")
        self.bcast8(T, SS)
        self.w_dma(8); self.w_dma(8)
        a("s_mov_b32 exec_hi, 0xffffff")
        for t in range(8):
            p, o = self.spair(SS + t)
            for j in range(4):
                x = XH + 8 * t + 2 * j
                a(f"v_pk_add_f32 {vr(x,2)}, {vr(x,2)}, {p} op_sel:[0,{o}] op_sel_hi:[1,{o}]")
        a("s_mov_b32 exec_hi, -1")
        self.stamp('sub')
        for t in range(0, 8, 4):
            for j in range(4):
                for e in range(4):
                    x = vr(XH + 8 * (t + e) + 2 * j, 2); d = vr(120 + 2 * e, 2)
                    a(f"v_pk_fma_f32 {d}, {x}, {x}, {d}" if j else f"v_pk_mul_f32 {d}, {x}, {x}")
            for e in range(4): a(f"v_add_f32 v{T+t+e}, v{120+2*e}, v{121+2*e}")
            self.w_dma(N1)
        self.reduce8(T)
        self.w_dma(N1)
        a(f"""v_mov_b32 v120, {f32(1e-5):#x}
        v_mov_b32 v121, {f32(1e-5):#x}
        v_fmac_f32 v120, {f32(1/448):#x}, v{T}
        v_fmac_f32 v121, {f32(1/448):#x}, v{T+4}
        v_rsq_f32 v{T}, v120
        v_rsq_f32 v{T+4}, v121""")
        self.bcast8(T, SS)
        d1e = 'd1e' in self.x
        if d1e:
            while len(self.wids) < N1: self.w_dma()
            self.stamp('d1poll'); self.d1_loads()
        for t in range(8):
            p, o = self.spair(SS + t)
            for j in range(4):
                x = XH + 8 * t + 2 * j
                a(f"v_pk_mul_f32 {vr(x,2)}, {vr(x,2)}, {p} op_sel:[0,{o}] op_sel_hi:[1,{o}]")
            if t & 3 == 3: self.w_dma(28 if d1e else N1)
        self.stamp('ln1')
        if not d1e:
            while len(self.wids) < N1: self.w_dma()
            self.stamp('d1poll'); self.d1_loads()

    def tr_lane(self, dst, rowpitch, halfrows, g1, tmp):
        a = self.a
        a(f"""v_lshrrev_b32 v{dst}, 5, v1
        v_mul_u32_u24 v{dst}, {halfrows}, v{dst}
        v_bfe_u32 v{tmp}, v1, 2, 2
        v_add_u32 v{dst}, v{dst}, v{tmp}
        v_mul_u32_u24 v{dst}, {rowpitch}, v{dst}
        v_bfe_u32 v{tmp}, v1, 4, 1
        v_mul_u32_u24 v{tmp}, {g1}, v{tmp}
        v_add_u32 v{dst}, v{dst}, v{tmp}
        v_and_b32 v{tmp}, 1, v1
        v_lshl_add_u32 v{dst}, v{tmp}, 4, v{dst}
        v_bfe_u32 v{tmp}, v1, 1, 1
        v_lshl_add_u32 v{dst}, v{tmp}, 3, v{dst}""")

    def wread(self, n):
        return [f"ds_read_b64_tr_b16 {ar(4*n+2*u,2)}, v{pTR} offset:{1024*n+512*u}" for u in range(2)]

    def gran_check(self, regs, tmp):
        a = self.a
        for k, r in enumerate(regs): a(f"v_xor_b32 v{r}, s{sT0+(k&3)}, v{r}")
        a(f"v_or_b32 v{tmp}, v{regs[0]}, v{regs[1]}")
        for k in range(2, len(regs), 2): a(f"v_or3_b32 v{tmp}, v{tmp}, v{regs[k]}, v{regs[k+1]}")
        a(f"v_and_b32 v{tmp}, 0xff, v{tmp}\nv_cmp_ne_u32 vcc, 0, v{tmp}")

    def gran_reduce(self, g, addc, addr):
        a = self.a
        a(f"""v_pk_add_f32 {vr(g,2)}, {vr(g,2)}, {vr(g+4,2)}
        v_pk_add_f32 {vr(g+2,2)}, {vr(g+2,2)}, {vr(g+6,2)}
        v_pk_add_f32 {vr(g+8,2)}, {vr(g+8,2)}, {vr(g+12,2)}
        v_pk_add_f32 {vr(g+10,2)}, {vr(g+10,2)}, {vr(g+14,2)}
        v_pk_add_f32 {vr(g,2)}, {vr(g,2)}, {vr(g+8,2)}
        v_pk_add_f32 {vr(g+2,2)}, {vr(g+2,2)}, {vr(g+10,2)}
        v_cvt_pk_bf16_f32 v{g+4}, v{g}, v{g+1}
        v_cvt_pk_bf16_f32 v{g+5}, v{g+2}, v{g+3}
        v_lshlrev_b32 v{g}, 16, v{g+4}
        v_and_b32 v{g+1}, s{sMASK}, v{g+4}
        v_lshlrev_b32 v{g+2}, 16, v{g+5}
        v_and_b32 v{g+3}, s{sMASK}, v{g+5}
        v_add_f32 v{g}, v{g}, v{addc}
        v_add_f32 v{g+1}, v{g+1}, v{addc}
        v_add_f32 v{g+2}, v{g+2}, v{addc}
        v_add_f32 v{g+3}, v{g+3}, v{addc}
        v_cvt_pk_bf16_f32 v{g+4}, v{g}, v{g+1}
        v_cvt_pk_bf16_f32 v{g+5}, v{g+2}, v{g+3}
        v_lshlrev_b32 v{g}, 16, v{g+4}
        v_and_b32 v{g+1}, s{sMASK}, v{g+4}
        v_lshlrev_b32 v{g+2}, 16, v{g+5}
        v_and_b32 v{g+3}, s{sMASK}, v{g+5}
        ds_write_b128 v{addr}, {vr(g,4)}""")

    def poll(self, name, loads, check, first_issued=False, between=None):
        a = self.a
        L = a.label(name)
        a(f"s_mov_b32 s{sCNT}, {POLL_LIMIT}")
        if not first_issued: loads()
        st = None
        if between:
            a.wait_vm()
            between()
            check()
            a(f"s_cbranch_vccz {L}_ok")
            st = a.state()
            loads()
        a(f"{L}:")
        a.wait_vm()
        check()
        a(f"""s_cbranch_vccz {L}_ok
        s_sub_u32 s{sCNT}, s{sCNT}, 1
        s_cbranch_scc1 {L}_ok""")
        if st is None: st = a.state()
        loads()
        a(f"s_branch {L}\n{L}_ok:")
        a.set_state(st)

    def st(self, lines):
        a = self.a
        L = a.label('st')
        for ln in lines:
            i = Ins(ln); a.need(i.rd + i.wr)
        a(f"s_cmp_eq_u32 s{sLOC}, 0\ns_cbranch_scc1 {L}_g")
        for ln in lines: oid = a(ln)
        a(f"{L}_j:")
        def far():
            a.set_state(([], []))
            a(f"{L}_g:\ns_nop 4")
            for ln in lines: a(ln + " sc1")
            a(f"s_branch {L}_j")
        self.ool.append(far)
        return oid

    G1 = 128
    def d1_loads(self):
        a = self.a
        for rg in range(4): a(f"buffer_load_dwordx4 {vr(self.G1+4*rg,4)}, v{pD1}, {WS}, 0 offen offset:{128*rg} sc1")
        self.d1_id = a(f"buffer_load_dword v144, v{pXI}, {WS}, 0 offen sc1")
    def d1(self):
        a = self.a
        a.section = 'd1'
        G = self.G1
        def check():
            a(f"v_xor_b32 v144, s{sT}, v144\nv_cmp_lt_u32 s[70:71], 15, v144")
            self.gran_check(list(range(G, G + 16)), 145)
            if 'noxid' not in self.x: a("s_or_b64 vcc, vcc, s[70:71]")
        self.nc_silu()
        import k2
        self.e1 = k2.att_early(self)[1]
        n, m = self.par('e1b', 4), self.par('nwa', 24) - len(self.wids)
        for j in range(m):
            self.w_dma()
            for ln in self.e1[n*j//m:n*(j+1)//m]: a(ln)
        self.e1 = self.e1[n:]
        self.stamp('wread')
        a.wait_vm(self.d1_id)
        check()
        self.stamp('d1chk')
        a("s_cbranch_vccnz L_d1_w\nL_d1_ok:")
        self.stamp('d1ok')
        def far():
            a.set_state(([], []))
            a("L_d1_w:")
            self.poll('d1', self.d1_loads, check)
            a("s_branch L_d1_ok")
        self.ool.append(far)
        self.gran_reduce(G, pGA, pGW)
        a(f"""s_getreg_b32 s70, hwreg(HW_REG_XCC_ID, 0, 4)
        v_cmp_ne_u32 vcc, s70, v144""")
        a(f"""s_cmp_eq_u64 vcc, 0
        s_cselect_b32 s{sLOC}, {0 if 'global' in self.x else 1}, {1 if 'noxid' in self.x else 0}""")
        a.wait_vm(self.wids[self.nwb - 1])
        self.barrier()
        self.stamp('d1done')

    def p1_main(self):
        a = self.a
        a.section = 'p1'
        XH = self.XH
        SH, SC = 24, 32
        a(f"""ds_read_b128 {vr(SC,4)}, v{pML} offset:1792
        ds_read_b128 {vr(SH,4)}, v{pML}
        ds_read_b128 {vr(SC+4,4)}, v{pML} offset:1808
        ds_read_b128 {vr(SH+4,4)}, v{pML} offset:16""")
        import k2
        tail = [lambda: a(f"buffer_load_dword v{pJ0}, v7, {WS}, s65 offen sc1 nt"), self.wo_loads, self.nc_loads]
        def pfa():
            for ln in k2.att_srd(self): a(ln)
            a(f"""s_lshl_b32 s70, s{sI}, 2
            s_add_u32 s70, s70, s{sW}
            s_lshr_b32 s70, s70, 1
            s_mul_i32 s70, s70, 3584
            buffer_load_dword v{pJ1}, v7, {RA}, s70 offen""")
        if 'pfa' in self.x: tail.append(pfa)
        early = len(self.wids) == 28
        for n in range(self.nwb):
            for ln in self.wread(n): a(ln)
            self.w_dma()
            if early and tail: tail.pop(0)()
        for t in range(8):
            x = XH + 8 * t
            for j in range(4): a(f"v_pk_fma_f32 {vr(x+2*j,2)}, {vr(x+2*j,2)}, {vr(SC+2*j,2)}, {vr(SH+2*j,2)}")
            for j in range(4): a(f"v_cvt_pk_bf16_f32 v{x+j}, v{x+2*j}, v{x+2*j+1}")
            self.w_dma()
            a(f"ds_write_b128 v{pHW}, {vr(x,4)} offset:{912*t}")
        while len(self.wids) < 28: self.w_dma()
        self.stamp('hw')
        NWC = self.par('nwc', 28)
        a.wait_vm(self.wids[NWC - 1])
        fill = f"""s_lshr_b32 s72, s{sI}, 2
        s_mul_i32 s70, s72, {4*BLK}
        s_lshl_b32 s73, s76, 10
        s_add_u32 s70, s70, s73
        s_add_u32 s70, s70, {W_B-7168}
        s_cmp_lt_u32 s76, 7
        s_cselect_b32 s73, {BLK+7168}, 0
        s_add_u32 s70, s70, s73
        s_lshl_b32 s71, s72, 12
        s_and_b32 s73, s76, 1
        s_lshl_b32 s73, s73, 11
        s_add_u32 s71, s71, s73
        s_add_u32 s74, s71, {W_KVL}
        s_add_u32 s71, s71, {W_KV}
        s_lshl_b32 s75, s72, 7
        s_lshl_b32 s73, s76, 2
        s_add_u32 s75, s75, s73
        s_add_u32 s75, s75, {W_FQ}""".split('\n')
        import k2
        fill += k2.att_srd(self) + k2.att_late(self)
        self.barrier()
        self.stamp('hbar')
        HF, NH, D = 128, 12, self.ACC1
        L = a.label('p1')
        def mm(swap):
            hf = lambda ks: vr(HF + 4 * (ks % NH), 4)
            for ks in range(8): a(f"ds_read_b128 {hf(ks)}, v{pHR} offset:{32*ks}")
            n = self.nwb; fl = list(fill)
            while n < 8:
                for ln in self.wread(n): a(ln)
                n += 1
            for ks in range(28):
                A, B = ar(4 * ks, 4), hf(ks)
                if swap: A, B = B, A
                a(f"v_mfma_f32_32x32x16_bf16 {vr(D,16)}, {A}, {B}, {'0' if ks==0 else vr(D,16)}")
                if ks + 8 < 28: a(f"ds_read_b128 {hf(ks+8)}, v{pHR} offset:{32*(ks+8)}")
                while n < 28 and n <= ks + 8:
                    if n == NWC: a.wait_vm(self.wids[27]); a("s_barrier")
                    for ln in self.wread(n): a(ln)
                    n += 1
                if ks < len(tail): tail[ks](); continue
                nf = 5 if ks >= 20 else 2
                for ln in fl[:nf]: a(ln)
                fl = fl[nf:]
            for ln in fl: a(ln)
        def cvt():
            for j in range(8): a(f"v_cvt_pk_bf16_f32 v{24+j}, v{D+2*j}, v{D+2*j+1}")
        a(f"s_cmp_eq_u32 s76, 15\ns_cbranch_scc1 {L}_v")
        st = a.state()
        mm(False)
        a(f"s_cmp_eq_u32 s76, 14\ns_cbranch_scc1 {L}_k")
        st2 = a.state()
        cvt()
        self.st([f"buffer_store_dwordx2 {vr(24+2*e,2)}, v{pQS}, {WS}, s70 offen offset:{(0,128,512,640)[e]}" for e in range(4)])
        a(f"s_branch {L}_j")
        a(f"{L}_k:"); a.set_state(st2)
        a(f"s_mov_b32 s72, {f32(28**-0.5*math.log2(math.e)):#x}\ns_nop 7\ns_nop 1")
        for j in range(8): a(f"v_pk_mul_f32 {vr(D+2*j,2)}, {vr(D+2*j,2)}, s[72:73] op_sel_hi:[1,0]")
        cvt()
        a(f"""s_mov_b32 exec_lo, 0
        v_mov_b32 v30, 0x3f803f80
        v_mov_b32 v31, 0x3f80
        s_mov_b32 exec_lo, -1
        s_branch {L}_kv
        {L}_v:""")
        a.set_state(st)
        a(f"""v_and_b32 v10, 31, v1
        v_cmp_eq_u32 vcc, 28, v10
        v_mov_b32 v11, 0x3f803f80
        s_nop 0
        v_cndmask_b32 v11, 0, v11, vcc""")
        mm(True)
        cvt()
        a("s_mov_b32 exec_lo, 0xf0000000\ns_mov_b32 exec_hi, 0xf0000000")
        for j in range(8): a(f"v_mov_b32 v{24+j}, v11")
        a(f"""s_mov_b64 exec, -1
        {L}_kv:""")
        last = self.st([f"buffer_store_dwordx4 v[24:27], v13, {WS}, s74 offen",
                        f"buffer_store_dwordx4 v[28:31], v13, {WS}, s74 offen offset:1024"])
        a(f"""buffer_store_dwordx4 v[24:27], v13, {WS}, s71 offen sc1
        buffer_store_dwordx4 v[28:31], v13, {WS}, s71 offen offset:1024 sc1""")
        a(f"{L}_j:")
        self.stamp('p1mm')
        n = self.par('e1a', 4)
        for ln in self.e1[:n]: a(ln)
        self.e1 = self.e1[n:]
        a.wait_vm(last)
        a(f"s_cmp_ge_u32 s76, 14\ns_cbranch_scc1 {L}_f")
        a.raw("s_waitcnt vmcnt(0)")
        a(f"{L}_f:")
        self.stamp('p1st')
        self.st([f"buffer_store_dword v{vT}, v{vF}, {WS}, s75 offen"])
        self.stamp('f2')

    def flag(self, soff, wave=0):
        a = self.a
        def body():
            a(f"""v_mov_b32 v9, s{sT}
            s_mov_b64 exec, 1
            buffer_store_dword v9, off, s[{R_WS}:{R_WS+3}], {soff} sc1
            s_mov_b64 exec, -1""")
        if wave is None: body(); return
        a(f"s_cmp_eq_u32 s{sW}, {wave}")
        with a.guard(a.label('flag'), 's_cbranch_scc0'): body()

    def start_phase(self):
        a = self.a
        import k2
        self.ool = []
        self.wids = []
        self.nw1 = self.par('nw1', 10); self.nwb = self.par('nwb', 4); self.d1_issued = False
        self.prologue()
        self.p0_setup()
        self.p1_setup()
        ks = self.par('ks', 1)
        if ks >= 1: self.p1_setup2()
        if ks >= 2: self.p1_setup3()
        a.need(['s30'])
        self.stamp('karg')
        self.srd(R_A, S_WM, 448 * 5376)
        a("s_cmp_eq_u32 s67, 1")
        with a.guard('p0c', 's_cbranch_scc0'): lc = self.p0_loads()
        a(f"s_load_dword s{sE}, s[{S_WS}:{S_WS+1}], {W_EPOCH}")
        self.srd(R_X, S_X, 2048 * 896)
        a("s_barrier")
        self.stamp('bar0')
        xl = self.par('xl', 1)
        if xl == 0: self.x_loads()
        self.srd(R_WS, S_WS, W_SIZE)
        if ks < 1: self.p1_setup2()
        self.p1_srd()
        if ks < 2: self.p1_setup3()
        if xl == 2: self.touch_setup(); self.wo_setup(); a("s_movk_i32 s72, 3584")
        if xl >= 1: self.x_loads()
        self.stamp('xi')
        if 'wpf' in self.x:
            self.w_prefetch()
        late = [self.nc_setup, self.wo_setup, self.touch_setup][:1 if xl == 2 else 3]
        nl = self.par('nl', 3)
        for f in late[:nl]: f()
        a(f"""s_lshl_b32 s71, s{sI}, 2
        s_add_u32 s71, s71, {W_XID}
        s_cmp_eq_u32 s{sW}, {7 if 'noxid' in self.x else 2}
        s_cselect_b32 s71, s71, {OOB}
        v_mov_b32 v162, {OOB}
        s_getreg_b32 s72, hwreg(HW_REG_XCC_ID, 0, 4)
        v_writelane_b32 v162, s71, 0
        v_and_b32 v{pNT}, 3, v1
        v_lshlrev_b32 v{pNT}, 3, v{pNT}""")
        a("s_cmp_eq_u32 s67, 1")
        with a.guard('p0c', 's_cbranch_scc0'): self.p0_silu()
        self.tagcalc()
        a(f"""v_lshrrev_b32 v{pNT}, v{pNT}, s{sT}
        s_xor_b32 s72, s{sT}, s72
        v_and_b32 v{pNT}, 0xff, v{pNT}
        v_mov_b32 v164, s72""")
        self.stamp('set1')
        a("s_cmp_eq_u32 s67, 1")
        a.section = 'p0c'
        with a.guard('p0c', 's_cbranch_scc0'): self.p0_compute(lc)
        a(f"buffer_store_dword v164, v162, {WS}, 0 offen sc1")
        self.stamp('p0')
        if 'ack' in self.x: a.wait_vm(); self.stamp('ack')
        a(f"""s_and_b32 s{sT0}, s{sT}, 0xff
        s_bfe_u32 s{sT0+1}, s{sT}, 0x80008
        s_bfe_u32 s{sT0+2}, s{sT}, 0x80010
        s_lshr_b32 s{sT0+3}, s{sT}, 24""")
        for f in late[nl:]: f()
        for ln in k2.att_early(self)[0]: a(ln)
        a(f"global_load_dword v{pC}, v{pC1}, s[{S_C}:{S_C+1}]")
        self.pretouch()
        for p in range(self.par('nw0', 0)): self.w_dma()
        self.stamp('set2')
        if 0 <= self.par('px', -1) < 8:
            a(f"s_add_u32 s70, s{sR}, s{sW}\ns_cmp_eq_u32 s70, 0")
            with a.guard('px', 's_cbranch_scc0'):
                a(f"""s_getreg_b32 s70, hwreg(HW_REG_XCC_ID, 0, 4)
                s_lshl_b32 s70, s70, 7
                s_add_u32 s70, s70, {W_STAMP}
                v_mov_b32 v9, s{S_STAMP}
                buffer_store_dword v9, v{vF}, {WS}, s70 offen sc1""")
        self.ln1_stats()
        self.d1()
        self.p1_main()

    def touch_setup(self):
        self.a(f"""s_mul_i32 s65, s{sI}, {BLK}
        s_mul_i32 s70, s{sW}, 3584
        s_add_u32 s65, s65, s70
        s_add_u32 s65, s65, {W_B}
        s_lshl_b32 s70, s{sXC}, 15
        s_mul_i32 s71, s{sR}, 3584
        s_add_u32 s70, s70, s71
        s_add_u32 s70, s70, {W_KVL}
        s_cmp_lt_u32 s{sR}, 10
        s_cselect_b32 s70, s70, {OOB}
        s_cmp_eq_u32 s{sW}, 3
        s_cselect_b32 s70, {OOB}, s70
        s_cmp_lt_u32 s{sW}, 2
        s_cselect_b32 s65, s65, s70""")

    def pretouch(self):
        a = self.a
        if 'nopre' in self.x: return
        a(f"""s_lshr_b32 s70, s{sR}, 3
        s_lshl_b32 s70, s70, 6
        s_and_b32 s71, s{sR}, 7
        s_add_u32 s70, s70, s71
        s_lshl_b32 s71, s{sXC}, 3
        s_add_u32 s70, s70, s71
        s_lshl_b32 s70, s70, 7
        s_add_u32 s70, s70, {W_FQ}
        s_lshl_b32 s71, s{sI}, 5
        s_add_u32 s72, s71, {W_FNC}
        s_add_u32 s71, s71, {W_MODN-1024}
        s_cmp_eq_u32 s{sW}, 2
        s_cselect_b32 s70, s71, s70
        s_cmp_eq_u32 s{sW}, 1
        s_cselect_b32 s70, s72, s70
        s_cmp_eq_u32 s{sW}, 0
        s_cselect_b32 s70, {OOB}, s70
        buffer_load_dword v{pJ1}, v{vF}, {WS}, s70 offen sc1""")

    def epoch_update(self):
        a = self.a
        a(f"s_cmp_eq_u32 s{sI}, 255\ns_cbranch_scc0 L_fin\ns_cmp_eq_u32 s{sW}, 0\ns_cbranch_scc0 L_fin")
        a(f"s_mov_b32 s70, {W_EPOCH}")
        self.flag('s70', None)
        a("L_fin:")

    def finish(self):
        a = self.a
        if self.probe:
            self.stamp('end')
            j = self.stamp_names.index(self.probe)
            a.force_wait("s_waitcnt lgkmcnt(0)")
            a(f"""s_cmp_eq_u32 s{sI}, {self.par("pi",100)}
            s_cbranch_scc0 L_end
            s_add_u32 s70, s{S_STAMP+2*j}, 6000""")
            px = self.par('px', -1)
            if px == 9:
                a(f"s_sub_u32 s71, s{S_STAMP+2*j}, s{S_STAMP}\ns_min_u32 s71, s71, 4000\ns_mul_i32 s71, s71, 4\ns_add_u32 s70, s70, s71")
            elif px == 8:
                a(f"s_getreg_b32 s71, hwreg(HW_REG_XCC_ID, 0, 4)\ns_sub_u32 s71, s71, s{sXC}\ns_and_b32 s71, s71, 7\ns_mul_i32 s71, s71, 500\ns_add_u32 s70, s70, s71")
            elif px >= 0:
                a(f"v_lshlrev_b32 v2, 7, v1\ns_mov_b32 s71, {W_STAMP}\nbuffer_load_dword v3, v2, {WS}, s71 offen sc1")
                for q in range(8): a(f"v_readlane_b32 s{72+q}, v3, {q}")
                a(f"s_mov_b32 s71, s72")
                for q in range(1, 8): a(f"s_min_u32 s71, s71, s{72+q}")
                a(f"s_sub_u32 s71, s{72+px}, s71\ns_min_u32 s71, s71, 300\ns_mul_i32 s71, s71, 20\ns_add_u32 s70, s70, s71")
            a(f"""L_probe:
            s_memrealtime s[72:73]
            s_waitcnt lgkmcnt(0)
            s_sub_u32 s71, s72, s70
            s_cmp_lt_i32 s71, 0
            s_cbranch_scc1 L_probe""")
        elif self.stamps:
            self.stamp('end')
            a.force_wait("s_waitcnt lgkmcnt(0)")
            for k in range(self.nstamp): a(f"v_writelane_b32 v2, s{S_STAMP+2*k}, {k}")
            a(f"""s_lshl_b32 s70, s{sI}, 2
            s_add_u32 s70, s70, s{sW}
            s_lshl_b32 s70, s70, 6
            s_add_u32 s70, s70, {W_STAMP}
            v_lshlrev_b32 v3, 2, v1
            s_mov_b64 exec, 0xffff
            buffer_store_dword v2, v3, s[{R_WS}:{R_WS+3}], s70 offen
            s_mov_b64 exec, -1""")
        a("L_end:\ns_endpgm")
        for f in getattr(self, 'ool', []): f()

    def build(self):
        import k2
        self.start_phase()
        if self.stop != 'p1':
            k2.rest(self)
        self.epoch_update()
        self.finish()
        return self.module()

    def module(self):
        hdr = open(f"cdna_kernels/{NAME}.s.ref").read().split("; @launch")[0]
        kn = NAME + "_kernel"
        return hdr + f"""; @launch grid=(256,1,1) block=(256,1,1) lds={LDS_SIZE}
.amdgcn_target "amdgcn-amd-amdhsa--gfx950"
.text
.globl {kn}
.p2align 8
.type {kn},@function
{kn}:
{self.a.text()}.section .rodata,"a"
.p2align 6
.amdhsa_kernel {kn}
  .amdhsa_next_free_vgpr 512
  .amdhsa_next_free_sgpr 102
  .amdhsa_accum_offset 256
  .amdhsa_group_segment_fixed_size 0
  .amdhsa_kernarg_size 112
  .amdhsa_user_sgpr_count 2
  .amdhsa_user_sgpr_kernarg_segment_ptr 1
  .amdhsa_system_sgpr_workgroup_id_x 1
.end_amdhsa_kernel
"""

if __name__ == "__main__":
    import argparse
    ap = argparse.ArgumentParser()
    ap.add_argument("-o", default="out.s")
    ap.add_argument("--stamps", default=None)
    ap.add_argument("--stop", default=None)
    ap.add_argument("-x", default="")
    ap.add_argument("--probe", default=None)
    ap.add_argument("--nops", action="store_true")
    g = ap.parse_args()
    if g.probe: g.stamps = g.probe
    k = K(stamps=(['start', 'end'] + g.stamps.split(',')) if g.stamps else None, stop=g.stop, x=g.x.split(','), probe=g.probe)
    txt = k.build()
    if g.stamps: txt += "; STAMPS " + " ".join(k.stamp_names) + "\n"
    open(g.o, "w").write(txt)
    if g.nops:
        for n in k.a.nops: print(n)
    print(getattr(k, 'info', ''))
    print(getattr(k, 'sched', ''))
    print("instructions:", sum(1 for i in k.a.out if i.op), "nop states:", sum(n[1] for n in k.a.nops))
```
